```python
import torch

def _softmax(x, axis=-1):
    return torch.softmax(x, dim=axis)

def _gelu(x):
    return torch.nn.functional.gelu(x, approximate='tanh')

def _silu(x):
    return torch.nn.functional.silu(x)

def _sigmoid(x):
    return torch.sigmoid(x)

def _layernorm(x, axis=-1, eps=1e-05):
    m = x.mean(dim=axis, keepdim=True)
    v = x.var(dim=axis, keepdim=True, unbiased=False)
    return (x - m) / torch.sqrt(v + eps)

def _scatter_add(tgt, idx, src, axis=0):
    return tgt.clone().index_add_(axis, idx, src)

def _segment_sum(src, seg, n):
    out = torch.zeros((n,) + src.shape[1:], dtype=src.dtype)
    return out.index_add_(0, seg, src)

def _pad(x, pw):
    flat = tuple((v for pair in reversed(pw) for v in pair))
    return torch.nn.functional.pad(x, flat)
kernel_name = 'gated_mix__memory_aug_recurrent_mem_tr__memory_aug_recurrent_mem_tr__prompt'

def setup_inputs():

    _w = lambda a: (lambda t: t.to(torch.bfloat16) if t.is_floating_point() else t)(torch.as_tensor(a))

    def _A_setup():
        B, S, Dm = (1, 2048, 576)
        H, Dh = (32, 128)
        M, seg = (8, 32)
        seg = min(seg, S)
        S = S // seg * seg
        return {'x': _w((lambda *s: torch.randn(*s, dtype=torch.bfloat16) * 0.05)(B, S, Dm)), 'mem0': _w((lambda *s: torch.randn(*s, dtype=torch.bfloat16) * 0.4)(B, M, Dm)), 'Wq': _w((lambda *s: torch.randn(*s, dtype=torch.bfloat16) * 6.4)(Dm, H, Dh) * Dm ** (-0.5)), 'Wk': _w((lambda *s: torch.randn(*s, dtype=torch.bfloat16) * 6.4)(Dm, H, Dh) * Dm ** (-0.5)), 'Wv': _w((lambda *s: torch.randn(*s, dtype=torch.bfloat16) * 0.4)(Dm, H, Dh) * Dm ** (-0.5)), 'Wo': _w((lambda *s: torch.randn(*s, dtype=torch.bfloat16) * 0.4)(H, Dh, Dm) * (H * Dh) ** (-0.5)), 'seg_len': seg}
    _A_in = _A_setup()

    def _B_setup():
        B, S, Dm = (1, 2048, 576)
        H, Dh = (32, 128)
        M, seg = (8, 32)
        seg = min(seg, S)
        S = S // seg * seg
        return {'x': _w((lambda *s: torch.randn(*s, dtype=torch.bfloat16) * 0.05)(B, S, Dm)), 'mem0': _w((lambda *s: torch.randn(*s, dtype=torch.bfloat16) * 0.4)(B, M, Dm)), 'Wq': _w((lambda *s: torch.randn(*s, dtype=torch.bfloat16) * 6.4)(Dm, H, Dh) * Dm ** (-0.5)), 'Wk': _w((lambda *s: torch.randn(*s, dtype=torch.bfloat16) * 6.4)(Dm, H, Dh) * Dm ** (-0.5)), 'Wv': _w((lambda *s: torch.randn(*s, dtype=torch.bfloat16) * 0.4)(Dm, H, Dh) * Dm ** (-0.5)), 'Wo': _w((lambda *s: torch.randn(*s, dtype=torch.bfloat16) * 0.4)(H, Dh, Dm) * (H * Dh) ** (-0.5)), 'seg_len': seg}
    _B_in = _B_setup()
    return {'A_x': _A_in['x'], 'A_mem0': _A_in['mem0'], 'A_Wq': _A_in['Wq'], 'A_Wk': _A_in['Wk'], 'A_Wv': _A_in['Wv'], 'A_Wo': _A_in['Wo'], 'A_seg_len': _A_in['seg_len'], 'B_x': _B_in['x'], 'B_mem0': _B_in['mem0'], 'B_Wq': _B_in['Wq'], 'B_Wk': _B_in['Wk'], 'B_Wv': _B_in['Wv'], 'B_Wo': _B_in['Wo'], 'B_seg_len': _B_in['seg_len'], 'gate_w': _w((lambda *s: torch.randn(*s, dtype=torch.bfloat16) * 0.05)(576) * 16.0)}

def reference(A_x, A_mem0, A_Wq, A_Wk, A_Wv, A_Wo, A_seg_len, B_x, B_mem0, B_Wq, B_Wk, B_Wv, B_Wo, B_seg_len, gate_w):

    def _A_ref(x, mem0, Wq, Wk, Wv, Wo, seg_len):
        B, S, Dm = x.shape
        H, Dh = (Wq.shape[1], Wq.shape[2])
        M = mem0.shape[1]
        scale = Dh ** (-0.5)
        n_seg = S // seg_len
        L = M + seg_len
        idx = torch.arange(L)
        mask = (idx[:, None] < M) | (idx[:, None] >= idx[None, :])
        mem = mem0
        outs = []
        for s in range(n_seg):
            xs = x[:, s * seg_len:(s + 1) * seg_len, :].clone()
            h = torch.concatenate([mem, xs], axis=1)
            q = torch.einsum('btd,dhe->bhte', h, Wq)
            k = torch.einsum('btd,dhe->bhte', h, Wk)
            v = torch.einsum('btd,dhe->bhte', h, Wv)
            scores = torch.einsum('bhqe,bhke->bhqk', q, k) * scale
            scores = torch.where(mask[None, None], scores, -1000000000.0)
            p = _softmax(scores, axis=-1)
            o = torch.einsum('bhqk,bhke->bhqe', p, v)
            o = torch.einsum('bhte,hed->btd', o, Wo)
            mem = o[:, :M, :].clone()
            outs.append(o[:, M:, :])
        return torch.concatenate(outs, axis=1)

    def _B_ref(x, mem0, Wq, Wk, Wv, Wo, seg_len):
        B, S, Dm = x.shape
        H, Dh = (Wq.shape[1], Wq.shape[2])
        M = mem0.shape[1]
        scale = Dh ** (-0.5)
        n_seg = S // seg_len
        L = M + seg_len
        idx = torch.arange(L)
        mask = (idx[:, None] < M) | (idx[:, None] >= idx[None, :])
        mem = mem0
        outs = []
        for s in range(n_seg):
            xs = x[:, s * seg_len:(s + 1) * seg_len, :].clone()
            h = torch.concatenate([mem, xs], axis=1)
            q = torch.einsum('btd,dhe->bhte', h, Wq)
            k = torch.einsum('btd,dhe->bhte', h, Wk)
            v = torch.einsum('btd,dhe->bhte', h, Wv)
            scores = torch.einsum('bhqe,bhke->bhqk', q, k) * scale
            scores = torch.where(mask[None, None], scores, -1000000000.0)
            p = _softmax(scores, axis=-1)
            o = torch.einsum('bhqk,bhke->bhqe', p, v)
            o = torch.einsum('bhte,hed->btd', o, Wo)
            mem = o[:, :M, :].clone()
            outs.append(o[:, M:, :])
        return torch.concatenate(outs, axis=1)
    x = A_x
    g = _sigmoid((x * gate_w).sum(-1, keepdims=True))
    a = _A_ref(x, A_mem0, A_Wq, A_Wk, A_Wv, A_Wo, A_seg_len)
    b = _B_ref(x, B_mem0, B_Wq, B_Wk, B_Wv, B_Wo, B_seg_len)
    return g * a + (1 - g) * b
```

```python
import re

TRANS = ("v_exp_f32", "v_log_f32", "v_rcp_f32", "v_rsq_f32", "v_sqrt_f32", "v_sin_f32", "v_cos_f32")

def v(i, n=1):
    return f"v{i}" if n == 1 else f"v[{i}:{i+n-1}]"
def a(i, n=1):
    return f"a{i}" if n == 1 else f"a[{i}:{i+n-1}]"
def s(i, n=1):
    return f"s{i}" if n == 1 else f"s[{i}:{i+n-1}]"
def R(i, n=1):
    if i < 256:
        assert i + n <= 256
        return v(i, n)
    return a(i - 256, n)

_reg_re = re.compile(r"^(-|abs\()?([vas])(\d+|\[(\d+):(\d+)\])\)?$")

def regs_of(op):
    op = op.strip()
    if op in ("vcc",):
        return {("s", 106), ("s", 107)}
    if op == "vcc_lo": return {("s", 106)}
    if op == "vcc_hi": return {("s", 107)}
    if op == "exec":
        return {("s", 126), ("s", 127)}
    if op == "exec_lo": return {("s", 126)}
    if op == "exec_hi": return {("s", 127)}
    if op == "m0":
        return {("s", 124)}
    m = _reg_re.match(op)
    if not m:
        return set()
    k = m.group(2)
    if m.group(4) is not None:
        lo, hi = int(m.group(4)), int(m.group(5))
    else:
        lo = hi = int(m.group(3))
    return {(k, i) for i in range(lo, hi + 1)}

def split_ops(rest):
    ops, depth, cur = [], 0, ""
    for ch in rest:
        if ch in "[(":
            depth += 1
        if ch in "])":
            depth -= 1
        if ch == "," and depth == 0:
            ops.append(cur.strip()); cur = ""
        else:
            cur += ch
    if cur.strip():
        ops.append(cur.strip())
    if ops:
        parts = ops[-1].split()
        ops[-1] = parts[0]
        mods = parts[1:]
    else:
        mods = []
    return ops, mods

class Ins:
    __slots__ = ("text", "op", "kind", "wr", "rd", "passes", "srcC", "srcAB", "dpp", "trans", "wide_store", "sdata", "states", "t")

def parse(text):
    I = Ins()
    I.text = text
    t = text.split(";")[0].strip()
    sp = t.split(None, 1)
    op = sp[0]
    ops, mods = split_ops(sp[1]) if len(sp) > 1 else ([], [])
    I.op = op; I.wr = set(); I.rd = set(); I.passes = 0; I.srcC = set(); I.srcAB = set()
    I.dpp = any(m.startswith(("row_", "quad_perm", "wave_", "row_bcast")) for m in mods) or op.endswith("_dpp")
    I.trans = op.replace("_e32", "").replace("_e64", "") in TRANS
    I.wide_store = False; I.sdata = set(); I.states = 1
    if op == "s_nop":
        I.kind = "nop"; I.states = int(ops[0], 0) + 1
    elif op.startswith("v_mfma") or op.startswith("v_smfmac"):
        I.kind = "mfma"
        I.passes = 8 if "32x32" in op else 4
        I.wr = regs_of(ops[0])
        if op.startswith("v_smfmac"):
            I.srcC = regs_of(ops[0]); I.srcAB = regs_of(ops[1]) | regs_of(ops[2]) | regs_of(ops[3])
        else:
            I.srcC = regs_of(ops[3]); I.srcAB = regs_of(ops[1]) | regs_of(ops[2])
        I.rd = I.srcC | I.srcAB
    elif op.startswith("v_"):
        I.kind = "valu"
        if op.startswith("v_permlane") and "swap" in op:
            I.wr = regs_of(ops[0]) | regs_of(ops[1]); I.rd = set(I.wr); I.kind = "permlane"
        elif op.startswith(("v_add_co", "v_sub_co", "v_addc_co", "v_subb_co", "v_subrev_co")):
            I.wr = regs_of(ops[0]) | regs_of(ops[1])
            for o in ops[2:]: I.rd |= regs_of(o)
        else:
            I.wr = regs_of(ops[0])
            for o in ops[1:]: I.rd |= regs_of(o)
            if op.startswith(("v_fmac", "v_dot2c", "v_pk_fmac", "v_mac")) or I.dpp:
                I.rd |= regs_of(ops[0])
            if op.startswith("v_cmpx"):
                I.wr |= regs_of("exec")
            if op.startswith(("v_readfirstlane", "v_readlane")):
                I.kind = "readlane"
    elif op.startswith("ds_"):
        I.kind = "ds"
        if op.startswith(("ds_read", "ds_bpermute", "ds_permute", "ds_swizzle")):
            I.wr = regs_of(ops[0])
            for o in ops[1:]: I.rd |= regs_of(o)
        else:
            for o in ops: I.rd |= regs_of(o)
    elif op.startswith(("buffer_", "global_", "flat_")):
        I.kind = "vmem"
        lds = "lds" in mods or "_lds_" in op
        if op in ("buffer_inv", "buffer_wbl2"):
            pass
        elif lds:
            for o in ops: I.rd |= regs_of(o)
            I.rd |= regs_of("m0"); I.kind = "vmem_lds"
        elif "_load" in op:
            I.wr = regs_of(ops[0])
            for o in ops[1:]: I.rd |= regs_of(o)
        elif "_store" in op:
            for o in ops: I.rd |= regs_of(o)
            if op.endswith(("x3", "x4")):
                I.wide_store = True
                I.sdata = regs_of(ops[0]) if op.startswith("buffer") else regs_of(ops[1])
        elif "_atomic" in op:
            for o in ops: I.rd |= regs_of(o)
            if "sc0" in mods: I.wr = regs_of(ops[0])
    elif op.startswith("s_"):
        I.kind = "salu"
        if op.startswith(("s_cmp", "s_cbranch", "s_branch", "s_waitcnt", "s_barrier", "s_endpgm", "s_sleep", "s_setprio", "s_bitcmp")):
            for o in ops: I.rd |= regs_of(o)
        else:
            if ops: I.wr = regs_of(ops[0])
            for o in ops[1:]: I.rd |= regs_of(o)
            if "saveexec" in op: I.wr |= regs_of("exec")
    else:
        raise ValueError("unknown instruction: " + text)
    return I

VALU_KINDS = ("valu", "permlane", "readlane")

def required(P, C):
    need = 0
    pv = P.kind in VALU_KINDS
    if pv:
        wv = {r for r in P.wr if r[0] != "s"}
        ws = {r for r in P.wr if r[0] == "s"}
        if C.kind == "mfma" and wv & C.rd: need = max(need, 2)
        if C.kind == "permlane" and wv & C.rd: need = max(need, 2)
        if C.kind in VALU_KINDS and C.dpp and wv & C.rd: need = max(need, 2)
        if C.kind == "readlane" and wv & C.rd: need = max(need, 1)
        if P.trans and C.kind in VALU_KINDS and not C.trans and wv & C.rd: need = max(need, 1)
        if ws:
            if C.kind in VALU_KINDS and ws & C.rd: need = max(need, 4 if C.kind == "readlane" else 2)
            if C.kind in ("vmem", "vmem_lds") and ws & C.rd: need = max(need, 5)
            if ws & regs_of("exec"):
                if C.kind == "mfma": need = max(need, 4)
                if C.dpp: need = max(need, 5)
                if C.kind in ("permlane", "readlane"): need = max(need, 4)
    if P.kind == "mfma":
        big = {4: 8, 8: 12}[P.passes]
        if C.kind == "mfma":
            if P.wr & C.srcAB: need = max(need, big)
            if P.wr & C.srcC:
                if not (P.wr == C.srcC and P.op == C.op): need = max(need, {4: 6, 8: 10}[P.passes])
            elif P.wr & C.wr: need = max(need, {4: 6, 8: 10}[P.passes])
        elif C.kind in VALU_KINDS or C.kind in ("ds", "vmem", "vmem_lds"):
            if P.wr & (C.rd | C.wr): need = max(need, big)
            if C.kind in VALU_KINDS and P.srcC & C.wr: need = max(need, {4: 3, 8: 7}[P.passes])
    if P.wide_store and P.sdata & C.wr:
        need = max(need, 2 if C.kind in VALU_KINDS else 1)
    if P.kind == "salu" and ("s", 124) in P.wr and C.kind == "vmem_lds": need = max(need, 1)
    return need

class Asm:
    def __init__(self):
        self.lines = []
        self.hist = []
        self.nops_added = 0
        self.uid = 0
    def raw(self, text):
        self.lines.append(text)
    def comment(self, text):
        self.lines.append("    ; " + text)
    def label(self, name):
        self.lines.append(name + ":")
    def newlabel(self, base):
        self.uid += 1
        return f"L_{base}_{self.uid}"
    def _gap(self, i, C):
        t = 0; tm = None
        seq = self.hist[i:]
        for k, I in enumerate(seq):
            if k > 0:
                t += seq[k-1].states
                if I.kind == "mfma" and tm is not None: t = max(t, tm)
            if I.kind == "mfma": tm = t + I.passes
        plain = t + seq[-1].states
        t = plain
        if C is not None and C.kind == "mfma" and tm is not None: t = max(t, tm)
        return t - 1, t - plain
    def flush_hazards(self, n=12):
        need = 0
        for i in range(len(self.hist) - 1, max(-1, len(self.hist) - 24), -1):
            P = self.hist[i]
            have, _ = self._gap(i, None)
            if P.kind == "mfma": need = max(need, {4: 8, 8: 12}[P.passes] - have)
            elif P.kind in VALU_KINDS: need = max(need, 5 - have)
            elif P.wide_store: need = max(need, 2 - have)
            elif P.kind == "salu" and ("s", 124) in P.wr: need = max(need, 1 - have)
        if need > 0: self._nop(need)
    def _push(self, I):
        self.hist.append(I)
        if len(self.hist) > 48: self.hist = self.hist[-48:]
    def _nop(self, n):
        while n > 0:
            k = min(n, 16)
            I = parse(f"s_nop {k-1}")
            self.lines.append(f"    s_nop {k-1}")
            self._push(I)
            self.nops_added += k
            n -= k
    def __call__(self, text):
        for line in text.strip().split("\n"):
            line = line.strip()
            if not line or line.startswith(";"):
                if line: self.lines.append("    " + line)
                continue
            if line.endswith(":"):
                self.lines.append(line); continue
            C = parse(line)
            while True:
                add = 0
                for i in range(len(self.hist) - 1, max(-1, len(self.hist) - 24), -1):
                    r = required(self.hist[i], C)
                    if r:
                        have, slack = self._gap(i, C)
                        if r > have: add = max(add, r - have + slack)
                if add <= 0: break
                self._nop(add)
            self.lines.append("    " + line)
            self._push(C)
    def text(self):
        return "\n".join(self.lines) + "\n"

def kernel_header(name):
    return f".globl {name}\n.p2align 8\n.type {name},@function\n{name}:\n"

def kernel_desc(name, vgpr=512, sgpr=102, accum=256, kernarg=144):
    return f""".p2align 6
.amdhsa_kernel {name}
  .amdhsa_next_free_vgpr {vgpr}
  .amdhsa_next_free_sgpr {sgpr}
  .amdhsa_accum_offset {accum}
  .amdhsa_group_segment_fixed_size 0
  .amdhsa_kernarg_size {kernarg}
  .amdhsa_user_sgpr_count 2
  .amdhsa_user_sgpr_kernarg_segment_ptr 1
  .amdhsa_system_sgpr_workgroup_id_x 1
.end_amdhsa_kernel
"""

class Trk:
    def __init__(self, A, name, maxv):
        self.A = A; self.name = name; self.maxv = maxv
        self.n = 0
        self.done = 0
        self.tags = {}
    def issue(self, text, tag=None):
        self.A(text)
        self.n += 1
        if tag is not None: self.tags[tag] = self.n
        return self.n
    def wait(self, tag):
        idx = self.tags[tag] if not isinstance(tag, int) else tag
        if idx <= self.done: return
        k = min(self.n - idx, self.maxv)
        self.A(f"s_waitcnt {self.name}({k})")
        self.done = self.n - k
    def wait_all(self):
        if self.done < self.n:
            self.A(f"s_waitcnt {self.name}(0)")
            self.done = self.n
    def force_all(self):
        self.A(f"s_waitcnt {self.name}(0)")
        self.done = self.n
    def unknown(self):
        self.n += 1
```

```python
from asmlib import *

KA = dict(x=0, A_mem0=8, A_Wq=16, A_Wk=24, A_Wv=32, A_Wo=40, B_mem0=64, B_Wq=72, B_Wk=80, B_Wv=88, B_Wo=96,
          gate=112, out=120, dbg=128, ws=136)
X_BYTES = 2048 * 1152
W_BYTES = 576 * 8192
MEM0_BYTES = 8 * 1152
WS_BYTES = 1 << 28
MB = 1 << 20
WS_KV = 0
WS_KVM = 64 * MB
WS_O = 96 * MB
WS_PART = 128 * MB
WS_MEMI = 132 * MB
WS_GATE = 133 * MB
WS_FLAG = 134 * MB
WS_OP = 136 * MB
WS_DBG = 200 * MB

S_X = 8
S_W1 = 12
S_W2 = 16
S_W3 = 20
S_W4 = 24
S_WS = 28
S_OUT = 32
S_M0 = 36
S_GW = 40
S_DBG = 44

def srd(A, dst, lo, nbytes):
    A(f"s_mov_b32 s{dst}, s{lo}")
    A(f"s_mov_b32 s{dst+1}, s{lo+1}")
    A(f"s_mov_b32 s{dst+2}, {hex(nbytes)}")
    A(f"s_mov_b32 s{dst+3}, 0x20000")

def load_ptrs(A):
    A("s_load_dwordx16 s[60:75], s[0:1], 0")
    A("s_load_dwordx16 s[76:91], s[0:1], 64")
    A("s_load_dwordx4 s[92:95], s[0:1], 128")
    A("s_waitcnt lgkmcnt(0)")

def build_common_srds(A):
    srd(A, S_X, 60, X_BYTES)
    srd(A, S_WS, 94, WS_BYTES)
    srd(A, S_OUT, 90, X_BYTES)
    srd(A, S_GW, 88, 1152)
    A(f"s_mov_b32 s{S_DBG}, s92")
    A(f"s_mov_b32 s{S_DBG+1}, s93")

def build_branch_srds(A, s_b):
    A(f"s_cmp_eq_u32 s{s_b}, 0")
    for dst, la, lb, nb in ((S_M0, 62, 76, MEM0_BYTES), (S_W1, 64, 78, W_BYTES), (S_W2, 66, 80, W_BYTES),
                            (S_W3, 68, 82, W_BYTES), (S_W4, 70, 84, W_BYTES)):
        A(f"s_cselect_b32 s{dst}, s{la}, s{lb}")
        A(f"s_cselect_b32 s{dst+1}, s{la+1}, s{lb+1}")
        A(f"s_mov_b32 s{dst+2}, {hex(nb)}")
        A(f"s_mov_b32 s{dst+3}, 0x20000")

S_SLOTID = 3

def read_counts(A, sdst, vt):
    A(f"v_and_b32 v{vt}, 15, v0")
    A(f"v_lshlrev_b32 v{vt}, 2, v{vt}")
    A(f"global_load_dword v{vt+1}, v{vt}, {s(S_DBG,2)} sc1")
    A("s_waitcnt vmcnt(0)")
    for i in range(9): A(f"v_readlane_b32 s{sdst+i}, v{vt+1}, {i}")
    A("s_nop 3")
    A(f"s_add_u32 s{sdst+9}, s{sdst}, s{sdst+1}")
    for i in range(2, 9): A(f"s_add_u32 s{sdst+9}, s{sdst+9}, s{sdst+i}")

def assign_slot(A, L_exit):
    L_w = A.newlabel("tk_w"); L_home = A.newlabel("tk_home"); L_ov = A.newlabel("tk_ov"); L_ovp = A.newlabel("tk_ovp")
    L_done = A.newlabel("tk_done"); L_w2 = A.newlabel("tk_w2")
    A("s_getreg_b32 s46, hwreg(HW_REG_XCC_ID)")
    A("s_and_b32 s46, s46, 15")
    A("s_min_u32 s46, s46, 8")
    A("s_lshl_b32 s47, s46, 2")
    A("v_mov_b32 v1, s47")
    A("v_mov_b32 v2, 1")
    A("v_mov_b32 v4, 0")
    A("v_cmp_eq_u32 vcc, 0, v0")
    A("s_and_saveexec_b64 s[48:49], vcc")
    A(f"s_cbranch_execz {L_w}")
    A(f"global_atomic_add v3, v1, v2, {s(S_DBG,2)} sc0")
    A("s_waitcnt vmcnt(0)")
    A("ds_write_b32 v4, v3")
    A("s_waitcnt lgkmcnt(0)")
    A.label(L_w)
    A("s_mov_b64 exec, s[48:49]")
    A("s_barrier")
    A("ds_read_b32 v3, v4")
    A("s_waitcnt lgkmcnt(0)")
    A("v_readfirstlane_b32 s47, v3")
    A("s_barrier")
    A("s_cmp_ge_u32 s46, 8")
    A(f"s_cbranch_scc1 {L_ov}")
    A("s_cmp_lt_u32 s47, 32")
    A(f"s_cbranch_scc1 {L_home}")
    A.label(L_ov)
    A("v_mov_b32 v1, 36")
    A("v_cmp_eq_u32 vcc, 0, v0")
    A("s_and_saveexec_b64 s[48:49], vcc")
    A(f"s_cbranch_execz {L_w2}")
    A(f"global_atomic_add v3, v1, v2, {s(S_DBG,2)} sc0")
    A("s_waitcnt vmcnt(0)")
    A("ds_write_b32 v4, v3")
    A("s_waitcnt lgkmcnt(0)")
    A.label(L_w2)
    A("s_mov_b64 exec, s[48:49]")
    A("s_barrier")
    A("ds_read_b32 v3, v4")
    A("s_waitcnt lgkmcnt(0)")
    A("v_readfirstlane_b32 s47, v3")
    A("s_barrier")
    A("s_mov_b32 s46, 0x100000")
    A.label(L_ovp)
    A("s_sub_u32 s46, s46, 1")
    A("s_cmp_eq_u32 s46, 0")
    A(f"s_cbranch_scc1 {L_exit}")
    read_counts(A, 50, 1)
    A("s_cmp_lt_u32 s59, 256")
    A(f"s_cbranch_scc1 {L_ovp}")
    A(f"s_mov_b32 s{S_SLOTID}, 0")
    for x in range(8):
        Ln = A.newlabel("tk_n")
        A(f"s_min_u32 s48, s{50+x}, 32")
        A(f"s_sub_u32 s49, 32, s48")
        A(f"s_cmp_lt_u32 s47, s49")
        A(f"s_cbranch_scc0 {Ln}")
        A(f"s_add_u32 s{S_SLOTID}, s48, s47")
        A(f"s_add_u32 s{S_SLOTID}, s{S_SLOTID}, {32*x}")
        A(f"s_branch {L_done}")
        A.label(Ln)
        A(f"s_sub_u32 s47, s47, s49")
    A(f"s_branch {L_exit}")
    A.label(L_home)
    A(f"s_lshl_b32 s{S_SLOTID}, s46, 5")
    A(f"s_add_u32 s{S_SLOTID}, s{S_SLOTID}, s47")
    A.label(L_done)
    A.flush_hazards()

WS_KVP = WS_FLAG
WS_MP = WS_FLAG + 0x1000
WS_OC = WS_FLAG + 0x8000
WS_CNT = WS_FLAG + 0x10000
DBG_INIT = 80

def wait_init(A, L_exit, s_bud, vt, st):
    Lp = A.newlabel("wi")
    A(f"v_mov_b32 v{vt}, {DBG_INIT}")
    A.label(Lp)
    A(f"s_sub_u32 s{s_bud}, s{s_bud}, 1")
    A(f"s_cmp_eq_u32 s{s_bud}, 0")
    A(f"s_cbranch_scc1 {L_exit}")
    A(f"global_load_dword v{vt+1}, v{vt}, {s(S_DBG,2)} sc1")
    A("s_waitcnt vmcnt(0)")
    A(f"v_readfirstlane_b32 s{st}, v{vt+1}")
    A("s_nop 3")
    A(f"s_cmp_lt_u32 s{st}, 192")
    A(f"s_cbranch_scc1 {Lp}")
```

```python
from common import *

S_KQ = 46; S_NJ = 47; S_SEG = 48; S_B = 49; S_WV = 51
S_T0 = 52; S_T1 = 53; S_T2 = 54; S_T3 = 55
S_OA = 56; S_PB = 57; S_CT = 58; S_WB = 59; S_BUD = 99

V_L16 = 1; V_GO = 2; V_TR = 3; V_RW = 4; V_RR = 5; V_OUT = 6; V_T = 8
V_F = 16
V_ACC = 80
WO = 128

def op_setup(A):
    A("v_lshrrev_b32 v1, 6, v0")
    A(f"v_readfirstlane_b32 s{S_WV}, v1")
    A("v_and_b32 v0, 63, v0")

def op_consts_and_weights(A):
    T = V_T
    A(f"v_lshlrev_b32 v{V_L16}, 4, v0")
    A(f"v_lshrrev_b32 v{T}, 2, v0"); A(f"v_mul_u32_u24 v{V_GO}, 1152, v{T}")
    A(f"v_and_b32 v{T+1}, 3, v0"); A(f"v_lshl_add_u32 v{V_GO}, v{T+1}, 4, v{V_GO}")
    A(f"v_lshrrev_b32 v{T}, 5, v0"); A(f"v_lshlrev_b32 v{V_TR}, 8, v{T}")
    A(f"v_bfe_u32 v{T+2}, v0, 2, 2"); A(f"v_lshl_add_u32 v{V_TR}, v{T+2}, 6, v{V_TR}")
    A(f"v_bfe_u32 v{T+2}, v0, 4, 1"); A(f"v_lshl_add_u32 v{V_TR}, v{T+2}, 5, v{V_TR}")
    A(f"v_lshl_add_u32 v{V_TR}, v{T+1}, 3, v{V_TR}")
    A(f"s_mul_i32 s{S_T1}, s{S_WV}, 36864")
    A(f"v_add_u32 v{V_TR}, s{S_T1}, v{V_TR}")
    A(f"s_mul_i32 s{S_T0}, s{S_WV}, 12288"); A(f"v_add_u32 v{V_RW}, s{S_T0}, v{V_L16}")
    A(f"s_mul_i32 s{S_T0}, s{S_WV}, 3072"); A(f"v_add_u32 v{V_RR}, s{S_T0}, v{V_L16}")
    A(f"v_and_b32 v{T+2}, 31, v0"); A(f"v_mul_u32_u24 v{V_OUT}, 1152, v{T+2}"); A(f"v_lshl_add_u32 v{V_OUT}, v{T}, 3, v{V_OUT}")
    A(f"s_and_b32 s{S_T0}, s{S_KQ}, 1"); A(f"s_lshl_b32 s{S_T0}, s{S_T0}, 2"); A(f"s_add_u32 s{S_T0}, s{S_T0}, s{S_WV}")
    A(f"s_mul_i32 s{S_WB}, s{S_T0}, {4*147456}")
    A(f"s_mul_i32 s{S_T0}, s{S_NJ}, 192"); A(f"s_add_u32 s{S_WB}, s{S_WB}, s{S_T0}")
    pieces = [(f, nt) for f in range(32) for nt in range(3)]
    def dma(i):
        f, nt = pieces[i]
        A(f"s_add_u32 m0, s{S_T1}, {(i%36)*1024}")
        A(f"s_add_u32 s{S_T2}, s{S_WB}, {16*f*1152 + nt*64}")
        A(f"buffer_load_dwordx4 v{V_GO}, {s(S_W4,4)}, s{S_T2} offen lds")
    for i in range(36): dma(i)
    G = 4
    for i0 in range(0, 96, G):
        out = min(36, 96 - i0)
        A(f"s_waitcnt vmcnt({out - G})")
        for i in range(i0, i0 + G):
            A(f"ds_read_b64_tr_b16 {R(WO+4*i,2)}, v{V_TR} offset:{(i%36)*1024}")
            A(f"ds_read_b64_tr_b16 {R(WO+4*i+2,2)}, v{V_TR} offset:{(i%36)*1024+512}")
        A("s_waitcnt lgkmcnt(0)")
        for i in range(i0 + 36, min(i0 + 36 + G, 96)): dma(i)
    A("s_barrier")

def op_loop(A, L_exit, stride, ready=None):
    WS = s(S_WS, 4); MF = "v_mfma_f32_32x32x16_bf16"
    L_loop = A.newlabel("p_loop"); L_next = A.newlabel("p_next"); L_w = A.newlabel("p_w")
    A.label(L_loop)
    if ready is not None: ready(A)
    A(f"s_lshl_b32 s{S_OA}, s{S_SEG}, 4"); A(f"s_lshl_b32 s{S_T0}, s{S_KQ}, 2"); A(f"s_add_u32 s{S_OA}, s{S_OA}, s{S_T0}")
    A(f"s_add_u32 s{S_OA}, s{S_OA}, s{S_WV}"); A(f"s_lshl_b32 s{S_OA}, s{S_OA}, 15"); A(f"s_add_u32 s{S_OA}, s{S_OA}, {WS_O}")
    def ld(f):
        if f % 4 == 0 and f: A(f"s_add_u32 s{S_OA}, s{S_OA}, 4096")
        A(f"buffer_load_dwordx4 {v(V_F+4*(f%16),4)}, v{V_L16}, {WS}, s{S_OA} offen offset:{(f&3)*1024} sc1")
    for f in range(16): ld(f)
    A(f"s_mul_i32 s{S_CT}, s{S_SEG}, 6"); A(f"s_add_u32 s{S_CT}, s{S_CT}, s{S_NJ}")
    A(f"s_mul_i32 s{S_PB}, s{S_CT}, {4*12288}"); A(f"s_add_u32 s{S_PB}, s{S_PB}, {WS_OP}")
    for f in range(32):
        A(f"s_waitcnt vmcnt({min(15, 31-f) if f == 0 or f > 16 else 14})")
        for nt in range(3):
            acc = v(V_ACC + 16 * nt, 16)
            A(f"{MF} {acc}, {R(WO+4*(3*f+nt),4)}, {v(V_F+4*(f%16),4)}, {'0' if f == 0 else acc}")
            if nt == 0 and 1 <= f <= 16: ld(f + 15)
    for j in range(12): A(f"ds_write_b128 v{V_RW}, {v(V_ACC+4*j,4)} offset:{j*1024}")
    A("s_waitcnt lgkmcnt(0)")
    A("s_barrier")
    for src in range(4):
        for i in range(3): A(f"ds_read_b128 {v(V_F+12*src+4*i,4)}, v{V_RR} offset:{src*12288 + i*1024}")
    A("s_waitcnt lgkmcnt(6)")
    for r in range(12): A(f"v_add_f32 v{V_F+r}, v{V_F+r}, v{V_F+12+r}")
    A("s_waitcnt lgkmcnt(0)")
    for r in range(12): A(f"v_add_f32 v{V_F+24+r}, v{V_F+24+r}, v{V_F+36+r}")
    for r in range(12): A(f"v_add_f32 v{V_F+r}, v{V_F+r}, v{V_F+24+r}")
    A(f"s_mul_i32 s{S_T0}, s{S_KQ}, 12288"); A(f"s_add_u32 s{S_T0}, s{S_T0}, s{S_PB}")
    for i in range(3): A(f"buffer_store_dwordx4 {v(V_F+4*i,4)}, v{V_RR}, {WS}, s{S_T0} offen offset:{i*1024} sc1")
    A("s_waitcnt vmcnt(0)")
    A("s_barrier")
    A(f"s_lshl_b32 s{S_T0}, s{S_CT}, 6"); A(f"s_add_u32 s{S_T0}, s{S_T0}, {WS_CNT}")
    A(f"v_mov_b32 v{V_T}, 1"); A(f"v_mov_b32 v{V_T+1}, 0xc000")
    A(f"s_cmp_lg_u32 s{S_WV}, 0")
    A(f"s_cbranch_scc1 {L_w}")
    A("s_mov_b64 exec, 1")
    A(f"buffer_atomic_add v{V_T}, off, {WS}, s{S_T0} sc0")
    A("s_waitcnt vmcnt(0)")
    A(f"ds_write_b32 v{V_T+1}, v{V_T}")
    A("s_waitcnt lgkmcnt(0)")
    A("s_mov_b64 exec, -1")
    A.label(L_w)
    A("s_barrier")
    A(f"ds_read_b32 v{V_T}, v{V_T+1}")
    A("s_waitcnt lgkmcnt(0)")
    A(f"v_readfirstlane_b32 s{S_T0}, v{V_T}")
    A("s_nop 3")
    A(f"s_cmp_lg_u32 s{S_T0}, 3")
    A(f"s_cbranch_scc1 {L_next}")
    A(f"s_mov_b32 s{S_T0}, s{S_PB}")
    for src in range(4):
        for i in range(3): A(f"buffer_load_dwordx4 {v(V_F+12*src+4*i,4)}, v{V_RR}, {WS}, s{S_T0} offen offset:{i*1024} sc1")
        A(f"s_add_u32 s{S_T0}, s{S_T0}, 12288")
    A(f"s_mul_i32 s{S_T0}, s{S_SEG}, 36864"); A(f"s_mul_i32 s{S_T1}, s{S_NJ}, 192"); A(f"s_add_u32 s{S_T0}, s{S_T0}, s{S_T1}")
    A(f"s_mul_i32 s{S_T1}, s{S_WV}, 48"); A(f"s_add_u32 s{S_T0}, s{S_T0}, s{S_T1}")
    A("s_waitcnt vmcnt(0)")
    for r in range(12): A(f"v_add_f32 v{V_F+r}, v{V_F+r}, v{V_F+12+r}")
    for r in range(12): A(f"v_add_f32 v{V_F+24+r}, v{V_F+24+r}, v{V_F+36+r}")
    for r in range(12): A(f"v_add_f32 v{V_F+r}, v{V_F+r}, v{V_F+24+r}")
    for j in range(6): A(f"v_cvt_pk_bf16_f32 v{V_F+12+j}, v{V_F+2*j}, v{V_F+2*j+1}")
    for i in range(3): A(f"buffer_store_dwordx2 {v(V_F+12+2*i,2)}, v{V_OUT}, {s(S_OUT,4)}, s{S_T0} offen offset:{i*16}")
    A.label(L_next)
    A(f"s_add_u32 s{S_SEG}, s{S_SEG}, {stride}")
    A(f"s_cmp_lt_u32 s{S_SEG}, 64")
    A.flush_hazards()
    A(f"s_cbranch_scc1 {L_loop}")
    A("s_waitcnt vmcnt(0)")

S_NX = 60; S_PEND = 61; S_RDY = 62; S_OC = 63
OOR = 0x20000000

def op_loop2(A, L_exit, stride):
    WS = s(S_WS, 4); MF = "v_mfma_f32_32x32x16_bf16"
    L_loop = A.newlabel("p_loop"); L_have = A.newlabel("p_have"); Lp = A.newlabel("p_rp"); Lok = A.newlabel("p_rok")
    V_ONE = V_T + 2; V_PL = V_T + 3
    def seg_addr(dst, seg):
        A(f"s_lshl_b32 s{dst}, s{seg}, 4"); A(f"s_lshl_b32 s{S_T0}, s{S_KQ}, 2"); A(f"s_add_u32 s{dst}, s{dst}, s{S_T0}")
        A(f"s_add_u32 s{dst}, s{dst}, s{S_WV}"); A(f"s_lshl_b32 s{dst}, s{dst}, 15"); A(f"s_add_u32 s{dst}, s{dst}, {WS_O}")
    def signal():
        A("s_mov_b64 exec, 1")
        A(f"buffer_atomic_add v{V_ONE}, off, {WS}, s{S_PEND}")
        A("s_mov_b64 exec, -1")
        A(f"s_mov_b32 s{S_PEND}, {hex(OOR)}")
    def ld(f, sr):
        if f % 4 == 0 and f: A(f"s_add_u32 s{sr}, s{sr}, 4096")
        A(f"buffer_load_dwordx4 {v(V_F+4*(f%16),4)}, v{V_L16}, {WS}, s{sr} offen offset:{(f&3)*1024} sc1")
    A(f"v_mov_b32 v{V_ONE}, 1")
    A(f"s_mov_b32 s{S_PEND}, {hex(OOR)}")
    A(f"s_mov_b32 s{S_RDY}, 0")
    A(f"s_lshl_b32 s{S_OC}, s{S_SEG}, 2"); A(f"s_add_u32 s{S_OC}, s{S_OC}, s{S_KQ}")
    A(f"s_lshl_b32 s{S_OC}, s{S_OC}, 6"); A(f"s_add_u32 s{S_OC}, s{S_OC}, {WS_OC}")
    A.label(L_loop)
    A(f"s_cmp_lg_u32 s{S_RDY}, 0")
    A(f"s_cbranch_scc1 {L_have}")
    A("s_waitcnt vmcnt(0)")
    signal()
    A.label(Lp)
    A(f"buffer_load_dword v{V_PL}, off, {WS}, s{S_OC} sc1")
    A("s_waitcnt vmcnt(0)")
    A(f"v_readfirstlane_b32 s{S_T1}, v{V_PL}")
    A("s_nop 3")
    A(f"s_cmp_ge_u32 s{S_T1}, 16")
    A(f"s_cbranch_scc1 {Lok}")
    A("s_sleep 2")
    A(f"s_sub_u32 s{S_BUD}, s{S_BUD}, 1")
    A(f"s_cmp_lg_u32 s{S_BUD}, 0")
    A(f"s_cbranch_scc1 {Lp}")
    A(f"s_branch {L_exit}")
    A.label(Lok)
    seg_addr(S_NX, S_SEG)
    for f in range(16): ld(f, S_NX)
    A.label(L_have)
    A(f"s_mov_b32 s{S_OA}, s{S_NX}")
    A(f"s_add_u32 s{S_OC}, s{S_OC}, {stride*256}")
    A(f"s_mul_i32 s{S_CT}, s{S_SEG}, 6"); A(f"s_add_u32 s{S_CT}, s{S_CT}, s{S_NJ}")
    A(f"s_mul_i32 s{S_PB}, s{S_CT}, {4*12288}"); A(f"s_add_u32 s{S_PB}, s{S_PB}, {WS_OP}")
    A(f"s_mul_i32 s{S_T0}, s{S_KQ}, 12288"); A(f"s_add_u32 s{S_PB}, s{S_PB}, s{S_T0}")
    A(f"s_add_u32 s{S_SEG}, s{S_SEG}, {stride}")
    for f in range(32):
        if f == 0: n = 15
        elif f <= 15: n = 15
        elif f == 16: n = 14
        elif f == 17: n = 14
        else: n = (31 - f) + (f - 17)
        A(f"s_waitcnt vmcnt({n})")
        for nt in range(3):
            acc = v(V_ACC + 16 * nt, 16)
            A(f"{MF} {acc}, {R(WO+4*(3*f+nt),4)}, {v(V_F+4*(f%16),4)}, {'0' if f == 0 else acc}")
            if f == 0 and nt == 0: A(f"buffer_load_dword v{V_PL}, off, {WS}, s{S_OC} sc1")
            if nt == 0 and 1 <= f <= 16: ld(f + 15, S_OA)
            if f == 16 and nt == 1:
                A(f"v_readfirstlane_b32 s{S_T1}, v{V_PL}")
                seg_addr(S_NX, S_SEG)
                A(f"s_cmp_ge_u32 s{S_T1}, 16"); A(f"s_cselect_b32 s{S_RDY}, 1, 0")
                A(f"s_cmp_lt_u32 s{S_SEG}, 64"); A(f"s_cselect_b32 s{S_RDY}, s{S_RDY}, 0")
                A(f"s_cmp_lg_u32 s{S_RDY}, 0"); A(f"s_cselect_b32 s{S_NX}, s{S_NX}, {hex(OOR)}")
            if f == 17 and nt == 0: signal()
            if nt == 1 and f >= 17: ld(f - 17, S_NX)
    ld(15, S_NX)
    for j in range(12): A(f"ds_write_b128 v{V_RW}, {v(V_ACC+4*j,4)} offset:{j*1024}")
    A("s_waitcnt lgkmcnt(0)")
    A("s_barrier")
    for src in range(4):
        for i in range(3): A(f"ds_read_b128 {v(V_ACC+12*src+4*i,4)}, v{V_RR} offset:{src*12288 + i*1024}")
    A("s_waitcnt lgkmcnt(6)")
    for r in range(0, 12, 2): A(f"v_pk_add_f32 {v(V_ACC+r,2)}, {v(V_ACC+r,2)}, {v(V_ACC+12+r,2)}")
    A("s_waitcnt lgkmcnt(0)")
    A("s_barrier")
    for r in range(0, 12, 2): A(f"v_pk_add_f32 {v(V_ACC+24+r,2)}, {v(V_ACC+24+r,2)}, {v(V_ACC+36+r,2)}")
    for r in range(0, 12, 2): A(f"v_pk_add_f32 {v(V_ACC+r,2)}, {v(V_ACC+r,2)}, {v(V_ACC+24+r,2)}")
    for i in range(3): A(f"buffer_store_dwordx4 {v(V_ACC+4*i,4)}, v{V_RR}, {WS}, s{S_PB} offen offset:{i*1024} sc1")
    A(f"s_lshl_b32 s{S_PEND}, s{S_CT}, 6"); A(f"s_lshl_b32 s{S_T0}, s{S_WV}, 4"); A(f"s_add_u32 s{S_PEND}, s{S_PEND}, s{S_T0}")
    A(f"s_add_u32 s{S_PEND}, s{S_PEND}, {WS_CNT}")
    A(f"s_cmp_lt_u32 s{S_SEG}, 64")
    A.flush_hazards()
    A(f"s_cbranch_scc1 {L_loop}")
    A("s_waitcnt vmcnt(0)")
    signal()
    A("s_waitcnt vmcnt(0)")

def op_final(A, L_exit, stride):
    WS = s(S_WS, 4); T = V_T
    A(f"v_lshlrev_b32 v{V_L16}, 4, v0")
    A(f"s_mul_i32 s{S_T0}, s{S_WV}, 3072"); A(f"v_add_u32 v{V_RR}, s{S_T0}, v{V_L16}")
    A(f"v_lshrrev_b32 v{T}, 5, v0")
    A(f"v_and_b32 v{T+2}, 31, v0"); A(f"v_mul_u32_u24 v{V_OUT}, 1152, v{T+2}"); A(f"v_lshl_add_u32 v{V_OUT}, v{T}, 3, v{V_OUT}")
    L_loop = A.newlabel("f_loop"); Lp = A.newlabel("f_p"); Lok = A.newlabel("f_ok")
    A.label(L_loop)
    A(f"s_mul_i32 s{S_CT}, s{S_SEG}, 6"); A(f"s_add_u32 s{S_CT}, s{S_CT}, s{S_NJ}")
    A(f"s_lshl_b32 s{S_OC}, s{S_CT}, 6"); A(f"s_lshl_b32 s{S_T0}, s{S_WV}, 4"); A(f"s_add_u32 s{S_OC}, s{S_OC}, s{S_T0}")
    A(f"s_add_u32 s{S_OC}, s{S_OC}, {WS_CNT}")
    A(f"s_mul_i32 s{S_PB}, s{S_CT}, {4*12288}"); A(f"s_add_u32 s{S_PB}, s{S_PB}, {WS_OP}")
    A.label(Lp)
    A(f"buffer_load_dword v{T}, off, {WS}, s{S_OC} sc1")
    A("s_waitcnt vmcnt(0)")
    A(f"v_readfirstlane_b32 s{S_T1}, v{T}")
    A("s_nop 3")
    A(f"s_cmp_ge_u32 s{S_T1}, 4")
    A(f"s_cbranch_scc1 {Lok}")
    A("s_sleep 2")
    A(f"s_sub_u32 s{S_BUD}, s{S_BUD}, 1")
    A(f"s_cmp_lg_u32 s{S_BUD}, 0")
    A(f"s_cbranch_scc1 {Lp}")
    A(f"s_branch {L_exit}")
    A.label(Lok)
    for src in range(4):
        for i in range(3): A(f"buffer_load_dwordx4 {v(V_F+12*src+4*i,4)}, v{V_RR}, {WS}, s{S_PB} offen offset:{i*1024} sc1")
        A(f"s_add_u32 s{S_PB}, s{S_PB}, 12288")
    A(f"s_mul_i32 s{S_T0}, s{S_SEG}, 36864"); A(f"s_mul_i32 s{S_T1}, s{S_NJ}, 192"); A(f"s_add_u32 s{S_T0}, s{S_T0}, s{S_T1}")
    A(f"s_mul_i32 s{S_T1}, s{S_WV}, 48"); A(f"s_add_u32 s{S_T0}, s{S_T0}, s{S_T1}")
    A("s_waitcnt vmcnt(0)")
    for r in range(12): A(f"v_add_f32 v{V_F+r}, v{V_F+r}, v{V_F+12+r}")
    for r in range(12): A(f"v_add_f32 v{V_F+24+r}, v{V_F+24+r}, v{V_F+36+r}")
    for r in range(12): A(f"v_add_f32 v{V_F+r}, v{V_F+r}, v{V_F+24+r}")
    for j in range(6): A(f"v_cvt_pk_bf16_f32 v{V_F+12+j}, v{V_F+2*j}, v{V_F+2*j+1}")
    for i in range(3): A(f"buffer_store_dwordx2 {v(V_F+12+2*i,2)}, v{V_OUT}, {s(S_OUT,4)}, s{S_T0} offen offset:{i*16}")
    A(f"s_add_u32 s{S_SEG}, s{S_SEG}, {stride}")
    A(f"s_cmp_lt_u32 s{S_SEG}, 64")
    A.flush_hazards()
    A(f"s_cbranch_scc1 {L_loop}")
    A("s_waitcnt vmcnt(0)")
```

```python
from common import *

S_WI = 46; S_BH = 47; S_C = 48; S_B = 49; S_H = 50; S_WV = 51
S_T0 = 52; S_T1 = 53; S_T2 = 54; S_T3 = 55; S_SLOT = 56; S_SEG = 57; S_N = 58; S_LSLOT = 59
S_XOFF = 96; S_KVOFF = 97; S_CNT = 98

XT = 36864

def load_w32(A, srd_list, dst_list, v_goff, v_tr, lane_tmp=None):
    nm = len(srd_list)
    def dma(m, u):
        A(f"s_add_u32 m0, s{S_T1}, {u*1024}")
        A(f"s_add_u32 s{S_T2}, s{S_T0}, {u*131072}")
        A(f"buffer_load_dwordx4 {v(v_goff)}, {s(srd_list[m],4)}, s{S_T2} offen lds")
    for u in range(36): dma(0, u)
    G = 4
    for m in range(nm):
        for u0 in range(0, 36, G):
            out = 36 if m < nm - 1 else 36 - u0
            A(f"s_waitcnt vmcnt({out - G})")
            for u in range(u0, u0 + G):
                d = dst_list[m] + 4 * u
                A(f"ds_read_b64_tr_b16 {R(d,2)}, {v(v_tr)} offset:{u*1024}")
                A(f"ds_read_b64_tr_b16 {R(d+2,2)}, {v(v_tr)} offset:{u*1024+256}")
            if m < nm - 1:
                A("s_waitcnt lgkmcnt(0)")
                for u in range(u0, u0 + G): dma(m + 1, u)
    A("s_waitcnt lgkmcnt(0)")

def worker_setup(A):
    A(f"s_lshr_b32 s{S_BH}, s{S_WI}, 1")
    A(f"s_and_b32 s{S_C}, s{S_WI}, 1")
    A(f"s_sub_u32 s{S_T0}, s{S_WI}, 128")
    A(f"s_cmp_ge_u32 s{S_WI}, 128")
    A(f"s_cselect_b32 s{S_BH}, s{S_T0}, s{S_BH}")
    A(f"s_cselect_b32 s{S_C}, 2, s{S_C}")
    A(f"s_lshr_b32 s{S_B}, s{S_BH}, 5")
    A(f"s_and_b32 s{S_H}, s{S_BH}, 31")
    A("v_lshrrev_b32 v1, 6, v0")
    A(f"v_readfirstlane_b32 s{S_WV}, v1")
    A("v_and_b32 v0, 63, v0")
    build_branch_srds(A, S_B)

V_GOFF = 1; V_TR = 2; V_XG = 3; V_XB = 4
V_XA = 8
V_L16 = 12
V_T = 13
V_XF = 16
V_PK = 32
V_ACC = 48
WK = 112
WVV = 256

def worker_consts(A):
    A(f"v_lshrrev_b32 v{V_T}, 2, v0")
    A(f"v_lshlrev_b32 v{V_GOFF}, 13, v{V_T}")
    A(f"v_and_b32 v{V_T+1}, 3, v0")
    A(f"v_lshl_add_u32 v{V_GOFF}, v{V_T+1}, 4, v{V_GOFF}")
    A(f"v_lshrrev_b32 v{V_T}, 5, v0")
    A(f"v_lshlrev_b32 v{V_TR}, 9, v{V_T}")
    A(f"v_bfe_u32 v{V_T}, v0, 2, 2")
    A(f"v_lshl_add_u32 v{V_TR}, v{V_T}, 6, v{V_TR}")
    A(f"v_bfe_u32 v{V_T}, v0, 4, 1")
    A(f"v_lshl_add_u32 v{V_TR}, v{V_T}, 5, v{V_TR}")
    A(f"v_lshl_add_u32 v{V_TR}, v{V_T+1}, 3, v{V_TR}")
    A(f"s_mul_i32 s{S_T1}, s{S_WV}, {XT}")
    A(f"v_add_u32 v{V_TR}, s{S_T1}, v{V_TR}")
    A(f"v_lshlrev_b32 v{V_L16}, 4, v0")
    A(f"v_lshrrev_b32 v{V_T}, 3, v0")
    A(f"s_lshl_b32 s{S_T2}, s{S_WV}, 3")
    A(f"v_add_u32 v{V_T}, s{S_T2}, v{V_T}")
    A(f"v_bfe_u32 v{V_T+1}, v{V_T}, 1, 3")
    A(f"v_and_b32 v{V_T+2}, 7, v0")
    A(f"v_xor_b32 v{V_T+1}, v{V_T+1}, v{V_T+2}")
    A(f"v_mul_u32_u24 v{V_XG}, 1152, v{V_T}")
    A(f"v_lshl_add_u32 v{V_XG}, v{V_T+1}, 4, v{V_XG}")
    A(f"v_and_b32 v{V_T}, 31, v0")
    A(f"v_bfe_u32 v{V_T+1}, v0, 1, 3")
    A(f"v_lshrrev_b32 v{V_T+2}, 5, v0")
    A(f"v_xor_b32 v{V_T+1}, v{V_T+1}, v{V_T+2}")
    for q in range(4):
        A(f"v_xor_b32 v{V_T+2}, {2*q}, v{V_T+1}")
        A(f"v_lshlrev_b32 v{V_T+2}, 4, v{V_T+2}")
        A(f"v_lshl_add_u32 v{V_XB+q}, v{V_T}, 7, v{V_T+2}")

def x_dma(A, cb):
    A(f"s_add_u32 m0, s{S_LSLOT}, {cb*4096}")
    A(f"s_add_u32 s{S_T2}, s{S_XOFF}, {cb*128}")
    A(f"buffer_load_dwordx4 {v(V_XG)}, {s(S_X,4)}, s{S_T2} offen lds")

def phase_a(A, publish=None, before_loop=None):
    A.comment("phase A: load Wk, Wv slices")
    A(f"s_lshl_b32 s{S_T0}, s{S_H}, 8")
    A(f"s_lshl_b32 s{S_T2}, s{S_WV}, 6")
    A(f"s_add_u32 s{S_T0}, s{S_T0}, s{S_T2}")
    A(f"s_mul_i32 s{S_T1}, s{S_WV}, {XT}")
    load_w32(A, [S_W2, S_W3], [WK, WVV], V_GOFF, V_TR)
    if before_loop is not None: before_loop(A)
    A("s_barrier")
    A(f"s_mul_i32 s{S_XOFF}, s{S_C}, {XT}")
    A(f"s_lshl_b32 s{S_LSLOT}, s{S_WV}, 10")
    for t in range(3):
        for cb in range(9): x_dma(A, cb)
        A(f"s_add_u32 s{S_XOFF}, s{S_XOFF}, {3*XT}")
        A(f"s_add_u32 s{S_LSLOT}, s{S_LSLOT}, {XT}")
    A(f"s_mov_b32 s{S_SLOT}, 0")
    A(f"s_mov_b32 s{S_SEG}, s{S_C}")
    A(f"s_mov_b32 s{S_CNT}, -1")
    A(f"s_lshl_b32 s{S_KVOFF}, s{S_BH}, 6")
    A(f"s_add_u32 s{S_KVOFF}, s{S_KVOFF}, s{S_C}")
    A(f"s_lshl_b32 s{S_KVOFF}, s{S_KVOFF}, 14")
    A(f"s_lshl_b32 s{S_T2}, s{S_WV}, 11")
    A(f"s_add_u32 s{S_KVOFF}, s{S_KVOFF}, s{S_T2}")

    def epilogue_ops(accset):
        ops = []
        base = V_ACC + 32 * accset
        for m in range(2):
            for hf in range(2):
                pk = V_PK + (m * 2 + hf) * 4
                for i in range(4):
                    r = base + 16 * m + 8 * hf + 2 * i
                    ops.append(f"v_cvt_pk_bf16_f32 v{pk+i}, v{r}, v{r+1}")
                ops.append(f"buffer_store_dwordx4 {v(pk,4)}, {v(V_L16)}, {s(S_WS,4)}, s{S_T3} offen offset:{hf*1024} sc1" if m == 0 else
                           f"buffer_store_dwordx4 {v(pk,4)}, {v(V_L16)}, {s(S_WS,4)}, s{S_N} offen offset:{hf*1024} sc1")
        return ops

    def body(accset, first):
        A(f"s_waitcnt vmcnt({18 if first else 13})")
        A("s_barrier")
        if publish is not None and not first:
            publish(A)
        for q in range(4):
            A(f"v_add_u32 v{V_XA+q}, s{S_SLOT}, v{V_XB+q}")
        A(f"s_mov_b32 s{S_T3}, s{S_KVOFF}")
        A(f"s_add_u32 s{S_N}, s{S_KVOFF}, 8192")
        def rd(u):
            A(f"ds_read_b128 {v(V_XF+4*(u%4),4)}, {v(V_XA+(u&3))} offset:{(u>>2)*4096}")
        for u in range(3): rd(u)
        fill = []
        for cb in range(9): fill.append(("dma", cb))
        if not first:
            for o in epilogue_ops(1 - accset): fill.append(("op", o))
        accK = V_ACC + 32 * accset; accV = accK + 16
        for u in range(36):
            if u + 3 < 36: rd(u + 3)
            A(f"s_waitcnt lgkmcnt({min(3, 35-u)})")
            xf = v(V_XF + 4 * (u % 4), 4)
            cK = "0" if u == 0 else v(accK, 16)
            cV = "0" if u == 0 else v(accV, 16)
            A(f"v_mfma_f32_32x32x16_bf16 {v(accK,16)}, {R(WK+4*u,4)}, {xf}, {cK}")
            if u >= 2 and fill:
                k, o = fill.pop(0)
                x_dma(A, o) if k == "dma" else A(o)
            A(f"v_mfma_f32_32x32x16_bf16 {v(accV,16)}, {xf}, {R(WVV+4*u,4)}, {cV}")
            if u >= 11 and fill:
                k, o = fill.pop(0)
                x_dma(A, o) if k == "dma" else A(o)
        assert not fill
        A(f"s_add_u32 s{S_XOFF}, s{S_XOFF}, {3*XT}")
        A(f"s_add_u32 s{S_LSLOT}, s{S_LSLOT}, {XT}")
        A(f"s_cmp_ge_u32 s{S_LSLOT}, {4*XT}")
        A(f"s_cselect_b32 s{S_T2}, {4*XT}, 0")
        A(f"s_sub_u32 s{S_LSLOT}, s{S_LSLOT}, s{S_T2}")
        A(f"s_add_u32 s{S_SLOT}, s{S_SLOT}, {XT}")
        A(f"s_cmp_ge_u32 s{S_SLOT}, {4*XT}")
        A(f"s_cselect_b32 s{S_SLOT}, 0, s{S_SLOT}")
        if not first:
            A(f"s_add_u32 s{S_KVOFF}, s{S_KVOFF}, {3*16384}")
        A(f"s_add_u32 s{S_SEG}, s{S_SEG}, 3")

    L_loop = A.newlabel("a_loop"); L_end0 = A.newlabel("a_end0"); L_end1 = A.newlabel("a_end1"); L_done = A.newlabel("a_done")
    body(0, True)
    A.label(L_loop)
    body(1, False)
    A(f"s_cmp_ge_u32 s{S_SEG}, 64")
    A(f"s_cbranch_scc1 {L_end1}")
    body(0, False)
    A(f"s_cmp_lt_u32 s{S_SEG}, 64")
    A(f"s_cbranch_scc1 {L_loop}")
    for lab, st in ((L_end0, 0), (L_end1, 1)):
        A.label(lab)
        A.flush_hazards()
        A(f"s_mov_b32 s{S_T3}, s{S_KVOFF}")
        A(f"s_add_u32 s{S_N}, s{S_KVOFF}, 8192")
        A("s_nop 15")
        for o in epilogue_ops(st): A(o)
        if st == 0: A(f"s_branch {L_done}")
    A.label(L_done)
    A("s_waitcnt vmcnt(0)")
    A("s_barrier")
```

```python
from common import *
import phase_a as PA
from phase_a import S_WI, S_BH, S_C, S_B, S_H, S_WV, S_T0, S_T1, S_T2, S_T3, S_SLOT, S_SEG, S_N, S_LSLOT, S_XOFF, S_KVOFF, S_CNT, XT
from phase_a import V_GOFF, V_TR, V_XG, V_XB, V_XA, V_L16, V_T, V_XF

S_BUD = 99
S_MASK = 60
S_SC = 100; S_NEG = 101
S_BATCH = 92; S_O = 93; S_KM = 94; S_G = 95
L_Q = 3 * XT

WQ = 256
V_QA = 32
V_PKQ = 48
V_QF = 56
V_KF = 88
V_VF = 120
V_MF = 152
V_VM = 184
V_SX = 192
V_SM = 208
V_O = 224
V_KMA = 4 + 0
V_AK = 13; V_AV = 14; V_GT = 15

def gate_part(A):
    Ls = A.newlabel("g_skip")
    A(f"s_cmp_lg_u32 s{S_C}, 0")
    A(f"s_cbranch_scc1 {Ls}")
    X = 32; G = 72; T = 112
    A(f"v_lshrrev_b32 v{T}, 3, v0")
    A(f"v_mul_u32_u24 v{T}, 1152, v{T}")
    A(f"v_and_b32 v{T+1}, 7, v0")
    A(f"v_lshlrev_b32 v{T+1}, 4, v{T+1}")
    A(f"v_add_u32 v{T}, v{T}, v{T+1}")
    A(f"s_lshl_b32 s{S_T0}, s{S_BH}, 2"); A(f"s_add_u32 s{S_T0}, s{S_T0}, s{S_WV}")
    A(f"s_mul_i32 s{S_T1}, s{S_T0}, {8*1152}")
    for i in range(9):
        A(f"buffer_load_dwordx4 {v(X+4*i,4)}, v{T}, {s(S_X,4)}, s{S_T1} offen offset:{128*i}")
        A(f"buffer_load_dwordx4 {v(G+4*i,4)}, v{T+1}, {s(S_GW,4)}, 0 offen offset:{128*i}")
    A(f"v_mov_b32 v{T+2}, 0"); A(f"v_mov_b32 v{T+3}, 0")
    A("s_waitcnt vmcnt(0)")
    for i in range(36):
        A(f"v_lshlrev_b32 v{T+4}, 16, v{X+i}"); A(f"v_lshlrev_b32 v{T+5}, 16, v{G+i}")
        A(f"v_fmac_f32 v{T+2}, v{T+4}, v{T+5}")
        A(f"v_and_b32 v{T+4}, 0xffff0000, v{X+i}"); A(f"v_and_b32 v{T+5}, 0xffff0000, v{G+i}")
        A(f"v_fmac_f32 v{T+3}, v{T+4}, v{T+5}")
    A(f"v_add_f32 v{T+2}, v{T+2}, v{T+3}")
    for pat in ("quad_perm:[1,0,3,2]", "quad_perm:[2,3,0,1]", "row_half_mirror"):
        A(f"v_add_f32_dpp v{T+3}, v{T+2}, v{T+2} {pat} row_mask:0xf bank_mask:0xf")
        A(f"v_mov_b32 v{T+2}, v{T+3}")
    A(f"v_mul_f32 v{T+2}, 0xbfb8aa3b, v{T+2}")
    A(f"v_exp_f32 v{T+2}, v{T+2}")
    A(f"v_add_f32 v{T+2}, 1.0, v{T+2}")
    A(f"v_rcp_f32 v{T+2}, v{T+2}")
    A(f"v_lshrrev_b32 v{T}, 3, v0"); A(f"v_lshlrev_b32 v{T}, 2, v{T}")
    A(f"s_lshl_b32 s{S_T0}, s{S_T0}, 5"); A(f"s_add_u32 s{S_T0}, s{S_T0}, {WS_GATE}")
    A(f"s_mov_b32 exec_lo, 0x01010101"); A(f"s_mov_b32 exec_hi, 0x01010101")
    A(f"buffer_store_dword v{T+2}, v{T}, {s(S_WS,4)}, s{S_T0} offen sc1")
    A(f"s_mov_b64 exec, -1")
    A("s_waitcnt vmcnt(0)")
    A.label(Ls)
    A.flush_hazards()

def phase_b(A, L_exit, first_batch_reg, stride, mem_wait=None, publish=None):
    WS = s(S_WS, 4)
    MF = "v_mfma_f32_32x32x16_bf16"; MF8 = "v_mfma_f32_32x32x8_bf16"
    A(f"s_lshl_b32 s{S_T0}, s{S_H}, 8")
    A(f"s_lshl_b32 s{S_T2}, s{S_WV}, 6")
    A(f"s_add_u32 s{S_T0}, s{S_T0}, s{S_T2}")
    A(f"s_mul_i32 s{S_T1}, s{S_WV}, {XT}")
    PA.load_w32(A, [S_W1], [WQ], V_GOFF, V_TR)
    A("s_barrier")
    A(f"s_mov_b32 s{S_SC}, 0x3e0293ee")
    A(f"s_mov_b32 s{S_NEG}, 0xd028965f")
    A(f"v_and_b32 v{V_QA}, 31, v0"); A(f"v_lshrrev_b32 v{V_QA+1}, 5, v0"); A(f"v_lshlrev_b32 v{V_QA+2}, 2, v{V_QA+1}")
    A(f"v_sub_u32 v{V_QA+2}, v{V_QA}, v{V_QA+2}")
    for r in range(16):
        A(f"v_cmp_le_i32 {s(S_MASK+2*r,2)}, {8*(r>>2) + (r&3)}, v{V_QA+2}")
    A(f"v_bfe_u32 v{V_QA+2}, v0, 1, 2"); A(f"v_lshlrev_b32 v{V_AK}, 6, v{V_QA+2}")
    A(f"v_and_b32 v{V_QA+2}, 1, v0"); A(f"v_lshl_add_u32 v{V_AK}, v{V_QA+2}, 4, v{V_AK}")
    A(f"v_lshl_add_u32 v{V_AK}, v{V_QA+1}, 8, v{V_AK}"); A(f"v_add_u32 v{V_AK}, 32, v{V_AK}")
    A(f"v_and_b32 v{V_QA+2}, 15, v0"); A(f"v_lshlrev_b32 v{V_AV}, 3, v{V_QA+2}")
    A(f"v_lshl_add_u32 v{V_AV}, v{V_QA+1}, 8, v{V_AV}")
    A(f"v_bfe_u32 v{V_QA+2}, v0, 4, 1"); A(f"v_lshl_add_u32 v{V_AV}, v{V_QA+2}, 2, v{V_AV}")
    V_GA = V_GOFF
    A(f"v_lshlrev_b32 v{V_GA}, 2, v{V_QA}")
    V_QW = V_TR
    A(f"s_lshl_b32 s{S_T0}, s{S_WV}, 11"); A(f"s_add_u32 s{S_T0}, s{S_T0}, {L_Q}")
    A(f"v_add_u32 v{V_QW}, s{S_T0}, v{V_L16}")
    A(f"s_mov_b32 s{S_BATCH}, s{first_batch_reg}")
    A(f"s_mul_i32 s{S_XOFF}, s{S_BATCH}, {4*XT}")
    A(f"s_lshl_b32 s{S_LSLOT}, s{S_WV}, 10")
    for t in range(2):
        for cb in range(9): PA.x_dma(A, cb)
        A(f"s_add_u32 s{S_XOFF}, s{S_XOFF}, {XT}")
        A(f"s_add_u32 s{S_LSLOT}, s{S_LSLOT}, {XT}")
    A(f"s_mov_b32 s{S_SLOT}, 0")
    L_loop = A.newlabel("b_loop")
    A.label(L_loop)
    A(f"s_lshl_b32 s{S_SEG}, s{S_BATCH}, 2"); A(f"s_add_u32 s{S_SEG}, s{S_SEG}, s{S_WV}")
    A(f"s_lshl_b32 s{S_T0}, s{S_BH}, 6"); A(f"s_add_u32 s{S_T0}, s{S_T0}, s{S_SEG}")
    A(f"s_lshl_b32 s{S_KVOFF}, s{S_T0}, 14")
    A(f"s_lshl_b32 s{S_KM}, s{S_T0}, 13"); A(f"s_add_u32 s{S_KM}, s{S_KM}, {WS_KVM}")
    A(f"s_lshl_b32 s{S_O}, s{S_SEG}, 6"); A(f"s_add_u32 s{S_O}, s{S_O}, s{S_BH}"); A(f"s_lshl_b32 s{S_O}, s{S_O}, 13")
    A(f"s_add_u32 s{S_O}, s{S_O}, {WS_O}")
    A(f"s_lshl_b32 s{S_G}, s{S_SEG}, 7"); A(f"s_add_u32 s{S_G}, s{S_G}, {WS_GATE}")
    for i in range(4):
        A(f"s_waitcnt vmcnt({9 if i != 1 else 9})" if i != 1 else "s_waitcnt vmcnt(9)")
        A("s_barrier")
        for q in range(4): A(f"v_add_u32 v{V_XA+q}, s{S_SLOT}, v{V_XB+q}")
        def rd(u): A(f"ds_read_b128 {v(V_XF+4*(u%4),4)}, {v(V_XA+(u&3))} offset:{(u>>2)*4096}")
        for u in range(3): rd(u)
        fill = []
        if i == 0:
            for f in range(8):
                fill.append((lambda f=f: A(f"buffer_load_dwordx4 {v(V_KF+4*f,4)}, v{V_L16}, {WS}, s{S_KVOFF} offen offset:{(f&3)*1024} sc1")) if f < 4 else
                            (lambda f=f: A(f"buffer_load_dwordx4 {v(V_KF+4*f,4)}, v{V_L16}, {WS}, s{S_T3} offen offset:{(f&3)*1024} sc1")))
            for f in range(8):
                fill.append((lambda f=f: A(f"buffer_load_dwordx4 {v(V_VF+4*f,4)}, v{V_L16}, {WS}, s{S_N} offen offset:{(f&3)*1024} sc1")) if f < 4 else
                            (lambda f=f: A(f"buffer_load_dwordx4 {v(V_VF+4*f,4)}, v{V_L16}, {WS}, s{S_CNT} offen offset:{(f&3)*1024} sc1")))
            fill.append(lambda: A(f"buffer_load_dword v{V_GT}, v{V_GA}, {WS}, s{S_G} offen sc1"))
            A(f"s_add_u32 s{S_T3}, s{S_KVOFF}, 4096"); A(f"s_add_u32 s{S_N}, s{S_KVOFF}, 8192"); A(f"s_add_u32 s{S_CNT}, s{S_KVOFF}, 12288")
        for cb in range(9): fill.append(lambda cb=cb: PA.x_dma(A, cb))
        for u in range(36):
            if u + 3 < 36: rd(u + 3)
            A(f"s_waitcnt lgkmcnt({min(3, 35-u)})")
            A(f"{MF} {v(V_QA,16)}, {R(WQ+4*u,4)}, {v(V_XF+4*(u%4),4)}, {'0' if u == 0 else v(V_QA,16)}")
            if u >= 1 and fill: fill.pop(0)()
        assert not fill
        A(f"s_add_u32 s{S_XOFF}, s{S_XOFF}, {XT if i != 1 else XT + (stride-1)*4*XT}")
        A(f"s_add_u32 s{S_LSLOT}, s{S_LSLOT}, {XT}")
        A(f"s_cmp_ge_u32 s{S_LSLOT}, {3*XT}")
        A(f"s_cselect_b32 s{S_T2}, {3*XT}, 0")
        A(f"s_sub_u32 s{S_LSLOT}, s{S_LSLOT}, s{S_T2}")
        A(f"s_add_u32 s{S_SLOT}, s{S_SLOT}, {XT}")
        A(f"s_cmp_ge_u32 s{S_SLOT}, {3*XT}")
        A(f"s_cselect_b32 s{S_SLOT}, 0, s{S_SLOT}")
        for j in range(8): A(f"v_cvt_pk_bf16_f32 v{V_PKQ+j}, v{V_QA+2*j}, v{V_QA+2*j+1}")
        A(f"ds_write_b128 v{V_QW}, {v(V_PKQ,4)} offset:{i*8192}")
        A(f"ds_write_b128 v{V_QW}, {v(V_PKQ+4,4)} offset:{i*8192+1024}")
    A("s_waitcnt lgkmcnt(0)")
    A("s_barrier")
    A(f"s_lshl_b32 s{S_T0}, s{S_WV}, 13"); A(f"s_add_u32 s{S_T0}, s{S_T0}, {L_Q}")
    A(f"v_add_u32 v{V_PKQ}, s{S_T0}, v{V_L16}")
    for f in range(8): A(f"ds_read_b128 {v(V_QF+4*f,4)}, v{V_PKQ} offset:{f*1024}")
    for f in range(8):
        A(f"s_waitcnt lgkmcnt({7-f})")
        A(f"{MF} {v(V_SX,16)}, {v(V_KF+4*f,4)}, {v(V_QF+4*f,4)}, {'0' if f == 0 else v(V_SX,16)}")
    if mem_wait is not None: mem_wait(A)
    for u in range(8): A(f"buffer_load_dwordx4 {v(V_MF+4*u,4)}, v{V_AK}, {WS}, s{S_KM} offen offset:{u*512} sc1")
    A(f"s_add_u32 s{S_T0}, s{S_KM}, 4096")
    for e in range(4):
        A(f"buffer_load_dword v{V_VM+2*e}, v{V_AV}, {WS}, s{S_T0} offen offset:{e*512} sc1")
        A(f"buffer_load_dword v{V_VM+2*e+1}, v{V_AV}, {WS}, s{S_T0} offen offset:{e*512+128} sc1")
    A(f"v_mov_b32 v{V_PKQ}, s{S_NEG}")
    for r in range(16): A(f"v_cndmask_b32 v{V_SX+r}, v{V_PKQ}, v{V_SX+r}, {s(S_MASK+2*r,2)}")
    M = V_QA; M2 = V_QA + 1; LS = V_QA + 2; L2 = V_QA + 3
    A(f"v_max3_f32 v{M}, v{V_SX}, v{V_SX+1}, v{V_SX+2}")
    for r in range(3, 15, 2): A(f"v_max3_f32 v{M}, v{M}, v{V_SX+r}, v{V_SX+r+1}")
    A(f"v_max_f32 v{M}, v{M}, v{V_SX+15}")
    for u in range(8):
        A(f"s_waitcnt vmcnt({15-u})")
        A(f"{MF} {v(V_SM,16)}, {v(V_MF+4*u,4)}, {v(V_QF+4*u,4)}, {'0' if u == 0 else v(V_SM,16)}")
    A(f"v_max3_f32 v{M}, v{M}, v{V_SM}, v{V_SM+1}")
    A(f"v_max3_f32 v{M}, v{M}, v{V_SM+2}, v{V_SM+3}")
    A(f"v_mov_b32 v{M2}, v{M}")
    A(f"v_permlane32_swap_b32 v{M}, v{M2}")
    A(f"v_max_f32 v{M}, v{M}, v{M2}")
    A(f"v_mul_f32 v{M}, s{S_SC}, v{M}")
    Sv = [V_SX + r for r in range(16)] + [V_SM + r for r in range(4)]
    for x in Sv: A(f"v_fma_f32 v{x}, v{x}, s{S_SC}, -v{M}")
    for x in Sv: A(f"v_exp_f32 v{x}, v{x}")
    P = V_QA + 4
    for j in range(10): A(f"v_cvt_pk_bf16_f32 v{P+j}, v{Sv[2*j]}, v{Sv[2*j+1]}")
    A("s_waitcnt vmcnt(0)")
    def pv(e, o):
        A(f"{MF8} {v(o,16)}, {v(V_VM+2*e,2)}, {v(P+8,2)}, 0")
    def pv2(e, o):
        A(f"{MF} {v(o,16)}, {v(V_VF+8*e,4)}, {v(P,4)}, {v(o,16)}")
        A(f"{MF} {v(o,16)}, {v(V_VF+8*e+4,4)}, {v(P+4,4)}, {v(o,16)}")
    OT = [V_O, V_O + 16, V_KF, V_KF + 16]
    for e in range(4): pv(e, OT[e])
    A(f"v_add_f32 v{LS}, v{Sv[0]}, v{Sv[1]}"); A(f"v_add_f32 v{L2}, v{Sv[2]}, v{Sv[3]}")
    for j in range(4, 20, 2):
        A(f"v_add_f32 v{LS}, v{LS}, v{Sv[j]}"); A(f"v_add_f32 v{L2}, v{L2}, v{Sv[j+1]}")
    for e in range(4): pv2(e, OT[e])
    A(f"v_add_f32 v{LS}, v{LS}, v{L2}")
    A(f"v_mov_b32 v{L2}, v{LS}")
    A(f"v_permlane32_swap_b32 v{LS}, v{L2}")
    A(f"v_add_f32 v{LS}, v{LS}, v{L2}")
    A(f"v_rcp_f32 v{LS}, v{LS}")
    A(f"v_sub_f32 v{L2}, 1.0, v{V_GT}")
    A(f"s_cmp_eq_u32 s{S_B}, 0")
    A(f"s_cselect_b64 vcc, -1, 0")
    A(f"v_cndmask_b32 v{L2}, v{L2}, v{V_GT}, vcc")
    A(f"v_mul_f32 v{LS}, v{LS}, v{L2}")
    A(f"s_add_u32 s{S_T0}, s{S_O}, 4096")
    for e in range(4):
        o = OT[e]
        for r in range(16): A(f"v_mul_f32 v{o+r}, v{o+r}, v{LS}")
        for j in range(8): A(f"v_cvt_pk_bf16_f32 v{o+j}, v{o+2*j}, v{o+2*j+1}")
        sr = S_O if e < 2 else S_T0
        A(f"buffer_store_dwordx4 {v(o,4)}, v{V_L16}, {WS}, s{sr} offen offset:{(e&1)*2048} sc1")
        A(f"buffer_store_dwordx4 {v(o+4,4)}, v{V_L16}, {WS}, s{sr} offen offset:{(e&1)*2048+1024} sc1")
    if publish is not None: publish(A)
    A(f"s_add_u32 s{S_BATCH}, s{S_BATCH}, {stride}")
    A(f"s_cmp_lt_u32 s{S_BATCH}, 16")
    A.flush_hazards()
    A(f"s_cbranch_scc1 {L_loop}")
    A("s_waitcnt vmcnt(0)")
```

```python
from common import *

S_ISRED = 46; S_RHO = 47; S_VER = 48
S_B = 49; S_H = 50; S_WV = 51
S_T0 = 52; S_T1 = 53; S_T2 = 54; S_T3 = 55
S_STEP = 56; S_BUD = 57
S_KV = 58
S_XM = 59
S_VM = 60
S_PQ = 61
S_P1 = 62
S_RED = 63
S_RZ = 64
S_MEMG = 65
S_MEMW = 66
S_MSL = 67
S_GRAY = 68
S_W256 = 69
S_M0G = 70
S_RZ2 = 98
S_TMW = 99
S_PAR = 36; S_FM = 32; S_FW = 34; S_FR = 35
S_PM_UNUSED = 32
S_MK = 76
S_EXA = 4
S_EXR = 6
S_SC = 100; S_BH = 101

L_TM = 0; L_S = 1024; L_O = 5120; L_MEM = 7168; L_W = 16384; WREG = 36864

V_IDX = 0; V_A = 1; V_L16 = 2; V_TW = 3; V_ID = 4; V_SW = 6; V_OW = 7; V_PS = 8
V_WARM = 9
V_TMP = 10
V_AR = 12
V_QK = 24
V_VA = 40
V_KX = 48
V_VX = 56
V_STG = 64
TILE0 = 80

LDS_UNITS = [("q", 0), ("k", 2), ("q", 4), ("k", 6), ("q", 8), ("o", 8), ("o", 0), ("o", 5), ("o", 7)]
ALL_UNITS = [(m, t) for m in "qkvo" for t in range(9)]
REG_UNITS = [u for u in ALL_UNITS if u not in LDS_UNITS]
assert len(REG_UNITS) == 27
REG_OF = {u: TILE0 + 16 * i for i, u in enumerate(REG_UNITS)}
LSLOT = {u: i for i, u in enumerate(LDS_UNITS)}
PARTB = 0x80000
OOR = 0x20000000

def bits(A, dst, L, terms, tmp, first=True):
    for pos, n, sh in terms:
        A(f"v_bfe_u32 v{tmp}, v{L}, {pos}, {n}")
        if first:
            A(f"v_lshlrev_b32 v{dst}, {sh}, v{tmp}"); first = False
        else:
            A(f"v_lshl_add_u32 v{dst}, v{tmp}, {sh}, v{dst}")

def rec_setup(A):
    A("v_lshrrev_b32 v1, 6, v0")
    A(f"v_readfirstlane_b32 s{S_WV}, v1")
    A("v_and_b32 v11, 63, v0")
    build_branch_srds(A, S_B)
    L = 11; T = 12
    A(f"s_lshl_b32 s{S_BH}, s{S_B}, 5")
    A(f"s_add_u32 s{S_BH}, s{S_BH}, s{S_H}")
    A(f"s_mov_b32 s{S_EXA}, 0x33333333"); A(f"s_mov_b32 s{S_EXA+1}, 0x33333333")
    A(f"s_mov_b32 s{S_EXR}, 0xff00ff00"); A(f"s_mov_b32 s{S_EXR+1}, 0xff00ff00")
    for d, m in enumerate((0x00110011, 0x00220022, 0x11001100, 0x22002200)):
        A(f"s_mov_b32 s{S_MK+2*d}, {hex(m)}"); A(f"s_mov_b32 s{S_MK+2*d+1}, {hex(m)}")
    A(f"s_mov_b32 s{S_SC}, 0x3e0293ee")
    A(f"s_mov_b32 s{S_BUD}, 0x100000")
    A(f"s_lshl_b32 s{S_W256}, s{S_WV}, 8")
    A(f"s_lshl_b32 s{S_M0G}, s{S_WV}, 10")
    A(f"s_add_u32 s{S_M0G}, s{S_M0G}, {L_MEM}")
    A(f"v_lshlrev_b32 v{V_L16}, 4, v{L}")
    A(f"v_bfe_u32 v{T}, v{L}, 1, 1")
    A(f"v_mul_u32_u24 v{V_IDX}, 0xaaaa, v{T}")
    A(f"v_add_u32 v{V_IDX}, 0x4444, v{V_IDX}")
    bits(A, V_A, L, [(0, 1, 5), (1, 1, 4), (2, 2, 8), (4, 1, 6)], T)
    A(f"v_bfe_u32 v{T}, v{L}, 5, 1"); A(f"v_bfe_u32 v{T+1}, v{L}, 3, 1"); A(f"v_xor_b32 v{T}, v{T}, v{T+1}")
    A(f"v_lshl_add_u32 v{V_A}, v{T}, 7, v{V_A}")
    A(f"s_mul_i32 s{S_T1}, s{S_WV}, {WREG}"); A(f"s_add_u32 s{S_T1}, s{S_T1}, {L_W}")
    A(f"v_add_u32 v{V_TW}, s{S_T1}, v{V_L16}")
    A(f"v_and_b32 v{T}, 1, v{L}"); A(f"v_lshlrev_b32 v{T}, 4, v{T}")
    A(f"v_mov_b32 v{T+1}, 0x3f80"); A(f"v_lshlrev_b32 v{T}, v{T}, v{T+1}")
    A(f"v_bfe_u32 v{T+1}, v{L}, 1, 3"); A(f"v_lshrrev_b32 v{T+2}, 4, v{L}"); A(f"v_lshlrev_b32 v{T+2}, 1, v{T+2}")
    A(f"v_sub_u32 v{T+1}, v{T+1}, v{T+2}")
    for d in range(2):
        A(f"v_cmp_eq_u32 vcc, {d}, v{T+1}")
        A(f"v_cndmask_b32 v{V_ID+d}, 0, v{T}, vcc")
    A(f"s_lshl_b32 s{S_T2}, s{S_WV}, 10"); A(f"v_add_u32 v{V_SW}, s{S_T2}, v{V_L16}")
    A(f"s_lshr_b32 s{S_T0}, s{S_WV}, 1"); A(f"s_and_b32 s{S_T1}, s{S_WV}, 1")
    A(f"s_lshl_b32 s{S_T2}, s{S_T0}, 10"); A(f"s_lshl_b32 s{S_T3}, s{S_T1}, 5"); A(f"s_add_u32 s{S_T2}, s{S_T2}, s{S_T3}")
    A(f"v_add_u32 v{V_OW}, s{S_T2}, v{V_L16}")
    A(f"s_lshl_b32 s{S_T2}, s{S_T0}, 5"); A(f"s_lshl_b32 s{S_T3}, s{S_T1}, 3"); A(f"s_add_u32 s{S_TMW}, s{S_T2}, s{S_T3}")
    bits(A, V_PS, L, [(3, 3, 12), (0, 3, 4)], T)
    A(f"s_lshr_b32 s{S_T0}, s{S_H}, 3"); A(f"s_lshl_b32 s{S_T0}, s{S_T0}, 1"); A(f"s_add_u32 s{S_T0}, s{S_T0}, s{S_WV}")
    A(f"s_lshl_b32 s{S_T0}, s{S_T0}, 3"); A(f"s_and_b32 s{S_T1}, s{S_H}, 7"); A(f"s_add_u32 s{S_T0}, s{S_T0}, s{S_T1}")
    A(f"s_lshl_b32 s{S_RHO}, s{S_WV}, 5"); A(f"s_add_u32 s{S_RHO}, s{S_RHO}, s{S_H}")
    A(f"s_cmp_lt_u32 s{S_WV}, 2")
    A(f"s_cselect_b32 s{S_RHO}, s{S_T0}, s{S_RHO}")
    A(f"s_cmp_lt_u32 s{S_RHO}, 72")
    A(f"s_cselect_b32 s{S_ISRED}, 1, 0")
    A(f"s_cmp_eq_u32 s{S_WV}, 3"); A(f"s_cselect_b32 s{S_FM}, 0x01010101, 0"); A(f"s_mov_b32 s{S_FM+1}, s{S_FM}")

def rec_bases(A):
    A(f"s_lshl_b32 s{S_KV}, s{S_BH}, 20")
    A(f"s_lshl_b32 s{S_T0}, s{S_WV}, 11")
    A(f"s_add_u32 s{S_KV}, s{S_KV}, s{S_T0}")
    A(f"s_lshl_b32 s{S_T1}, s{S_BH}, 19")
    A(f"s_add_u32 s{S_T1}, s{S_T1}, {WS_KVM}")
    A(f"s_lshl_b32 s{S_T0}, s{S_WV}, 10")
    A(f"s_add_u32 s{S_XM}, s{S_T1}, s{S_T0}")
    A(f"s_lshl_b32 s{S_T0}, s{S_WV}, 9")
    A(f"s_add_u32 s{S_VM}, s{S_T1}, 4096")
    A(f"s_add_u32 s{S_VM}, s{S_VM}, s{S_T0}")
    A(f"s_lshl_b32 s{S_T0}, s{S_B}, 21"); A(f"s_add_u32 s{S_T0}, s{S_T0}, {WS_PART + PARTB}")
    A(f"s_lshl_b32 s{S_T1}, s{S_H}, 7"); A(f"s_add_u32 s{S_T1}, s{S_T1}, s{S_T0}")
    A(f"s_lshl_b32 s{S_T2}, s{S_WV}, 16"); A(f"s_add_u32 s{S_PQ}, s{S_T1}, s{S_T2}")
    A(f"s_lshr_b32 s{S_T2}, s{S_WV}, 1"); A(f"s_lshl_b32 s{S_T2}, s{S_T2}, 12"); A(f"s_add_u32 s{S_P1}, s{S_T1}, s{S_T2}")
    A(f"s_and_b32 s{S_T2}, s{S_WV}, 1"); A(f"s_lshl_b32 s{S_T2}, s{S_T2}, 6"); A(f"s_add_u32 s{S_P1}, s{S_P1}, s{S_T2}")
    A(f"s_add_u32 s{S_P1}, s{S_P1}, {64*4096}")
    A(f"s_lshl_b32 s{S_T2}, s{S_RHO}, 12"); A(f"s_add_u32 s{S_RED}, s{S_T0}, s{S_T2}")
    A(f"s_lshr_b32 s{S_T2}, s{S_H}, 3"); A(f"s_lshl_b32 s{S_T2}, s{S_T2}, 1"); A(f"s_lshr_b32 s{S_T3}, s{S_WV}, 1")
    A(f"s_add_u32 s{S_T2}, s{S_T2}, s{S_T3}"); A(f"s_lshl_b32 s{S_T2}, s{S_T2}, 3"); A(f"s_and_b32 s{S_T3}, s{S_H}, 7")
    A(f"s_add_u32 s{S_T2}, s{S_T2}, s{S_T3}"); A(f"s_lshl_b32 s{S_T2}, s{S_T2}, 12"); A(f"s_add_u32 s{S_RZ}, s{S_T0}, s{S_T2}")
    A(f"s_and_b32 s{S_T2}, s{S_WV}, 1"); A(f"s_lshl_b32 s{S_T2}, s{S_T2}, 11"); A(f"s_add_u32 s{S_RZ}, s{S_RZ}, s{S_T2}")
    A(f"s_add_u32 s{S_T3}, s{S_T3}, 64"); A(f"s_lshl_b32 s{S_T3}, s{S_T3}, 12"); A(f"s_add_u32 s{S_RZ2}, s{S_T0}, s{S_T3}")
    A(f"s_lshr_b32 s{S_T2}, s{S_H}, 3"); A(f"s_lshl_b32 s{S_T2}, s{S_T2}, 10"); A(f"s_add_u32 s{S_RZ2}, s{S_RZ2}, s{S_T2}")
    A(f"s_add_u32 s{S_RZ2}, s{S_RZ2}, s{S_W256}")
    A(f"s_xor_b32 s{S_RZ}, s{S_RZ}, {hex(PARTB)}"); A(f"s_xor_b32 s{S_RZ2}, s{S_RZ2}, {hex(PARTB)}")
    A(f"s_lshl_b32 s{S_T0}, s{S_B}, 16"); A(f"s_add_u32 s{S_T0}, s{S_T0}, {WS_MEMI}")
    A(f"s_lshl_b32 s{S_T2}, s{S_H}, 2"); A(f"s_add_u32 s{S_FW}, s{S_T0}, s{S_T2}"); A(f"s_add_u32 s{S_FW}, s{S_FW}, 12288")
    A(f"s_and_b32 s{S_T2}, s{S_H}, 7"); A(f"s_lshl_b32 s{S_T2}, s{S_T2}, 7"); A(f"s_add_u32 s{S_FR}, s{S_T0}, s{S_T2}")
    A(f"s_add_u32 s{S_FR}, s{S_FR}, 12288")
    A(f"s_lshl_b32 s{S_T2}, s{S_WV}, 10"); A(f"s_add_u32 s{S_MEMG}, s{S_T0}, s{S_T2}")
    A(f"s_bfe_u32 s{S_T2}, s{S_RHO}, 0x10002")
    A(f"s_xor_b32 s{S_T2}, s{S_T2}, s{S_RHO}")
    A(f"s_lshl_b32 s{S_T2}, s{S_T2}, 7"); A(f"s_add_u32 s{S_MEMW}, s{S_T0}, s{S_T2}")
    A(f"s_mov_b32 s{S_MSL}, 0x4000")
    A(f"s_mov_b32 s{S_PAR}, 0")
    A(f"s_mov_b32 s{S_GRAY}, 0x8000")
    A(f"s_mov_b32 s{S_STEP}, 0")
    A(f"s_mov_b32 s{S_VER}, 1")

def advance_ops():
    return [f"s_add_u32 s{S_STEP}, s{S_STEP}, 1",
            f"s_add_u32 s{S_KV}, s{S_KV}, 16384",
            f"s_add_u32 s{S_XM}, s{S_XM}, 8192",
            f"s_add_u32 s{S_VM}, s{S_VM}, 8192",
            f"s_xor_b32 s{S_PAR}, s{S_PAR}, 1",
            f"s_xor_b32 s{S_MSL}, s{S_MSL}, s{S_GRAY}",
            f"s_xor_b32 s{S_GRAY}, s{S_GRAY}, 0xc000",
            f"s_mov_b32 s{S_VER}, 0"]

def load_weights(A):
    L = 11; T = 12
    VQ = 16; VQ8 = 17; VV = 18; VV8 = 19; VO = 44; VS = 45; VTR = 46
    bits(A, VQ, L, [(4, 1, 5), (1, 1, 4), (2, 1, 2), (3, 1, 1)], T)
    bits(A, VQ8, L, [(2, 1, 4), (3, 1, 3), (4, 1, 1), (1, 1, 0)], T)
    bits(A, VO, L, [(1, 1, 0), (2, 1, 5), (4, 1, 2), (3, 1, 4)], T)
    A(f"v_lshlrev_b32 v{VQ}, 13, v{VQ}"); A(f"v_lshlrev_b32 v{VQ8}, 13, v{VQ8}")
    A(f"v_mul_u32_u24 v{VO}, 1152, v{VO}")
    bits(A, T + 1, L, [(0, 1, 4), (5, 1, 5)], T)
    bits(A, T + 2, L, [(0, 1, 5), (5, 1, 4)], T)
    A(f"v_add_u32 v{VV}, v{VQ}, v{T+1}"); A(f"v_add_u32 v{VV8}, v{VQ8}, v{T+1}")
    A(f"v_add_u32 v{VQ}, v{VQ}, v{T+2}"); A(f"v_add_u32 v{VQ8}, v{VQ8}, v{T+2}")
    A(f"v_lshrrev_b32 v{T}, 5, v{L}")
    A(f"v_mul_u32_u24 v{VS}, {64*1152 - 32}, v{T}")
    A(f"v_add_u32 v{VO}, v{VO}, v{T+1}")
    A(f"v_add_u32 v{VS}, v{VS}, v{VO}")
    SQ = S_KV; SO = S_XM; SS = S_VM; SL = S_PQ
    A(f"s_lshl_b32 s{SQ}, s{S_H}, 8");  A(f"s_lshl_b32 s{S_T0}, s{S_WV}, 6"); A(f"s_add_u32 s{SQ}, s{SQ}, s{S_T0}")
    A(f"s_mul_i32 s{SO}, s{S_H}, 147456")
    A(f"s_lshl_b32 s{S_T0}, s{S_WV}, 5"); A(f"s_add_u32 s{SS}, s{SO}, s{S_T0}"); A(f"s_add_u32 s{SS}, s{SS}, 1024")
    A(f"s_add_u32 s{SO}, s{SO}, s{S_W256}")
    A(f"s_mul_i32 s{SL}, s{S_WV}, {WREG}"); A(f"s_add_u32 s{SL}, s{SL}, {L_W}")
    A(f"v_lshlrev_b32 v{VTR}, 3, v{L}"); A(f"v_add_u32 v{VTR}, s{SL}, v{VTR}")
    srds = dict(q=S_W1, k=S_W2, v=S_W3, o=S_W4)
    def dma_unit(u, slot):
        m, t = u
        for rr in range(4):
            A(f"s_add_u32 m0, s{SL}, {slot*4096 + rr*1024}")
            if m != "o" and t < 8:
                A(f"s_add_u32 s{S_T2}, s{SQ}, {(64*t + 8*(rr>>1) + (rr&1))*8192}"); vo = VV if m == "v" else VQ
            elif m != "o":
                A(f"s_add_u32 s{S_T2}, s{SQ}, {(512 + 32*(rr>>1) + 4*(rr&1))*8192}"); vo = VV8 if m == "v" else VQ8
            elif t < 8:
                A(f"s_add_u32 s{S_T2}, s{SO}, {(64*(t&1) + 8*(rr>>1) + 2*(rr&1))*1152 + (t>>1)*64}"); vo = VO
            else:
                A(f"s_add_u32 s{S_T2}, s{SS}, {(8*(rr>>1) + 2*(rr&1))*1152}"); vo = VS
            A(f"buffer_load_dwordx4 v{vo}, {s(srds[m],4)}, s{S_T2} offen lds")
    order = REG_UNITS + LDS_UNITS
    for i in range(9): dma_unit(order[i], i)
    for i in range(36):
        A(f"s_waitcnt vmcnt({min(32, 4*(35-i))})")
        if i == 0: finish_mem0(A)
        d = REG_OF[order[i]] if i < 27 else V_STG
        for tau in range(2):
            for rr in range(4):
                A(f"ds_read_b64_tr_b16 {R(d+8*tau+2*rr,2)}, v{VTR} offset:{(i%9)*4096 + rr*1024 + tau*512}")
        A("s_waitcnt lgkmcnt(0)")
        if i < 27: dma_unit(order[i + 9], i % 9)
        else:
            for q in range(4): A(f"ds_write_b128 v{V_TW}, {v(V_STG+4*q,4)} offset:{(i%9)*4096 + q*1024}")
            A("s_waitcnt lgkmcnt(0)")

def build_mem0(A):
    L = 11; T = 20
    A(f"s_mul_i32 s{S_T0}, s{S_WV}, {2*1152}")
    A(f"v_bfe_u32 v{T}, v{L}, 3, 1"); A(f"v_mul_u32_u24 v{T}, 1152, v{T}")
    A(f"v_mov_b32 v{T+2}, v{T}")
    bits(A, T, L, [(4, 1, 6), (0, 3, 1)], T + 1, first=False)
    bits(A, T + 2, L, [(4, 1, 2), (0, 3, 3)], T + 1, first=False)
    A(f"s_lshr_b32 s{S_T1}, s{S_WV}, 1")
    A(f"v_lshrrev_b32 v{T+1}, 5, v{L}"); A(f"v_xor_b32 v{T+1}, s{S_T1}, v{T+1}")
    A(f"v_lshl_add_u32 v{T}, v{T+1}, 4, v{T}")
    A(f"v_lshl_add_u32 v{T+2}, v{T+1}, 6, v{T+2}")
    for t in range(8):
        A(f"buffer_load_ushort v{24+2*t}, v{T}, {s(S_M0,4)}, s{S_T0} offen offset:{128*t}")
        A(f"buffer_load_ushort v{25+2*t}, v{T}, {s(S_M0,4)}, s{S_T0} offen offset:{128*t+32}")
    A(f"buffer_load_ushort v40, v{T+2}, {s(S_M0,4)}, s{S_T0} offen offset:1024")
    A(f"buffer_load_ushort v41, v{T+2}, {s(S_M0,4)}, s{S_T0} offen offset:1026")
    A(f"v_lshlrev_b32 v{T+1}, 2, v{L}"); A(f"v_add_u32 v{T+1}, s{S_W256}, v{T+1}")

def finish_mem0(A):
    T = 20
    for t in range(9):
        A(f"v_lshl_or_b32 v{24+2*t}, v{25+2*t}, 16, v{24+2*t}")
        A(f"v_min_u32 v{24+2*t}, -2, v{24+2*t}")
        A(f"ds_write_b32 v{T+1}, v{24+2*t} offset:{L_MEM + 1024*t}")

def init_slots(A, st):
    Ls = A.newlabel("r_noinit")
    for i in range(4): A(f"v_mov_b32 v{V_STG+i}, -1")
    for m in (1,):
        A(f"s_xor_b32 s{S_T0}, s{S_RZ}, {hex(m*PARTB)}")
        for i in range(2):
            A(f"buffer_store_dwordx4 {v(V_STG,4)}, v{V_L16}, {s(S_WS,4)}, s{S_T0} offen offset:{i*1024}{st}")
    A(f"s_mov_b64 exec, 0xffff")
    for m in (1,):
        A(f"s_xor_b32 s{S_T0}, s{S_RZ2}, {hex(m*PARTB)}")
        A(f"buffer_store_dwordx4 {v(V_STG,4)}, v{V_L16}, {s(S_WS,4)}, s{S_T0} offen{st}")
    A(f"s_mov_b64 exec, 0xff")
    A(f"buffer_store_dwordx4 {v(V_STG,4)}, v{V_L16}, {s(S_WS,4)}, s{S_FR} offen{st}")
    A(f"s_cmp_eq_u32 s{S_ISRED}, 0")
    A(f"s_cbranch_scc1 {Ls}")
    for m in (0, 0x4000, 0x8000, 0xc000):
        A(f"s_add_u32 s{S_T0}, s{S_MEMW}, {hex(m)}")
        A(f"buffer_store_dwordx4 {v(V_STG,4)}, v{V_L16}, {s(S_WS,4)}, s{S_T0} offen{st}")
    A.label(Ls)
    A(f"s_mov_b64 exec, -1")
    A.flush_hazards()

class Fill:
    def __init__(self): self.s = []; self.m = []; self.v = []
    def pull(self, ns=1, nm=1, nv=1):
        if nm and not self.m: ns += 1
        for q, n in ((self.s, ns), (self.m, nm), (self.v, nv)):
            for _ in range(n):
                if q: q.pop(0)()
    def drain(self):
        for q in (self.s, self.m, self.v):
            while q: q.pop(0)()

def rec_loop(A, st, L_exit, stamp=None, kv_wait=None, publish=None, cfg=None):
    cfg = cfg or {}
    lg = Trk(A, "lgkmcnt", 15); vm = Trk(A, "vmcnt", 63)
    _st = stamp
    smap = cfg.get("smap", {"0": 0, "1": 1, "2": 2, "3": 3, "4": 4, "5": 5})
    def stamp(name):
        if _st is not None and str(name) in smap: _st(smap[str(name)])
    L_top = A.newlabel("r_top"); L_last = A.newlabel("r_last"); L_redo = A.newlabel("r_redo"); L_go = A.newlabel("r_go")
    L_again = A.newlabel("r_again"); L_back = A.newlabel("r_back")
    SM = "v_smfmac_f32_16x16x64_bf16"; MF = "v_mfma_f32_16x16x32_bf16"; MF16 = "v_mfma_f32_16x16x16_bf16"
    QP = "quad_perm:[2,3,0,1] row_mask:0xf bank_mask:0xf"
    WS = s(S_WS, 4)
    KVL = "sc1 nt" if cfg.get("nt", 0) else "sc1"
    F = Fill()
    op = lambda t: (lambda: A(t))
    pend = {}
    def tile_ops(u, tau, dst):
        sl = LSLOT[u]; tag = f"{u[0]}{u[1]}_{tau}"; pend[tag] = 2
        def one(q):
            pend[tag] -= 1
            lg.issue(f"ds_read_b128 {v(dst+8*tau+4*q,4)}, v{V_TW} offset:{sl*4096 + tau*2048 + q*1024}", tag)
        return [(lambda q=q: one(q)) for q in range(2)]
    def stg_ops(u, dst): return tile_ops(u, 0, dst) + tile_ops(u, 1, dst)
    def stg_load(u, dst):
        for f in stg_ops(u, dst): f()
    def stg_wait(u, tau):
        tag = f"{u[0]}{u[1]}_{tau}"
        assert pend[tag] == 0, (tag, pend)
        lg.wait(tag)
    def zero(first, n):
        for i in range(0, n, 2): A(f"v_mov_b64 {v(first+i,2)}, 0")
    def pre1():
        stg_load(("q", 0), V_STG)
        zero(V_QK, 24)
    def pre2():
        A(f"v_and_b32 v{V_TMP}, 0x300, v{V_L16}")
        A(f"v_add_u32 v{V_VX+4}, v{V_TMP}, v{V_L16}")
        A(f"v_and_b32 v{V_TMP}, 0x80, v{V_L16}")
        A(f"v_add_u32 v{V_KX+4}, v{V_TMP}, v{V_VX+4}")
        A(f"v_and_b32 v{V_TMP}, 0xf0, v{V_L16}")
        A(f"v_bfe_u32 v{V_TMP+1}, v{V_L16}, 5, 3")
        A(f"v_add_lshl_u32 v{V_TMP}, v{V_TMP}, v{V_TMP+1}, 2")
        A(f"v_add_u32 v{V_TMP}, s{S_M0G}, v{V_TMP}")
        A(f"v_and_b32 v{V_TMP+1}, s{S_K8}, v{V_L16}")
        A(f"v_lshl_add_u32 v{V_TMP+1}, v{V_TMP+1}, 2, v{V_TMP}")

    if kv_wait is not None: kv_wait(A)
    pre1(); pre2()
    lg.force_all()
    A("s_barrier")
    A.label(L_top)
    lg.done = lg.n
    vm.n += 16; vm.done = 0
    stamp(0)
    def a_read(t):
        lg.issue(f"ds_read_b128 {v(V_AR+4*(t%3),4)}, v{V_A} offset:{L_MEM + 1024*(t%9)}", f"a{t}")
    a_read(0)
    A("s_waitcnt vmcnt(1)")
    lg.issue(f"ds_read_b32 v{V_TMP}, v{V_TMP+1} offset:4096", "ck")
    a_read(1)
    vm.issue(f"buffer_load_dwordx4 {v(V_KX,4)}, v{V_KX+4}, {WS}, s{S_KV} offen {KVL}")
    lg.wait("a0")
    def tile(u, tau, stg=V_STG):
        return v(stg + 8 * tau, 8) if u in LSLOT else R(REG_OF[u] + 8 * tau, 8)
    nxt = {("k", 2): ("q", 4), ("q", 4): ("k", 6), ("k", 6): ("q", 8), ("q", 8): ("o", 8)}
    for t in range(9):
        af = v(V_AR + 4 * (t % 3), 4)
        ms = ["k", "q"] if (("q", t) in LSLOT and t != 0) else ["q", "k"]
        seq = [(m, tau) for m in ms for tau in range(2)]
        for n, (m, tau) in enumerate(seq):
            if (m, t) in LSLOT: stg_wait((m, t), tau)
            acc = V_QK + 8 * tau + (0 if m == "q" else 4)
            A(f"{SM} {v(acc,4)}, {af}, {tile((m,t),tau)}, v{V_IDX}")
            if (m, t) in nxt: F.m += tile_ops(nxt[(m, t)], tau, V_STG)
            if t == 0:
                if n == 0:
                    A(f"s_add_u32 s{S_T0}, s{S_KV}, 8192"); a_read(2)
                elif n == 1:
                    F.m += stg_ops(("k", 2), V_STG)
                    lg.wait("ck")
                    vm.issue(f"buffer_load_dwordx4 {v(V_KX+4,4)}, v{V_KX+4}, {WS}, s{S_KV} offen offset:128 {KVL}", "kx")
                    A(f"v_cmp_eq_u32 vcc, -1, v{V_TMP}")
                elif n == 2:
                    lg.wait("a1")
                    F.pull(0, 1, 0)
                else:
                    A(f"s_cbranch_vccnz {L_again}")
                    A.label(L_back)
                    F.pull(0, 1, 0)
                    F.s += [op("s_barrier"),
                            op(f"s_xor_b32 s{S_T1}, s{S_GRAY}, 0xc000"), op(f"s_xor_b32 s{S_MEMG}, s{S_MEMG}, s{S_T1}"),
                            op(f"s_add_u32 s{S_T2}, s{S_KV}, 16384")]
                    if publish is not None: publish(A, vm, F)
                    F.v += [op(f"v_and_b32 v{V_TMP}, 0x1f0, v{V_L16}"), op(f"v_lshlrev_b32 v{V_TMP}, 2, v{V_TMP}"),
                            op(f"v_and_b32 v{V_TMP+1}, 0x200, v{V_L16}"), op(f"v_lshl_add_u32 v{V_WARM}, v{V_TMP+1}, 4, v{V_TMP}"),
                            op(f"v_and_b32 v{V_TMP}, 0x300, v{V_L16}"), op(f"v_lshlrev_b32 v{V_TMP}, 5, v{V_TMP}"),
                            op(f"v_bfe_u32 v{V_TMP+1}, v{V_L16}, 2, 6"), op(f"v_add_u32 v{V_TMP}, v{V_TMP}, v{V_TMP+1}"),
                            op(f"v_add_u32 v{V_TMP+1}, s{S_TMW}, v{V_L16}")]
                continue
            if n == 0:
                F.pull(1, 0, 0); a_read(t + 2); F.pull(0, 0, 1)
            elif n == 3:
                lg.wait(f"a{t+1}"); F.pull(0, 1, 1)
            else:
                F.pull()
            if t == 1 and n == 2:
                F.m += [lambda: vm.issue(f"buffer_load_dwordx4 {v(V_VX,4)}, v{V_VX+4}, {WS}, s{S_T0} offen {KVL}"),
                        lambda: vm.issue(f"buffer_load_dwordx4 {v(V_VX+4,4)}, v{V_VX+4}, {WS}, s{S_T0} offen offset:256 {KVL}", "vx")]
            if t == 3 and n == 2:
                F.m += [lambda: vm.issue(f"buffer_load_dword v{V_WARM}, v{V_WARM}, {WS}, s{S_T2} offen sc1", "warm")]
    assert not F.s and not F.v
    stamp(1)
    vs = {"i": 0}
    def vsm(n=1, nv=1):
        for _ in range(n):
            i = vs["i"]
            if i >= 18: return
            t, tau = i >> 1, i & 1
            if tau == 0: lg.wait(f"a{9+t}")
            A(f"{SM} {v(V_VA+4*tau,4)}, {v(V_AR+4*((9+t)%3),4)}, {tile(('v',t),tau)}, v{V_IDX}")
            if tau == 0 and t + 2 < 9:
                a_read(9 + t + 2); F.pull(0, 0, nv)
            else: F.pull(0, 1, nv)
            vs["i"] += 1
    q0 = V_QK; k0 = V_QK + 4; q1 = V_QK + 8; k1 = V_QK + 12
    def fold3(acc, dst):
        return [f"v_add_f32 v{acc}, v{acc}, v{acc+2}", f"v_add_f32 v{acc+1}, v{acc+1}, v{acc+3}",
                f"v_cvt_pk_bf16_f32 v{dst}, v{acc}, v{acc+1}"]
    for o in fold3(k0, k0 + 3) + fold3(k1, k1 + 3) + fold3(q0, k0 + 2): A(o)
    A(f"v_cmp_u_f32 vcc, v{q0}, v{q0+1}")
    for o in fold3(q1, k1 + 2)[:2]: A(o)
    A(f"{MF16} {v(q0,4)}, {v(k0+2,2)}, {v(V_ID,2)}, 0")
    A(fold3(q1, k1 + 2)[2])
    A(f"s_cbranch_vccnz {L_redo}")
    A.label(L_go)
    A(f"{MF16} {v(q1,4)}, {v(k1+2,2)}, {v(V_ID,2)}, 0")
    vsm(1, 0)
    X = k0
    A(f"v_cvt_pk_bf16_f32 v{X}, v{q0}, v{q0+1}")
    A(f"v_cvt_pk_bf16_f32 v{X+1}, v{q0+2}, v{q0+3}")
    vm.wait("kx")
    A(f"v_cvt_pk_bf16_f32 v{X+2}, v{q1}, v{q1+1}")
    A(f"v_cvt_pk_bf16_f32 v{X+3}, v{q1+2}, v{q1+3}")
    S0 = q0; S1 = q1; S2 = k1
    A(f"{MF} {v(S0,4)}, {v(V_KX,4)}, {v(X,4)}, 0")
    A(f"{MF} {v(S1,4)}, {v(V_KX+4,4)}, {v(X,4)}, 0")
    A(f"{MF} {v(S2,4)}, {v(X,4)}, {v(X,4)}, 0")
    A(f"s_mov_b64 exec, {s(S_EXA,2)}")
    lg.issue(f"ds_write_b128 v{V_SW}, {v(S0,4)} offset:{L_S}")
    lg.issue(f"ds_write_b128 v{V_SW}, {v(S1,4)} offset:{L_S+32}")
    lg.issue(f"ds_write_b64 v{V_TMP+1}, {v(S2+2,2)} offset:{L_TM}", "sw")
    A(f"s_mov_b64 exec, -1")
    vsm(cfg.get("v1", 5))
    lg.wait("sw")
    A("s_barrier")
    stamp(2)
    RB = [q0, q1, k1, V_KX + 4]; RM = V_KX
    for w in range(4):
        lg.issue(f"ds_read_b128 {v(RB[w],4)}, v{V_L16} offset:{L_S + w*1024}", f"s{w}")
    lg.issue(f"ds_read_b128 {v(RM,4)}, v{V_L16} offset:{L_TM}", "sm")
    if not cfg.get("nopub"): vm.issue(f"buffer_store_dwordx4 {v(X,4)}, v{V_L16}, {WS}, s{S_XM} offen sc1")
    vsm(cfg.get("v2", 2), 0)
    def needs(tag, text):
        def f():
            lg.wait(tag); A(text)
        return f
    F.v += [needs("s1", f"v_add_f32 v{RB[0]+r}, v{RB[0]+r}, v{RB[1]+r}") for r in range(4)]
    F.v += [needs("s3", f"v_add_f32 v{RB[2]+r}, v{RB[2]+r}, v{RB[3]+r}") for r in range(4)]
    F.v += [needs("sm", f"v_add_f32 v{RM+r}, v{RM+r}, v{RM+2+r}") for r in range(2)]
    F.v += [op(f"v_add_f32 v{RB[0]+r}, v{RB[0]+r}, v{RB[2]+r}") for r in range(4)]
    F.v += [op(f"v_add_f32_dpp v{RM+2+r}, v{RM+r}, v{RM+r} {QP}") for r in range(2)]
    Sv = [q0, q0 + 1, q0 + 2, q0 + 3, RM + 2, RM + 3]
    M = k0; M2 = k0 + 1
    VM0 = V_VA; PUB = V_VA + 6
    PX = q1; PM = k1; ONE = V_KX + 4
    F.v += [op(f"v_max3_f32 v{M}, v{Sv[0]}, v{Sv[1]}, v{Sv[2]}"),
            op(f"v_max3_f32 v{M2}, v{Sv[3]}, v{Sv[4]}, v{Sv[5]}"),
            op(f"v_max_f32 v{M}, v{M}, v{M2}"),
            op(f"v_mov_b64 {v(ONE,2)}, {s(S_ONE,2)}"),
            op(f"v_mov_b64 {v(ONE+2,2)}, {s(S_ONE,2)}"),
            op(f"v_max_f32_dpp v{M2}, v{M}, v{M} {QP}"),
            op(f"v_mov_b32 v{M}, v{M2}"),
            op(f"v_mov_b32 v{PM+1}, 0"),
            op(f"v_lshrrev_b32 v{V_TMP+1}, 1, v{V_L16}"),
            op(f"v_permlane16_swap_b32 v{M}, v{M2}"),
            op(f"v_max_f32 v{M}, v{M}, v{M2}"),
            op(f"v_mov_b32 v{M2}, v{M}")]
    vsm(18, cfg.get("nv", 2))
    F.drain()
    A(f"v_add_f32 v{V_VA}, v{V_VA}, v{V_VA+2}")
    A(f"v_add_f32 v{V_VA+1}, v{V_VA+1}, v{V_VA+3}")
    A(f"v_permlane32_swap_b32 v{M}, v{M2}")
    A(f"v_max_f32 v{M}, v{M}, v{M2}")
    A(f"v_mul_f32 v{M}, s{S_SC}, v{M}")
    for x in Sv: A(f"v_fma_f32 v{x}, v{x}, s{S_SC}, -v{M}")
    for x in Sv: A(f"v_exp_f32 v{x}, v{x}")
    A(f"v_cvt_pk_bf16_f32 v{PX}, v{Sv[0]}, v{Sv[1]}")
    A(f"v_cvt_pk_bf16_f32 v{PX+1}, v{Sv[2]}, v{Sv[3]}")
    A(f"v_cvt_pk_bf16_f32 v{PM}, v{Sv[4]}, v{Sv[5]}")
    A(f"v_mov_b32_dpp v{PX+2}, v{PX} {QP}")
    A(f"v_mov_b32_dpp v{PX+3}, v{PX+1} {QP}")
    O0 = V_AR; O1 = V_AR + 4; LS = q0
    vm.wait("vx")
    A(f"{MF16} {v(LS,4)}, {v(ONE,2)}, {v(PM,2)}, 0")
    A(f"v_add_f32 v{V_VA+4}, v{V_VA+4}, v{V_VA+6}")
    A(f"v_add_f32 v{V_VA+5}, v{V_VA+5}, v{V_VA+7}")
    A(f"{MF} {v(O0,4)}, {v(V_VX,4)}, {v(PX,4)}, 0")
    A(f"v_cvt_pk_bf16_f32 v{PUB}, v{V_VA}, v{V_VA+1}")
    A(f"v_cvt_pk_bf16_f32 v{PUB+1}, v{V_VA+4}, v{V_VA+5}")
    A(f"{MF} {v(LS,4)}, {v(ONE,4)}, {v(PX,4)}, {v(LS,4)}")
    A(f"v_mov_b32 v{VM0+1}, v{PUB+1}")
    A(f"v_mov_b32 v{VM0}, v{PUB+1}")
    A(f"{MF} {v(O1,4)}, {v(V_VX+4,4)}, {v(PX,4)}, 0")
    A(f"{MF16} {v(O0,4)}, {v(PUB,2)}, {v(PM,2)}, {v(O0,4)}")
    A(f"v_rcp_f32 v{LS}, v{LS}")
    A(f"{MF16} {v(O1,4)}, {v(VM0,2)}, {v(PM,2)}, {v(O1,4)}")
    if not cfg.get("nopub"): vm.issue(f"buffer_store_dwordx2 {v(PUB,2)}, v{V_TMP+1}, {WS}, s{S_VM} offen sc1")
    A(f"s_cmp_eq_u32 s{S_STEP}, 63")
    A(f"s_cbranch_scc1 {L_last}")
    for i in range(4): A(f"v_mul_f32 v{O0+i}, v{O0+i}, v{LS}")
    for i in range(2): A(f"v_cvt_pk_bf16_f32 v{O0+i}, v{O0+2*i}, v{O0+2*i+1}")
    for i in range(4, 8): A(f"v_mul_f32 v{O0+i}, v{O0+i}, v{LS}")
    for i in range(2, 4): A(f"v_cvt_pk_bf16_f32 v{O0+i}, v{O0+2*i}, v{O0+2*i+1}")
    A(f"s_mov_b64 exec, {s(S_EXA,2)}")
    lg.issue(f"ds_write_b128 v{V_OW}, {v(O0,4)} offset:{L_O}", "ow")
    A(f"s_mov_b64 exec, -1")
    STG2 = V_KX
    W = V_QK
    stg_load(("o", 0), STG2)
    lg.wait("ow")
    A("s_barrier")
    stamp(3)
    OA = V_AR + 4
    lg.issue(f"ds_read_b128 {v(OA,4)}, v{V_L16} offset:{L_O}", "oa0")
    lg.issue(f"ds_read_b128 {v(OA+4,4)}, v{V_L16} offset:{L_O+1024}", "oa1")
    zero(W, 16)
    where = {("o", 8): V_STG, ("o", 0): STG2, ("o", 5): STG2, ("o", 7): V_STG}
    PK = V_AR
    def fold_ops(n):
        acc = W + 4 * (n % 6)
        if n < 4: dst = PK + n
        elif n == 4: dst = V_TMP + 1
        else: dst = W + 12 + (n - 5)
        r = [op(o) for o in fold3(acc, dst)]
        if n in (3, 4, 8):
            tg = PK if n == 3 else (V_TMP + 1 if n == 4 else W + 12)
            r.insert(0 if n != 4 else 3, op(f"v_and_or_b32 v{tg}, v{tg}, -2, s{S_PAR}"))
        if n < 3: r += [op(f"v_mov_b64 {v(acc,2)}, 0"), op(f"v_mov_b64 {v(acc+2,2)}, 0")]
        return r
    def wsm(n, u, tau, kh, nv=2):
        if u in LSLOT: stg_wait(u, tau)
        lg.wait(f"oa{kh}")
        b = v(where[u] + 8 * tau, 8) if u in LSLOT else R(REG_OF[u] + 8 * tau, 8)
        A(f"{SM} {v(W+4*(n%6),4)}, {v(OA+4*kh,4)}, {b}, v{V_IDX}")
        F.pull(1, 1, nv)
    FD = V_AR + 1
    FA = V_AR; FV = V_AR + 2
    def flag_store():
        A(f"s_mov_b64 exec, {s(S_FM,2)}")
        vm.issue(f"buffer_store_dword v{FD}, v{V_L16}, {WS}, s{S_FW} offen{st}")
        A(f"s_mov_b64 exec, -1")
    poll = lambda: vm.issue(f"buffer_load_dword v{FV}, v{FA}, {WS}, s{S_FR} offen sc1")
    fpos = cfg.get("fpos", 15)
    F.v += [op(f"v_mov_b64 {v(W+i,2)}, 0") for i in range(16, 24, 2)]
    seq = [(0, ("o", 0), 0, 0), (1, ("o", 0), 1, 0), (0, ("o", 1), 0, 1), (1, ("o", 1), 1, 1),
           (2, ("o", 2), 0, 0), (2, ("o", 3), 0, 1), (3, ("o", 2), 1, 0), (3, ("o", 3), 1, 1),
           (4, ("o", 8), 0, 0), (4, ("o", 8), 1, 1),
           (5, ("o", 4), 0, 0), (5, ("o", 5), 0, 1), (6, ("o", 4), 1, 0), (6, ("o", 5), 1, 1),
           (7, ("o", 6), 0, 0), (7, ("o", 7), 0, 1), (8, ("o", 6), 1, 0), (8, ("o", 7), 1, 1)]
    fpos = max(fpos, 14)
    for k, (n, u, tau, kh) in enumerate(seq, 1):
        if k == 3: F.m += stg_ops(("o", 5), STG2)
        if k == 5: F.v += fold_ops(0)[:3] + fold_ops(1)[:3]
        if k == 8: F.v += fold_ops(2)[:3] + fold_ops(3)[:1]
        if k == 10:
            F.v += fold_ops(3)[1:] + fold_ops(0)[3:]
            F.m += tile_ops(("o", 7), 0, V_STG)
        if k == 12:
            assert not F.v and not F.m
            F.m += [lambda: vm.issue(f"buffer_store_dwordx4 {v(PK,4)}, v{V_PS}, {WS}, s{S_PQ} offen{st}")]
            F.m += tile_ops(("o", 7), 1, V_STG)
            F.v += fold_ops(4)[:2] + [op(f"v_mov_b32 v{FD}, s{S_STEP}")] + fold_ops(1)[3:] + fold_ops(4)[2:]
        if k == 15:
            assert not F.v and not F.m
            F.m += [lambda: vm.issue(f"buffer_store_dword v{V_TMP+1}, v{V_TMP}, {WS}, s{S_P1} offen{st}")]
            F.v += fold_ops(2)[3:] + fold_ops(5) + fold_ops(6)
            F.s += [op(f"s_add_u32 s{S_T0}, s{S_PQ}, 32768"), op(f"s_cmp_eq_u32 s{S_ISRED}, 0")]
        if k == fpos: F.s.insert(0, flag_store)
        wsm(n, u, tau, kh, 1 if k <= 4 else (3 if k in (10, 13) else 2))
    F.drain()
    A(f"v_bfe_u32 v{FA}, v{V_L16}, 2, 7")
    A(f"v_mov_b32 v{FV}, -1")
    for o in fold_ops(7): o()
    if cfg.get("ep", 1): poll()
    for o in fold_ops(8): o()
    vm.issue(f"buffer_store_dwordx4 {v(W+12,4)}, v{V_PS}, {WS}, s{S_T0} offen{st}")
    stamp(4)
    L_nored = A.newlabel("r_nored"); L_p1 = A.newlabel("r_p1"); L_p1ok = A.newlabel("r_p1ok")
    L_late = A.newlabel("r_late"); L_b3 = A.newlabel("r_b3"); L_rz = A.newlabel("r_rz")
    lg.done = lg.n
    A(f"s_cbranch_scc1 {L_nored}")
    PL = V_KX; SEL = V_AR + 4; D = V_AR + 8
    def p1_loads():
        for i in range(4):
            A(f"buffer_load_dwordx4 {v(PL+4*i,4)}, v{V_L16}, {WS}, s{S_RED} offen offset:{i*1024} sc1")
    sel_ops = [f"v_bfe_u32 v{D}, v{V_L16}, 6, 1", f"v_lshlrev_b32 v{D}, 4, v{D}", f"v_mov_b32 v{D+1}, 0x3f80",
               f"v_lshlrev_b32 v{D}, v{D}, v{D+1}"]
    sel_ops += [f"v_cndmask_b32 v{SEL+i}, 0, v{D}, {s(S_MK+2*i,2)}" for i in range(4)]
    sel_ops += [f"v_lshrrev_b32 v{V_TMP}, 3, v{V_L16}", f"v_and_b32 v{V_TMP}, 0x60, v{V_TMP}",
                f"v_bfe_u32 v{V_TMP+1}, v{V_L16}, 4, 3", f"v_lshl_add_u32 v{V_TMP}, v{V_TMP+1}, 2, v{V_TMP}",
                f"v_cndmask_b32 v{V_TMP+1}, 0, -1, {s(S_EXR,2)}",
                f"v_and_b32 v{V_AR+1}, 0xc000, v{V_TMP+1}",
                f"v_xor_b32 v{V_AR+1}, s{S_MSL}, v{V_AR+1}",
                f"v_add_u32 v{V_TMP}, v{V_TMP}, v{V_AR+1}"]
    CKR = V_AR + 3
    def reduce():
        for i in range(4):
            A(f"s_waitcnt vmcnt({3-i})")
            A(f"{MF} {v(D,4)}, {v(SEL,4)}, {v(PL+4*i,4)}, {'0' if i == 0 else v(D,4)}")
            if i == 0: A(f"v_xor_b32 v{CKR}, s{S_PAR}, v{PL}")
            else: A(f"v_bitop3_b32 v{CKR}, v{CKR}, v{PL+4*i}, s{S_PAR} bitop3:0xf6")
        A(f"v_and_b32 v{CKR}, 1, v{CKR}")
        A(f"v_cmp_ne_u32 vcc, 0, v{CKR}")
        A(f"v_add_f32_dpp v{D+2}, v{D}, v{D} row_ror:8 row_mask:0xf bank_mask:0xf")
        A(f"v_add_f32_dpp v{D+3}, v{D+1}, v{D+1} row_ror:8 row_mask:0xf bank_mask:0xf")
        A(f"v_cvt_pk_bf16_f32 v{D}, v{D+2}, v{D+3}")
        A(f"v_min_u32 v{D}, -2, v{D}")
        A(f"v_or_b32 v{D}, v{D}, v{V_TMP+1}")
        A(f"s_cbranch_vccz {L_p1ok}")
    L_fp = A.newlabel("r_fp"); L_fok = A.newlabel("r_fok")
    A(f"s_cmp_eq_u32 s{S_WV}, 1")
    A(f"s_cbranch_scc1 {L_late}")
    for _ in range(cfg.get("d0", 0)): A("s_nop 3")
    p1_loads()
    for o in sel_ops: A(o)
    pre1()
    reduce()
    if cfg.get("count"): A(f"s_add_u32 s84, s84, 1")
    A(f"s_branch {L_fok}" if cfg.get("e3", 1) else f"s_branch {L_fp}")
    def flag_wait(Lp, Lok):
        A.label(Lp)
        for _ in range(4):
            A(f"v_cmp_ne_u32 vcc, s{S_STEP}, v{FV}")
            poll()
            A(f"s_cbranch_vccz {Lok}")
        A("s_waitcnt vmcnt(24)")
        A(f"s_sub_u32 s{S_BUD}, s{S_BUD}, 1")
        A(f"s_cmp_lg_u32 s{S_BUD}, 0")
        A(f"s_cbranch_scc1 {Lp}")
        A(f"s_branch {L_exit}")
        A.label(Lok)
    A.label(L_late)
    poll()
    for o in sel_ops[:8]: A(o)
    poll()
    for o in sel_ops[8:]: A(o)
    flag_wait(A.newlabel("r_fp1"), A.newlabel("r_fok1"))
    stamp("fok")
    for _ in range(cfg.get("d1", 0)): A("s_nop 3")
    p1_loads()
    pre1()
    reduce()
    if cfg.get("count"): A(f"s_add_u32 s84, s84, 1")
    flag_wait(L_fp, L_fok)
    p1_loads()
    reduce()
    if cfg.get("count"): A(f"s_add_u32 s84, s84, 1")
    A(f"s_sub_u32 s{S_BUD}, s{S_BUD}, 1")
    A(f"s_cmp_lg_u32 s{S_BUD}, 0")
    A(f"s_cbranch_scc1 {L_fp}")
    A(f"s_branch {L_exit}")
    A.label(L_nored)
    pre1()
    A(f"s_branch {L_b3}")
    A.label(L_p1ok)
    A(f"buffer_store_dword v{D}, v{V_TMP}, {WS}, s{S_MEMW} offen{st}")
    A.label(L_b3)
    stamp(5)
    A(f"s_mov_b32 m0, s{S_M0G}")
    A("s_barrier")
    stamp("b3")
    for _ in range(cfg.get("d2", 3)): A("s_nop 7")
    L_chk = A.newlabel("r_chk"); L_rep = A.newlabel("r_rep"); L_w3 = A.newlabel("r_w3"); L_w3b = A.newlabel("r_w3b")
    DM = lambda sr: A(f"buffer_load_dwordx4 v{V_L16}, {WS}, s{sr} offen sc1 lds")
    DM(S_MEMG)
    A(f"s_add_u32 m0, s{S_M0G}, 4096")
    A(f"s_add_u32 s{S_T2}, s{S_MEMG}, 4096")
    DM(S_T2)
    A(f"s_cmp_eq_u32 s{S_WV}, 3")
    A(f"s_cbranch_scc1 {L_w3}")
    A(f"s_mov_b32 m0, s{S_M0G}")
    for o in advance_ops(): A(o)
    DM(S_MEMG)
    A("s_waitcnt vmcnt(4)")
    pre2()
    A("s_waitcnt vmcnt(2)")
    A(f"s_branch {L_chk}")
    A.label(L_w3)
    A(f"buffer_load_dwordx4 v{V_L16}, {WS}, s{S_T2} offen offset:1024 sc1 lds")
    A(f"s_mov_b32 m0, s{S_M0G}")
    for o in advance_ops(): A(o)
    DM(S_MEMG)
    pre2()
    A("s_waitcnt vmcnt(3)")
    A.label(L_chk)
    A(f"ds_read_b32 v{V_AR}, v{V_TMP}")
    if kv_wait is not None: kv_wait(A)
    A("s_waitcnt lgkmcnt(0)")
    A(f"v_cmp_eq_u32 vcc, -1, v{V_AR}")
    A(f"s_cbranch_vccnz {L_rep}")
    stamp("chk")
    A("s_barrier")
    A(f"s_branch {L_top}")
    A.label(L_rep)
    if cfg.get("count"): A(f"s_add_u32 s85, s85, 1")
    DM(S_MEMG)
    A(f"s_waitcnt vmcnt(1)")
    A(f"s_sub_u32 s{S_BUD}, s{S_BUD}, 1")
    A(f"s_cmp_lg_u32 s{S_BUD}, 0")
    A(f"s_cbranch_scc1 {L_chk}")
    A(f"s_branch {L_exit}")
    A.label(L_again)
    if cfg.get("count"): A(f"s_add_u32 s85, s85, 0x10000")
    A(f"s_add_u32 m0, s{S_M0G}, 4096")
    A(f"s_add_u32 s{S_T2}, s{S_MEMG}, 4096")
    DM(S_T2)
    A(f"s_cmp_lg_u32 s{S_WV}, 3")
    A(f"s_cbranch_scc1 {L_w3b}")
    A(f"buffer_load_dwordx4 v{V_L16}, {WS}, s{S_T2} offen offset:1024 sc1 lds")
    A.label(L_w3b)
    A("s_waitcnt vmcnt(0)")
    A(f"ds_read_b32 v{V_TMP}, v{V_TMP+1} offset:4096")
    A("s_waitcnt lgkmcnt(0)")
    A(f"v_cmp_eq_u32 vcc, -1, v{V_TMP}")
    A(f"s_cbranch_vccz {L_back}")
    A(f"s_sub_u32 s{S_BUD}, s{S_BUD}, 1")
    A(f"s_cmp_lg_u32 s{S_BUD}, 0")
    A(f"s_cbranch_scc1 {L_again}")
    A(f"s_branch {L_exit}")
    A.label(L_redo)
    L_rp = A.newlabel("r_rp"); L_rok = A.newlabel("r_rok")
    A(f"s_cmp_eq_u32 s{S_VER}, 1")
    A(f"s_cbranch_scc1 {L_go}")
    if cfg.get("count"): A(f"s_add_u32 s71, s71, 1")
    A("s_waitcnt vmcnt(0) lgkmcnt(0)")
    A("s_nop 15")
    A("s_barrier")
    G = V_QK
    A(f"s_xor_b32 s{S_T0}, s{S_GRAY}, 0xc000")
    A(f"s_xor_b32 s{S_MEMG}, s{S_MEMG}, s{S_T0}")
    A(f"v_add_u32 v{G+13}, s{S_M0G}, v{V_L16}")
    A(f"s_add_u32 s{S_T2}, s{S_MEMG}, 4096")
    A(f"s_mul_i32 s{S_T3}, s{S_WV}, 1024")
    A(f"s_sub_u32 s{S_T3}, s{S_MEMG}, s{S_T3}")
    A(f"s_add_u32 s{S_T3}, s{S_T3}, 8192")
    A.label(L_rp)
    A(f"buffer_load_dwordx4 {v(G,4)}, v{V_L16}, {WS}, s{S_MEMG} offen sc1")
    A(f"buffer_load_dwordx4 {v(G+4,4)}, v{V_L16}, {WS}, s{S_T2} offen sc1")
    A(f"buffer_load_dwordx4 {v(G+8,4)}, v{V_L16}, {WS}, s{S_T3} offen sc1")
    A(f"s_waitcnt vmcnt(0)")
    A(f"v_max3_u32 v{G+14}, v{G}, v{G+1}, v{G+2}")
    for i in range(3, 11, 2): A(f"v_max3_u32 v{G+14}, v{G+14}, v{G+i}, v{G+i+1}")
    A(f"v_max_u32 v{G+14}, v{G+14}, v{G+11}")
    A(f"v_cmp_eq_u32 vcc, -1, v{G+14}")
    A(f"s_cbranch_vccz {L_rok}")
    A(f"s_sub_u32 s{S_BUD}, s{S_BUD}, 1")
    A(f"s_cmp_lg_u32 s{S_BUD}, 0")
    A(f"s_cbranch_scc1 {L_rp}")
    A(f"s_branch {L_exit}")
    A.label(L_rok)
    A(f"ds_write_b128 v{G+13}, {v(G,4)}")
    A(f"ds_write_b128 v{G+13}, {v(G+4,4)} offset:4096")
    A(f"ds_write_b128 v{V_L16}, {v(G+8,4)} offset:{L_MEM+8192}")
    A("s_waitcnt lgkmcnt(0)")
    pre1(); pre2()
    A(f"s_mov_b32 s{S_VER}, 1")
    A("s_waitcnt lgkmcnt(0)")
    A("s_barrier")
    A(f"s_branch {L_top}")
    A.label(L_last)

S_NEG = 72
S_K8 = 40
S_ONE = 74

def team_mode(A, L_fast, L_slow, L_exit):
    Lp = A.newlabel("tm_p")
    A.label(Lp)
    A(f"s_sub_u32 s{S_BUD}, s{S_BUD}, 1")
    A(f"s_cmp_eq_u32 s{S_BUD}, 0")
    A(f"s_cbranch_scc1 {L_exit}")
    A(f"v_lshrrev_b32 v12, 2, v{V_L16}")
    A(f"v_and_b32 v12, 63, v12")
    A(f"global_load_dword v13, v12, {s(S_DBG,2)} sc1")
    A("s_waitcnt vmcnt(0)")
    for i in range(9): A(f"v_readlane_b32 s{84+i}, v13, {i}")
    A("s_nop 3")
    A(f"s_add_u32 s93, s84, s85")
    for i in range(2, 9): A(f"s_add_u32 s93, s93, s{84+i}")
    A(f"s_cmp_eq_u32 s{S_B}, 0")
    A(f"s_cselect_b32 s94, s84, s85")
    A(f"s_cmp_ge_u32 s94, 32")
    A(f"s_cbranch_scc1 {L_fast}")
    A(f"s_cmp_ge_u32 s93, 256")
    A(f"s_cbranch_scc1 {L_slow}")
    A(f"s_branch {Lp}")

def team_barrier(A, L_exit):
    Lw = A.newlabel("tb_w"); Lp = A.newlabel("tb_p")
    A("s_waitcnt vmcnt(0)")
    A("s_barrier")
    A(f"s_lshl_b32 s{S_T0}, s{S_B}, 2")
    A(f"s_add_u32 s{S_T0}, s{S_T0}, 64")
    A(f"v_mov_b32 v12, s{S_T0}")
    A(f"v_mov_b32 v13, 1")
    A(f"s_cmp_lg_u32 s{S_WV}, 0")
    A(f"s_cbranch_scc1 {Lw}")
    A(f"s_mov_b64 exec, 1")
    A(f"global_atomic_add v12, v13, {s(S_DBG,2)}")
    A(f"s_mov_b64 exec, -1")
    A.label(Lw)
    A.label(Lp)
    A(f"s_sub_u32 s{S_BUD}, s{S_BUD}, 1")
    A(f"s_cmp_eq_u32 s{S_BUD}, 0")
    A(f"s_cbranch_scc1 {L_exit}")
    A(f"global_load_dword v13, v12, {s(S_DBG,2)} sc1")
    A("s_waitcnt vmcnt(0)")
    A(f"v_readfirstlane_b32 s{S_T1}, v13")
    A("s_nop 3")
    A(f"s_cmp_lt_u32 s{S_T1}, 32")
    A(f"s_cbranch_scc1 {Lp}")

def rec_role(A, L_exit, stamp=None, force_slow=False, kv_wait=None, publish=None, publish_last=None, cfg=None, at_end=None, before_loop=None):
    A(f"s_lshr_b32 s{S_B}, s{S_SLOTID}, 5")
    A(f"s_and_b32 s{S_H}, s{S_SLOTID}, 31")
    rec_setup(A)
    build_mem0(A)
    load_weights(A)
    rec_bases(A)
    A(f"s_mov_b32 s{S_NEG}, 0xf149f2ca"); A(f"s_mov_b32 s{S_NEG+1}, 0xf149f2ca")
    A(f"s_mov_b32 s{S_ONE}, 0x3f803f80"); A(f"s_mov_b32 s{S_ONE+1}, 0x3f803f80")
    A(f"s_cmp_eq_u32 s{S_WV}, 3"); A(f"s_cselect_b32 s{S_K8}, 0x100, 0")
    L_fast = A.newlabel("r_fast"); L_slow = A.newlabel("r_slow")
    team_mode(A, L_slow if force_slow else L_fast, L_slow, L_exit)
    for lab, st in ((L_fast, ""), (L_slow, " sc1")):
        A.label(lab)
        init_slots(A, st)
        team_barrier(A, L_exit)
        if before_loop is not None: before_loop(A)
        if cfg and cfg.get("count"):
            for r in (84, 85, 71): A(f"s_mov_b32 s{r}, 0")
        rec_loop(A, st, L_exit, stamp=stamp, kv_wait=kv_wait, publish=publish, cfg=cfg)
        A("s_waitcnt vmcnt(0) lgkmcnt(0)")
        if publish_last is not None: publish_last(A)
        if at_end is not None: at_end(A)
        A(f"s_branch {L_exit}")
```

```python
import sys, json
from common import *
import phase_a as PA
import rec as RC
import phase_b as PB
import outproj as OP

NAME = "gated_mix__memory_aug_recurrent_mem_tr__memory_aug_recurrent_mem_tr__prompt_kernel"
WS = s(S_WS, 4)

def merged(cfg=None, force_slow=False, prof=False):
    cfg = cfg or {}
    A = Asm()
    X = "L_exit"
    A.raw(kernel_header(NAME))
    A("s_cmp_ge_u32 s2, 256")
    A(f"s_cbranch_scc1 {X}")
    def tstamp(i, vt=10):
        if not prof: return
        A("s_memrealtime s[0:1]")
        A(f"s_lshl_b32 s2, s{S_SLOTID}, 6"); A(f"s_add_u32 s2, s2, {WS_DBG + 0x100000 + 4*i}")
        A("s_waitcnt lgkmcnt(0)")
        A(f"v_mov_b32 v{vt}, s0")
        A(f"buffer_store_dword v{vt}, off, {WS}, s2")
        A("s_waitcnt vmcnt(0)")
    load_ptrs(A)
    build_common_srds(A)
    assign_slot(A, X)
    tstamp(0)
    A(f"s_cmp_ge_u32 s{S_SLOTID}, 64")
    A("s_cbranch_scc1 L_worker")
    S_KVOK = 37; S_L0 = 38
    def r_before(A):
        wait_init(A, X, RC.S_BUD, 12, RC.S_T1)
        A(f"s_mov_b32 s{S_KVOK}, 0")
        A(f"s_and_b32 s{S_L0}, s{RC.S_FM}, 1"); A(f"s_mov_b32 s{S_L0+1}, 0")
        A(f"s_lshl_b32 s{RC.S_RZ}, s{RC.S_BH}, 6"); A(f"s_add_u32 s{RC.S_RZ}, s{RC.S_RZ}, {WS_MP}")
        A(f"s_lshl_b32 s{RC.S_RZ2}, s{RC.S_BH}, 4"); A(f"s_add_u32 s{RC.S_RZ2}, s{RC.S_RZ2}, {WS_KVP}")
        tstamp(1, 12)
    def kv_wait(A):
        Lok = A.newlabel("kv_ok"); Lp = A.newlabel("kv_p")
        T = RC.V_AR + 4
        A(f"s_cmp_gt_i32 s{S_KVOK}, s{RC.S_STEP}")
        A(f"s_cbranch_scc1 {Lok}")
        A.label(Lp)
        A(f"s_sub_u32 s{RC.S_BUD}, s{RC.S_BUD}, 1")
        A(f"s_cmp_eq_u32 s{RC.S_BUD}, 0")
        A(f"s_cbranch_scc1 {X}")
        A(f"buffer_load_dwordx4 {v(T,4)}, off, {WS}, s{RC.S_RZ2} sc1")
        A("s_waitcnt vmcnt(0)")
        A(f"v_mul_u32_u24 v{T}, 3, v{T}")
        A(f"v_mad_u32_u24 v{T+1}, v{T+1}, 3, 1")
        A(f"v_mad_u32_u24 v{T+2}, v{T+2}, 3, 2")
        A(f"v_min3_u32 v{T}, v{T}, v{T+1}, v{T+2}")
        A(f"v_readfirstlane_b32 s{S_KVOK}, v{T}")
        A("s_nop 3")
        A(f"s_cmp_ge_u32 s{S_KVOK}, 64")
        A(f"s_cselect_b32 s{S_KVOK}, 65, s{S_KVOK}")
        A(f"s_sub_u32 s{S_KVOK}, s{S_KVOK}, 1")
        A(f"s_cmp_gt_i32 s{S_KVOK}, s{RC.S_STEP}")
        A(f"s_cbranch_scc0 {Lp}")
        A.label(Lok)
    def r_publish(A, vm, F):
        def st():
            A(f"s_mov_b64 exec, {s(S_L0,2)}")
            vm.issue(f"buffer_store_dword v{RC.V_WARM}, off, {WS}, s{RC.S_RZ} sc1")
            A("s_mov_b64 exec, -1")
        F.v += [lambda: A(f"v_mov_b32 v{RC.V_WARM}, s{RC.S_STEP}"), st]
    def r_last(A):
        A("s_barrier")
        A(f"v_mov_b32 v{RC.V_WARM}, 64")
        A(f"s_mov_b64 exec, {s(S_L0,2)}")
        A(f"buffer_store_dword v{RC.V_WARM}, off, {WS}, s{RC.S_RZ} sc1")
        A("s_mov_b64 exec, -1")
        tstamp(2, 12)
    RC.rec_role(A, X, force_slow=force_slow, kv_wait=kv_wait, publish=r_publish, publish_last=r_last, cfg=cfg, before_loop=r_before)
    A.label("L_worker")
    A(f"s_sub_u32 s{PA.S_WI}, s{S_SLOTID}, 64")
    PA.worker_setup(A)
    PA.worker_consts(A)
    S_BUD = PB.S_BUD
    A(f"s_mov_b32 s{S_BUD}, 0x100000")
    Lz = A.newlabel("w_z")
    A(f"s_lshl_b32 s{PA.S_T0}, s{PA.S_WI}, 9"); A(f"s_lshl_b32 s{PA.S_T1}, s{PA.S_WV}, 7"); A(f"s_add_u32 s{PA.S_T0}, s{PA.S_T0}, s{PA.S_T1}")
    A(f"s_add_u32 s{PA.S_T0}, s{PA.S_T0}, {WS_FLAG}")
    for i in range(4): A(f"v_mov_b32 v{32+i}, 0")
    A("s_mov_b64 exec, 0xff")
    A(f"buffer_store_dwordx4 v[32:35], v{PA.V_L16}, {WS}, s{PA.S_T0} offen sc1")
    A("s_mov_b64 exec, -1")
    PB.gate_part(A)
    A("s_waitcnt vmcnt(0)")
    A("s_barrier")
    A(f"s_cmp_lg_u32 s{PA.S_WV}, 0")
    A(f"s_cbranch_scc1 {Lz}")
    A(f"v_mov_b32 v32, {DBG_INIT}"); A("v_mov_b32 v33, 1")
    A("s_mov_b64 exec, 1")
    A(f"global_atomic_add v32, v33, {s(S_DBG,2)}")
    A("s_mov_b64 exec, -1")
    A.label(Lz)
    S_KP = 92; S_W0 = 94
    def a_before(A):
        wait_init(A, X, S_BUD, PA.V_T, PA.S_T2)
        tstamp(1, PA.V_T)
    A(f"s_mov_b32 s100, s70"); A(f"s_mov_b32 s101, s71")
    A(f"s_mov_b32 s4, s84"); A(f"s_mov_b32 s5, s85")
    A(f"s_lshl_b32 s{S_KP}, s{PA.S_BH}, 4"); A(f"s_lshl_b32 s{PA.S_T0}, s{PA.S_C}, 2"); A(f"s_add_u32 s{S_KP}, s{S_KP}, s{PA.S_T0}")
    A(f"s_add_u32 s{S_KP}, s{S_KP}, {WS_KVP}")
    A(f"s_cmp_eq_u32 s{PA.S_WV}, 0"); A(f"s_cselect_b32 s{S_W0}, 1, 0"); A(f"s_mov_b32 s{S_W0+1}, 0")
    def a_publish(A):
        A(f"s_max_i32 s{PA.S_T2}, s{PA.S_CNT}, 0")
        A(f"v_mov_b32 v{PA.V_T}, s{PA.S_T2}")
        A(f"s_mov_b64 exec, {s(S_W0,2)}")
        A(f"buffer_store_dword v{PA.V_T}, off, {WS}, s{S_KP} sc1")
        A("s_mov_b64 exec, -1")
        A(f"s_add_u32 s{PA.S_CNT}, s{PA.S_CNT}, 1")
    PA.phase_a(A, publish=a_publish, before_loop=a_before)
    A(f"v_mov_b32 v{PA.V_T}, 22")
    A(f"s_mov_b64 exec, {s(S_W0,2)}")
    A(f"buffer_store_dword v{PA.V_T}, off, {WS}, s{S_KP} sc1")
    A("s_mov_b64 exec, -1")
    tstamp(2, PA.V_T)
    A(f"s_cmp_eq_u32 s{PA.S_C}, 2")
    A("s_cbranch_scc1 L_outproj")
    Lp = A.newlabel("b_kv")
    A(f"s_and_b32 s{S_KP}, s{S_KP}, 0xfffffff0")
    A.label(Lp)
    A(f"s_sub_u32 s{S_BUD}, s{S_BUD}, 1")
    A(f"s_cmp_eq_u32 s{S_BUD}, 0")
    A(f"s_cbranch_scc1 {X}")
    A(f"buffer_load_dwordx4 v[32:35], off, {WS}, s{S_KP} sc1")
    A("s_waitcnt vmcnt(0)")
    A("v_min3_u32 v32, v32, v33, v34")
    A(f"v_readfirstlane_b32 s{PA.S_T0}, v32")
    A("s_nop 3")
    A(f"s_cmp_lt_u32 s{PA.S_T0}, 22")
    A(f"s_cbranch_scc1 {Lp}")
    def mem_wait(A):
        Lp = A.newlabel("b_mp"); Lok = A.newlabel("b_mok")
        A(f"s_lshl_b32 s{PA.S_T0}, s{PA.S_BH}, 6"); A(f"s_add_u32 s{PA.S_T0}, s{PA.S_T0}, {WS_MP}")
        A.label(Lp)
        A(f"buffer_load_dword v{PB.V_PKQ+1}, off, {WS}, s{PA.S_T0} sc1")
        A("s_waitcnt vmcnt(0)")
        A(f"v_readfirstlane_b32 s{PA.S_T1}, v{PB.V_PKQ+1}")
        A("s_nop 3")
        A(f"s_cmp_gt_u32 s{PA.S_T1}, s{PA.S_SEG}")
        A(f"s_cbranch_scc1 {Lok}")
        A("s_sleep 4")
        A(f"s_sub_u32 s{S_BUD}, s{S_BUD}, 1")
        A(f"s_cmp_lg_u32 s{S_BUD}, 0")
        A(f"s_cbranch_scc1 {Lp}")
        A(f"s_branch {X}")
        A.label(Lok)
    def b_publish(A):
        A(f"s_lshl_b32 s{PA.S_T0}, s{PA.S_SEG}, 2"); A(f"s_lshr_b32 s{PA.S_T1}, s{PA.S_BH}, 4"); A(f"s_add_u32 s{PA.S_T0}, s{PA.S_T0}, s{PA.S_T1}")
        A(f"s_lshl_b32 s{PA.S_T0}, s{PA.S_T0}, 6"); A(f"s_add_u32 s{PA.S_T0}, s{PA.S_T0}, {WS_OC}")
        A(f"v_mov_b32 v{PB.V_PKQ}, 1")
        A("s_waitcnt vmcnt(0)")
        A("s_mov_b64 exec, 1")
        A(f"buffer_atomic_add v{PB.V_PKQ}, off, {WS}, s{PA.S_T0}")
        A("s_mov_b64 exec, -1")
    PB.phase_b(A, X, PA.S_C, 2, mem_wait=mem_wait, publish=b_publish)
    tstamp(3, 32)
    A(f"s_branch {X}")
    A.label("L_outproj")
    A(f"s_and_b32 s{OP.S_T0}, s{PA.S_BH}, 31")
    A(f"s_cmp_ge_u32 s{OP.S_T0}, 30")
    A(f"s_cbranch_scc1 {X}")
    A(f"s_lshr_b32 s{OP.S_SEG}, s{PA.S_BH}, 5")
    A(f"s_mul_hi_u32 s{OP.S_KQ}, s{OP.S_T0}, {hex((1<<32)//6+1)}")
    A(f"s_mul_i32 s{OP.S_T1}, s{OP.S_KQ}, 6")
    A(f"s_sub_u32 s{OP.S_NJ}, s{OP.S_T0}, s{OP.S_T1}")
    A(f"s_cmp_eq_u32 s{OP.S_KQ}, 4")
    A("s_cbranch_scc1 L_final")
    A(f"s_cmp_lt_u32 s{OP.S_KQ}, 2")
    A(f"s_cselect_b32 s{S_W4}, s100, s4"); A(f"s_cselect_b32 s{S_W4+1}, s101, s5")
    OP.op_consts_and_weights(A)
    tstamp(3, OP.V_T)
    OP.op_loop2(A, X, 2)
    tstamp(4, OP.V_T)
    A(f"s_branch {X}")
    A.label("L_final")
    OP.op_final(A, X, 2)
    tstamp(4, OP.V_T)
    A.label(X)
    A("s_endpgm")
    return A.text()

def write(path, txt, as_list=False):
    hdr = "".join(l for l in open("cdna_kernels/" + NAME[:-7] + ".s.ref") if l.startswith(";") and "launch" not in l.lower() and "Harness parses" not in l)
    hdr += f"; @launch kernel={NAME} grid=(256,1,1) block=(256,1,1) lds=163840\n" if as_list else "; @launch grid=(256,1,1) block=(256,1,1) lds=163840\n"
    out = hdr + '.amdgcn_target "amdgcn-amd-amdhsa--gfx950"\n.text\n' + txt + '.section .rodata,"a"\n' + kernel_desc(NAME)
    open(path, "w").write(out)

if __name__ == "__main__":
    cfg = json.loads(sys.argv[1]) if len(sys.argv) > 1 else {}
    write("merged.s", merged(cfg), True)
    write("merged_prof.s", merged(cfg, prof=True), True)
    write("merged_slow.s", merged(cfg, force_slow=True), True)
    write("final.s", merged(cfg), False)
```

```python
from asmlib import *

KA = dict(x=0, A_mem0=8, A_Wq=16, A_Wk=24, A_Wv=32, A_Wo=40, B_mem0=64, B_Wq=72, B_Wk=80, B_Wv=88, B_Wo=96,
          gate=112, out=120, dbg=128, ws=136)
X_BYTES = 2048 * 1152
W_BYTES = 576 * 8192
MEM0_BYTES = 8 * 1152
WS_BYTES = 1 << 28
MB = 1 << 20
WS_KV = 0
WS_KVM = 64 * MB
WS_O = 96 * MB
WS_PART = 128 * MB
WS_MEMI = 132 * MB
WS_GATE = 133 * MB
WS_FLAG = 134 * MB
WS_OP = 136 * MB
WS_DBG = 200 * MB

S_X = 8
S_W1 = 12
S_W2 = 16
S_W3 = 20
S_W4 = 24
S_WS = 28
S_OUT = 32
S_M0 = 36
S_GW = 40
S_DBG = 44

def srd(A, dst, lo, nbytes):
    A(f"s_mov_b32 s{dst}, s{lo}")
    A(f"s_mov_b32 s{dst+1}, s{lo+1}")
    A(f"s_mov_b32 s{dst+2}, {hex(nbytes)}")
    A(f"s_mov_b32 s{dst+3}, 0x20000")

def load_ptrs(A):
    A("s_load_dwordx16 s[60:75], s[0:1], 0")
    A("s_load_dwordx16 s[76:91], s[0:1], 64")
    A("s_load_dwordx4 s[92:95], s[0:1], 128")
    A("s_waitcnt lgkmcnt(0)")

def build_common_srds(A):
    srd(A, S_X, 60, X_BYTES)
    srd(A, S_WS, 94, WS_BYTES)
    srd(A, S_OUT, 90, X_BYTES)
    srd(A, S_GW, 88, 1152)
    A(f"s_mov_b32 s{S_DBG}, s92")
    A(f"s_mov_b32 s{S_DBG+1}, s93")

def build_branch_srds(A, s_b):
    A(f"s_cmp_eq_u32 s{s_b}, 0")
    for dst, la, lb, nb in ((S_M0, 62, 76, MEM0_BYTES), (S_W1, 64, 78, W_BYTES), (S_W2, 66, 80, W_BYTES),
                            (S_W3, 68, 82, W_BYTES), (S_W4, 70, 84, W_BYTES)):
        A(f"s_cselect_b32 s{dst}, s{la}, s{lb}")
        A(f"s_cselect_b32 s{dst+1}, s{la+1}, s{lb+1}")
        A(f"s_mov_b32 s{dst+2}, {hex(nb)}")
        A(f"s_mov_b32 s{dst+3}, 0x20000")

DIE_DW = [0, 16, 32, 33, 34, 48, 49, 50, 51]
DBG_OVF = 35 * 4; DBG_TEAM = 4
S_SLOTID = 3

def read_counts(A, sdst, vt):
    A(f"v_and_b32 v{vt}, 63, v0")
    A(f"v_lshlrev_b32 v{vt}, 2, v{vt}")
    A(f"global_load_dword v{vt+1}, v{vt}, {s(S_DBG,2)} sc1")
    A("s_waitcnt vmcnt(0)")
    for i in range(9): A(f"v_readlane_b32 s{sdst+i}, v{vt+1}, {DIE_DW[i]}")
    A("s_nop 3")
    A(f"s_add_u32 s{sdst+9}, s{sdst}, s{sdst+1}")
    for i in range(2, 9): A(f"s_add_u32 s{sdst+9}, s{sdst+9}, s{sdst+i}")

def assign_slot(A, L_exit):
    L_w = A.newlabel("tk_w"); L_home = A.newlabel("tk_home"); L_ov = A.newlabel("tk_ov"); L_ovp = A.newlabel("tk_ovp")
    L_done = A.newlabel("tk_done"); L_w2 = A.newlabel("tk_w2")
    A("s_getreg_b32 s46, hwreg(HW_REG_XCC_ID)")
    A("s_and_b32 s46, s46, 15")
    A("s_min_u32 s46, s46, 8")
    A("s_lshl_b32 s47, s46, 4")
    A("s_add_u32 s48, s46, 30"); A("s_cmp_ge_u32 s46, 2"); A("s_cselect_b32 s47, s48, s47")
    A("s_add_u32 s48, s46, 43"); A("s_cmp_ge_u32 s46, 5"); A("s_cselect_b32 s47, s48, s47")
    A("s_lshl_b32 s47, s47, 2")
    A("v_mov_b32 v1, s47")
    A("v_mov_b32 v2, 1")
    A("v_mov_b32 v4, 0")
    A("v_cmp_eq_u32 vcc, 0, v0")
    A("s_and_saveexec_b64 s[48:49], vcc")
    A(f"s_cbranch_execz {L_w}")
    A(f"global_atomic_add v3, v1, v2, {s(S_DBG,2)} sc0")
    A("s_waitcnt vmcnt(0)")
    A("ds_write_b32 v4, v3")
    A("s_waitcnt lgkmcnt(0)")
    A.label(L_w)
    A("s_mov_b64 exec, s[48:49]")
    A("s_barrier")
    A("ds_read_b32 v3, v4")
    A("s_waitcnt lgkmcnt(0)")
    A("v_readfirstlane_b32 s47, v3")
    A("s_barrier")
    A("s_cmp_ge_u32 s46, 8")
    A(f"s_cbranch_scc1 {L_ov}")
    A("s_cmp_lt_u32 s47, 32")
    A(f"s_cbranch_scc1 {L_home}")
    A.label(L_ov)
    A(f"v_mov_b32 v1, {DBG_OVF}")
    A("v_cmp_eq_u32 vcc, 0, v0")
    A("s_and_saveexec_b64 s[48:49], vcc")
    A(f"s_cbranch_execz {L_w2}")
    A(f"global_atomic_add v3, v1, v2, {s(S_DBG,2)} sc0")
    A("s_waitcnt vmcnt(0)")
    A("ds_write_b32 v4, v3")
    A("s_waitcnt lgkmcnt(0)")
    A.label(L_w2)
    A("s_mov_b64 exec, s[48:49]")
    A("s_barrier")
    A("ds_read_b32 v3, v4")
    A("s_waitcnt lgkmcnt(0)")
    A("v_readfirstlane_b32 s47, v3")
    A("s_barrier")
    A("s_mov_b32 s46, 0x100000")
    A.label(L_ovp)
    A("s_sub_u32 s46, s46, 1")
    A("s_cmp_eq_u32 s46, 0")
    A(f"s_cbranch_scc1 {L_exit}")
    read_counts(A, 50, 1)
    A("s_cmp_lt_u32 s59, 256")
    A(f"s_cbranch_scc1 {L_ovp}")
    A(f"s_mov_b32 s{S_SLOTID}, 0")
    for x in range(8):
        Ln = A.newlabel("tk_n")
        A(f"s_min_u32 s48, s{50+x}, 32")
        A(f"s_sub_u32 s49, 32, s48")
        A(f"s_cmp_lt_u32 s47, s49")
        A(f"s_cbranch_scc0 {Ln}")
        A(f"s_add_u32 s{S_SLOTID}, s48, s47")
        A(f"s_add_u32 s{S_SLOTID}, s{S_SLOTID}, {32*x}")
        A(f"s_branch {L_done}")
        A.label(Ln)
        A(f"s_sub_u32 s47, s47, s49")
    A(f"s_branch {L_exit}")
    A.label(L_home)
    A(f"s_lshl_b32 s{S_SLOTID}, s46, 5")
    A(f"s_add_u32 s{S_SLOTID}, s{S_SLOTID}, s47")
    A.label(L_done)
    A.flush_hazards()

WS_KVP = WS_FLAG
WS_MP = WS_FLAG + 0x10000
WS_OC = WS_FLAG + 0x1000
WS_CNT = WS_FLAG + 0x5000
DBG_INIT = 144

def wait_init(A, L_exit, s_bud, vt, st):
    Lp = A.newlabel("wi")
    A(f"v_mov_b32 v{vt}, {DBG_INIT}")
    A.label(Lp)
    A(f"s_sub_u32 s{s_bud}, s{s_bud}, 1")
    A(f"s_cmp_eq_u32 s{s_bud}, 0")
    A(f"s_cbranch_scc1 {L_exit}")
    A(f"global_load_dword v{vt+1}, v{vt}, {s(S_DBG,2)} sc1")
    A("s_waitcnt vmcnt(0)")
    A(f"v_readfirstlane_b32 s{st}, v{vt+1}")
    A("s_nop 3")
    A(f"s_cmp_lt_u32 s{st}, 192")
    A(f"s_cbranch_scc1 {Lp}")
```

```python
from common import *
import phase_a as PA
from phase_a import S_WI, S_BH, S_C, S_B, S_H, S_WV, S_T0, S_T1, S_T2, S_T3, S_SLOT, S_SEG, S_N, S_LSLOT, S_XOFF, S_KVOFF, S_CNT, XT
from phase_a import V_GOFF, V_TR, V_XG, V_XB, V_XA, V_L16, V_T, V_XF

S_BUD = 99
S_MASK = 60
S_SC = 100; S_NEG = 101
S_BATCH = 92; S_O = 93; S_KM = 94; S_G = 95
L_Q = 3 * XT

WQ = 256
V_QA = 32
V_PKQ = 48
V_QF = 56
V_KF = 88
V_VF = 120
V_MF = 152
V_VM = 184
V_SX = 192
V_SM = 208
V_O = 224
V_KMA = 4 + 0
V_AK = 13; V_AV = 14; V_GT = 15

def gate_part(A):
    Ls = A.newlabel("g_skip")
    A(f"s_cmp_lg_u32 s{S_C}, 0")
    A(f"s_cbranch_scc1 {Ls}")
    X = 32; G = 72; T = 112
    A(f"v_lshrrev_b32 v{T}, 3, v0")
    A(f"v_mul_u32_u24 v{T}, 1152, v{T}")
    A(f"v_and_b32 v{T+1}, 7, v0")
    A(f"v_lshlrev_b32 v{T+1}, 4, v{T+1}")
    A(f"v_add_u32 v{T}, v{T}, v{T+1}")
    A(f"s_lshl_b32 s{S_T0}, s{S_BH}, 2"); A(f"s_add_u32 s{S_T0}, s{S_T0}, s{S_WV}")
    A(f"s_mul_i32 s{S_T1}, s{S_T0}, {8*1152}")
    for i in range(9):
        A(f"buffer_load_dwordx4 {v(X+4*i,4)}, v{T}, {s(S_X,4)}, s{S_T1} offen offset:{128*i}")
        A(f"buffer_load_dwordx4 {v(G+4*i,4)}, v{T+1}, {s(S_GW,4)}, 0 offen offset:{128*i}")
    A(f"v_mov_b32 v{T+2}, 0"); A(f"v_mov_b32 v{T+3}, 0")
    A("s_waitcnt vmcnt(0)")
    for i in range(36):
        A(f"v_lshlrev_b32 v{T+4}, 16, v{X+i}"); A(f"v_lshlrev_b32 v{T+5}, 16, v{G+i}")
        A(f"v_fmac_f32 v{T+2}, v{T+4}, v{T+5}")
        A(f"v_and_b32 v{T+4}, 0xffff0000, v{X+i}"); A(f"v_and_b32 v{T+5}, 0xffff0000, v{G+i}")
        A(f"v_fmac_f32 v{T+3}, v{T+4}, v{T+5}")
    A(f"v_add_f32 v{T+2}, v{T+2}, v{T+3}")
    for pat in ("quad_perm:[1,0,3,2]", "quad_perm:[2,3,0,1]", "row_half_mirror"):
        A(f"v_add_f32_dpp v{T+3}, v{T+2}, v{T+2} {pat} row_mask:0xf bank_mask:0xf")
        A(f"v_mov_b32 v{T+2}, v{T+3}")
    A(f"v_mul_f32 v{T+2}, 0xbfb8aa3b, v{T+2}")
    A(f"v_exp_f32 v{T+2}, v{T+2}")
    A(f"v_add_f32 v{T+2}, 1.0, v{T+2}")
    A(f"v_rcp_f32 v{T+2}, v{T+2}")
    A(f"v_lshrrev_b32 v{T}, 3, v0"); A(f"v_lshlrev_b32 v{T}, 2, v{T}")
    A(f"s_lshl_b32 s{S_T0}, s{S_T0}, 5"); A(f"s_add_u32 s{S_T0}, s{S_T0}, {WS_GATE}")
    A(f"s_mov_b32 exec_lo, 0x01010101"); A(f"s_mov_b32 exec_hi, 0x01010101")
    A(f"buffer_store_dword v{T+2}, v{T}, {s(S_WS,4)}, s{S_T0} offen sc1")
    A(f"s_mov_b64 exec, -1")
    A("s_waitcnt vmcnt(0)")
    A.label(Ls)
    A.flush_hazards()

def phase_b(A, L_exit, first_batch_reg, stride, mem_wait=None, publish=None):
    WS = s(S_WS, 4)
    MF = "v_mfma_f32_32x32x16_bf16"; MF8 = "v_mfma_f32_32x32x8_bf16"
    A(f"s_lshl_b32 s{S_T0}, s{S_H}, 8")
    A(f"s_lshl_b32 s{S_T2}, s{S_WV}, 6")
    A(f"s_add_u32 s{S_T0}, s{S_T0}, s{S_T2}")
    A(f"s_mul_i32 s{S_T1}, s{S_WV}, {XT}")
    PA.load_w32(A, [S_W1], [WQ], V_GOFF, V_TR)
    A("s_barrier")
    A(f"s_mov_b32 s{S_SC}, 0x3e0293ee")
    A(f"s_mov_b32 s{S_NEG}, 0xd028965f")
    A(f"v_and_b32 v{V_QA}, 31, v0"); A(f"v_lshrrev_b32 v{V_QA+1}, 5, v0"); A(f"v_lshlrev_b32 v{V_QA+2}, 2, v{V_QA+1}")
    A(f"v_sub_u32 v{V_QA+2}, v{V_QA}, v{V_QA+2}")
    for r in range(16):
        A(f"v_cmp_le_i32 {s(S_MASK+2*r,2)}, {8*(r>>2) + (r&3)}, v{V_QA+2}")
    A(f"v_bfe_u32 v{V_QA+2}, v0, 1, 2"); A(f"v_lshlrev_b32 v{V_AK}, 6, v{V_QA+2}")
    A(f"v_and_b32 v{V_QA+2}, 1, v0"); A(f"v_lshl_add_u32 v{V_AK}, v{V_QA+2}, 4, v{V_AK}")
    A(f"v_lshl_add_u32 v{V_AK}, v{V_QA+1}, 8, v{V_AK}"); A(f"v_add_u32 v{V_AK}, 32, v{V_AK}")
    A(f"v_and_b32 v{V_QA+2}, 15, v0"); A(f"v_lshlrev_b32 v{V_AV}, 3, v{V_QA+2}")
    A(f"v_lshl_add_u32 v{V_AV}, v{V_QA+1}, 8, v{V_AV}")
    A(f"v_bfe_u32 v{V_QA+2}, v0, 4, 1"); A(f"v_lshl_add_u32 v{V_AV}, v{V_QA+2}, 2, v{V_AV}")
    V_GA = V_GOFF
    A(f"v_lshlrev_b32 v{V_GA}, 2, v{V_QA}")
    V_QW = V_TR
    A(f"s_lshl_b32 s{S_T0}, s{S_WV}, 11"); A(f"s_add_u32 s{S_T0}, s{S_T0}, {L_Q}")
    A(f"v_add_u32 v{V_QW}, s{S_T0}, v{V_L16}")
    A(f"s_mov_b32 s{S_BATCH}, s{first_batch_reg}")
    A(f"s_mul_i32 s{S_XOFF}, s{S_BATCH}, {4*XT}")
    A(f"s_lshl_b32 s{S_LSLOT}, s{S_WV}, 10")
    for t in range(2):
        for cb in range(9): PA.x_dma(A, cb)
        A(f"s_add_u32 s{S_XOFF}, s{S_XOFF}, {XT}")
        A(f"s_add_u32 s{S_LSLOT}, s{S_LSLOT}, {XT}")
    A(f"s_mov_b32 s{S_SLOT}, 0")
    L_loop = A.newlabel("b_loop")
    A.label(L_loop)
    A(f"s_lshl_b32 s{S_SEG}, s{S_BATCH}, 2"); A(f"s_add_u32 s{S_SEG}, s{S_SEG}, s{S_WV}")
    A(f"s_lshl_b32 s{S_T0}, s{S_BH}, 6"); A(f"s_add_u32 s{S_T0}, s{S_T0}, s{S_SEG}")
    A(f"s_lshl_b32 s{S_KVOFF}, s{S_T0}, 14")
    A(f"s_lshl_b32 s{S_KM}, s{S_T0}, 13"); A(f"s_add_u32 s{S_KM}, s{S_KM}, {WS_KVM}")
    A(f"s_lshl_b32 s{S_O}, s{S_SEG}, 6"); A(f"s_add_u32 s{S_O}, s{S_O}, s{S_BH}"); A(f"s_lshl_b32 s{S_O}, s{S_O}, 13")
    A(f"s_add_u32 s{S_O}, s{S_O}, {WS_O}")
    A(f"s_lshl_b32 s{S_G}, s{S_SEG}, 7"); A(f"s_add_u32 s{S_G}, s{S_G}, {WS_GATE}")
    for i in range(4):
        A(f"s_waitcnt vmcnt({9 if i != 1 else 9})" if i != 1 else "s_waitcnt vmcnt(9)")
        A("s_barrier")
        for q in range(4): A(f"v_add_u32 v{V_XA+q}, s{S_SLOT}, v{V_XB+q}")
        def rd(u): A(f"ds_read_b128 {v(V_XF+4*(u%4),4)}, {v(V_XA+(u&3))} offset:{(u>>2)*4096}")
        for u in range(3): rd(u)
        fill = []
        A(f"s_add_u32 s{S_T3}, s{S_KVOFF}, {4096*i}")
        for f in range(4):
            fill.append(lambda f=f: A(f"buffer_load_dwordx4 {v(V_KF+16*i+4*f,4)}, v{V_L16}, {WS}, s{S_T3} offen offset:{f*1024} sc1"))
            fill += [None] * 3
        if i == 0: fill.append(lambda: A(f"buffer_load_dword v{V_GT}, v{V_GA}, {WS}, s{S_G} offen sc1"))
        for cb in range(9): fill += [lambda cb=cb: PA.x_dma(A, cb), None]
        for u in range(36):
            if u + 3 < 36: rd(u + 3)
            A(f"s_waitcnt lgkmcnt({min(3, 35-u)})")
            A(f"{MF} {v(V_QA,16)}, {R(WQ+4*u,4)}, {v(V_XF+4*(u%4),4)}, {'0' if u == 0 else v(V_QA,16)}")
            if fill:
                f = fill.pop(0)
                if f is not None: f()
        assert not any(fill)
        A(f"s_add_u32 s{S_XOFF}, s{S_XOFF}, {XT if i != 1 else XT + (stride-1)*4*XT}")
        A(f"s_add_u32 s{S_LSLOT}, s{S_LSLOT}, {XT}")
        A(f"s_cmp_ge_u32 s{S_LSLOT}, {3*XT}")
        A(f"s_cselect_b32 s{S_T2}, {3*XT}, 0")
        A(f"s_sub_u32 s{S_LSLOT}, s{S_LSLOT}, s{S_T2}")
        A(f"s_add_u32 s{S_SLOT}, s{S_SLOT}, {XT}")
        A(f"s_cmp_ge_u32 s{S_SLOT}, {3*XT}")
        A(f"s_cselect_b32 s{S_SLOT}, 0, s{S_SLOT}")
        for j in range(8): A(f"v_cvt_pk_bf16_f32 v{V_PKQ+j}, v{V_QA+2*j}, v{V_QA+2*j+1}")
        A(f"ds_write_b128 v{V_QW}, {v(V_PKQ,4)} offset:{i*8192}")
        A(f"ds_write_b128 v{V_QW}, {v(V_PKQ+4,4)} offset:{i*8192+1024}")
    A("s_waitcnt lgkmcnt(0)")
    A("s_barrier")
    A(f"s_lshl_b32 s{S_T0}, s{S_WV}, 13"); A(f"s_add_u32 s{S_T0}, s{S_T0}, {L_Q}")
    A(f"v_add_u32 v{V_PKQ}, s{S_T0}, v{V_L16}")
    for f in range(8): A(f"ds_read_b128 {v(V_QF+4*f,4)}, v{V_PKQ} offset:{f*1024}")
    for f in range(8):
        A(f"s_waitcnt lgkmcnt({7-f})")
        A(f"{MF} {v(V_SX,16)}, {v(V_KF+4*f,4)}, {v(V_QF+4*f,4)}, {'0' if f == 0 else v(V_SX,16)}")
    if mem_wait is not None: mem_wait(A)
    for u in range(8): A(f"buffer_load_dwordx4 {v(V_MF+4*u,4)}, v{V_AK}, {WS}, s{S_KM} offen offset:{u*512} sc1")
    A(f"s_add_u32 s{S_T0}, s{S_KM}, 4096")
    for e in range(4):
        A(f"buffer_load_dword v{V_VM+2*e}, v{V_AV}, {WS}, s{S_T0} offen offset:{e*512} sc1")
        A(f"buffer_load_dword v{V_VM+2*e+1}, v{V_AV}, {WS}, s{S_T0} offen offset:{e*512+128} sc1")
    A(f"v_mov_b32 v{V_PKQ}, s{S_NEG}")
    for r in range(16): A(f"v_cndmask_b32 v{V_SX+r}, v{V_PKQ}, v{V_SX+r}, {s(S_MASK+2*r,2)}")
    M = V_QA; M2 = V_QA + 1; LS = V_QA + 2; L2 = V_QA + 3
    A(f"v_max3_f32 v{M}, v{V_SX}, v{V_SX+1}, v{V_SX+2}")
    for r in range(3, 15, 2): A(f"v_max3_f32 v{M}, v{M}, v{V_SX+r}, v{V_SX+r+1}")
    A(f"v_max_f32 v{M}, v{M}, v{V_SX+15}")
    for u in range(8):
        A(f"s_waitcnt vmcnt({15-u})")
        A(f"{MF} {v(V_SM,16)}, {v(V_MF+4*u,4)}, {v(V_QF+4*u,4)}, {'0' if u == 0 else v(V_SM,16)}")
    A(f"v_max3_f32 v{M}, v{M}, v{V_SM}, v{V_SM+1}")
    A(f"v_max3_f32 v{M}, v{M}, v{V_SM+2}, v{V_SM+3}")
    A(f"v_mov_b32 v{M2}, v{M}")
    A(f"v_permlane32_swap_b32 v{M}, v{M2}")
    A(f"v_max_f32 v{M}, v{M}, v{M2}")
    A(f"v_mul_f32 v{M}, s{S_SC}, v{M}")
    Sv = [V_SX + r for r in range(16)] + [V_SM + r for r in range(4)]
    for x in Sv: A(f"v_fma_f32 v{x}, v{x}, s{S_SC}, -v{M}")
    for x in Sv: A(f"v_exp_f32 v{x}, v{x}")
    P = V_QA + 4
    for j in range(10): A(f"v_cvt_pk_bf16_f32 v{P+j}, v{Sv[2*j]}, v{Sv[2*j+1]}")
    A("s_waitcnt vmcnt(0)")
    def pv(e, o):
        A(f"{MF8} {v(o,16)}, {v(V_VM+2*e,2)}, {v(P+8,2)}, 0")
    def pv2(e, o):
        A(f"{MF} {v(o,16)}, {v(V_VF+8*e,4)}, {v(P,4)}, {v(o,16)}")
        A(f"{MF} {v(o,16)}, {v(V_VF+8*e+4,4)}, {v(P+4,4)}, {v(o,16)}")
    OT = [V_O, V_O + 16, V_KF, V_KF + 16]
    for e in range(4): pv(e, OT[e])
    A(f"v_add_f32 v{LS}, v{Sv[0]}, v{Sv[1]}"); A(f"v_add_f32 v{L2}, v{Sv[2]}, v{Sv[3]}")
    for j in range(4, 20, 2):
        A(f"v_add_f32 v{LS}, v{LS}, v{Sv[j]}"); A(f"v_add_f32 v{L2}, v{L2}, v{Sv[j+1]}")
    for e in range(4): pv2(e, OT[e])
    A(f"v_add_f32 v{LS}, v{LS}, v{L2}")
    A(f"v_mov_b32 v{L2}, v{LS}")
    A(f"v_permlane32_swap_b32 v{LS}, v{L2}")
    A(f"v_add_f32 v{LS}, v{LS}, v{L2}")
    A(f"v_rcp_f32 v{LS}, v{LS}")
    A(f"v_sub_f32 v{L2}, 1.0, v{V_GT}")
    A(f"s_cmp_eq_u32 s{S_B}, 0")
    A(f"s_cselect_b64 vcc, -1, 0")
    A(f"v_cndmask_b32 v{L2}, v{L2}, v{V_GT}, vcc")
    A(f"v_mul_f32 v{LS}, v{LS}, v{L2}")
    A(f"s_add_u32 s{S_T0}, s{S_O}, 4096")
    for e in range(4):
        o = OT[e]
        for r in range(16): A(f"v_mul_f32 v{o+r}, v{o+r}, v{LS}")
        for j in range(8): A(f"v_cvt_pk_bf16_f32 v{o+j}, v{o+2*j}, v{o+2*j+1}")
        sr = S_O if e < 2 else S_T0
        A(f"buffer_store_dwordx4 {v(o,4)}, v{V_L16}, {WS}, s{sr} offen offset:{(e&1)*2048} sc1")
        A(f"buffer_store_dwordx4 {v(o+4,4)}, v{V_L16}, {WS}, s{sr} offen offset:{(e&1)*2048+1024} sc1")
    if publish is not None: publish(A)
    A(f"s_add_u32 s{S_BATCH}, s{S_BATCH}, {stride}")
    A(f"s_cmp_lt_u32 s{S_BATCH}, 16")
    A.flush_hazards()
    A(f"s_cbranch_scc1 {L_loop}")
    A("s_waitcnt vmcnt(0)")
```

```python
from common import *

S_VER = 48
S_B = 49; S_H = 50; S_WV = 51
S_T0 = 52; S_T1 = 53; S_T2 = 54; S_T3 = 55
S_STEP = 56; S_BUD = 57
S_KV = 58
S_XM = 59
S_VM = 60
S_PQ = 61
S_P1 = 62
S_RED = 63
S_RED1 = 46
S_MEMW = 66
S_MEMW1 = 47
S_RZ = 64; S_RZ2 = 98
S_MEMG = 65
S_MSL = 67
S_GRAY = 68
S_W256 = 69
S_M0G = 70
S_TMW = 99
S_PAR = 36
S_EXW = 38
S_LG = 35
S_EL = 32
S_EJ = 33
S_FX = 43; S_FW = 40; S_FR = 42; S_F8 = 72
S_CKM = 34
S_MK = 76
S_EXA = 4
S_EXR = 6
S_SC = 100; S_BH = 101
S_ONE = 74

L_TM = 0; L_S = 1024; L_O = 5120; L_MEM = 7168; L_W = 16384; WREG = 36864

V_IDX = 0; V_P1 = 1; V_L16 = 2; V_TW = 3; V_ID = 4; V_SW = 6; V_OW = 7; V_PS = 8
V_WARM = 9
V_TMP = 10
V_AR = 12
V_QK = 24
V_VA = 40
V_KX = 48
V_VX = 56
V_STG = 64
TILE0 = 80

LDS_UNITS = [("q", 0), ("k", 2), ("q", 4), ("k", 6), ("q", 8), ("o", 8), ("o", 0), ("o", 5), ("o", 7)]
ALL_UNITS = [(m, t) for m in "qkvo" for t in range(9)]
REG_UNITS = [u for u in ALL_UNITS if u not in LDS_UNITS]
assert len(REG_UNITS) == 27
REG_OF = {u: TILE0 + 16 * i for i, u in enumerate(REG_UNITS)}
LSLOT = {u: i for i, u in enumerate(LDS_UNITS)}

def bits(A, dst, L, terms, tmp, first=True):
    for pos, n, sh in terms:
        A(f"v_bfe_u32 v{tmp}, v{L}, {pos}, {n}")
        if first:
            A(f"v_lshlrev_b32 v{dst}, {sh}, v{tmp}"); first = False
        else:
            A(f"v_lshl_add_u32 v{dst}, v{tmp}, {sh}, v{dst}")

def sbits(A, dst, src, terms, tmp, base=None):
    first = base is None
    if base is not None: A(f"s_mov_b32 s{dst}, {base}")
    for pos, n, sh in terms:
        A(f"s_bfe_u32 s{tmp}, s{src}, {hex((n << 16) | pos)}")
        A(f"s_lshl_b32 s{tmp}, s{tmp}, {sh}")
        if first: A(f"s_mov_b32 s{dst}, s{tmp}"); first = False
        else: A(f"s_add_u32 s{dst}, s{dst}, s{tmp}")

def rec_setup(A):
    A("v_lshrrev_b32 v1, 6, v0")
    A(f"v_readfirstlane_b32 s{S_WV}, v1")
    A("v_and_b32 v11, 63, v0")
    build_branch_srds(A, S_B)
    L = 11; T = 12
    A(f"s_lshl_b32 s{S_BH}, s{S_B}, 5")
    A(f"s_add_u32 s{S_BH}, s{S_BH}, s{S_H}")
    A(f"s_mov_b32 s{S_EXA}, 0x33333333"); A(f"s_mov_b32 s{S_EXA+1}, 0x33333333")
    A(f"s_mov_b32 s{S_EXR}, 0xf0f0f0f0"); A(f"s_mov_b32 s{S_EXR+1}, 0xf0f0f0f0")
    for d, m in enumerate((0x00110011, 0x00220022, 0x11001100, 0x22002200)):
        A(f"s_mov_b32 s{S_MK+2*d}, {hex(m)}"); A(f"s_mov_b32 s{S_MK+2*d+1}, {hex(m)}")
    A(f"s_mov_b32 s{S_SC}, 0x3e0293ee")
    A(f"s_mov_b32 s{S_BUD}, 0x100000")
    A(f"s_mov_b32 s{S_ONE}, 0x3f803f80"); A(f"s_mov_b32 s{S_ONE+1}, 0x3f803f80")
    A(f"s_lshl_b32 s{S_W256}, s{S_WV}, 8")
    A(f"v_lshlrev_b32 v{V_L16}, 4, v{L}")
    A(f"v_bfe_u32 v{T}, v{L}, 1, 1")
    A(f"v_mul_u32_u24 v{V_IDX}, 0xaaaa, v{T}")
    A(f"v_add_u32 v{V_IDX}, 0x4444, v{V_IDX}")
    A(f"s_mul_i32 s{S_T1}, s{S_WV}, {WREG}"); A(f"s_add_u32 s{S_T1}, s{S_T1}, {L_W}")
    A(f"v_add_u32 v{V_TW}, s{S_T1}, v{V_L16}")
    A(f"v_and_b32 v{T}, 1, v{L}"); A(f"v_lshlrev_b32 v{T}, 4, v{T}")
    A(f"v_mov_b32 v{T+1}, 0x3f80"); A(f"v_lshlrev_b32 v{T}, v{T}, v{T+1}")
    A(f"v_bfe_u32 v{T+1}, v{L}, 1, 3"); A(f"v_lshrrev_b32 v{T+2}, 4, v{L}"); A(f"v_lshlrev_b32 v{T+2}, 1, v{T+2}")
    A(f"v_sub_u32 v{T+1}, v{T+1}, v{T+2}")
    for d in range(2):
        A(f"v_cmp_eq_u32 vcc, {d}, v{T+1}")
        A(f"v_cndmask_b32 v{V_ID+d}, 0, v{T}, vcc")
    A(f"s_lshl_b32 s{S_T2}, s{S_WV}, 10"); A(f"v_add_u32 v{V_SW}, s{S_T2}, v{V_L16}")
    sbits(A, S_T2, S_WV, [(1, 1, 10), (0, 1, 5)], S_T3); A(f"v_add_u32 v{V_OW}, s{S_T2}, v{V_L16}")
    sbits(A, S_TMW, S_WV, [(1, 1, 5), (0, 1, 3)], S_T3)
    bits(A, V_PS, L, [(3, 3, 11), (0, 3, 3)], T)
    bits(A, V_P1, L, [(4, 2, 11), (0, 4, 2)], T)

def rec_bases(A):
    A(f"s_lshl_b32 s{S_KV}, s{S_BH}, 20")
    A(f"s_lshl_b32 s{S_T0}, s{S_WV}, 11")
    A(f"s_add_u32 s{S_KV}, s{S_KV}, s{S_T0}")
    A(f"s_lshl_b32 s{S_T1}, s{S_BH}, 19")
    A(f"s_add_u32 s{S_T1}, s{S_T1}, {WS_KVM}")
    A(f"s_lshl_b32 s{S_T0}, s{S_WV}, 10")
    A(f"s_add_u32 s{S_XM}, s{S_T1}, s{S_T0}")
    A(f"s_lshl_b32 s{S_T0}, s{S_WV}, 9")
    A(f"s_add_u32 s{S_VM}, s{S_T1}, 4096")
    A(f"s_add_u32 s{S_VM}, s{S_VM}, s{S_T0}")
    A(f"s_lshl_b32 s{S_T0}, s{S_B}, 20"); A(f"s_add_u32 s{S_T0}, s{S_T0}, {WS_PART}")
    A(f"s_lshl_b32 s{S_T1}, s{S_H}, 6"); A(f"s_add_u32 s{S_T1}, s{S_T1}, s{S_T0}")
    A(f"s_lshl_b32 s{S_T2}, s{S_WV}, 14"); A(f"s_add_u32 s{S_PQ}, s{S_T1}, s{S_T2}")
    A(f"s_lshl_b32 s{S_T2}, s{S_WV}, 13"); A(f"s_add_u32 s{S_P1}, s{S_T1}, s{S_T2}"); A(f"s_add_u32 s{S_P1}, s{S_P1}, {128*2048}")
    A(f"s_lshl_b32 s{S_T1}, s{S_H}, 11"); A(f"s_add_u32 s{S_T1}, s{S_T1}, s{S_T0}")
    A(f"s_lshl_b32 s{S_T2}, s{S_WV}, 16"); A(f"s_add_u32 s{S_RED}, s{S_T1}, s{S_T2}")
    A(f"s_add_u32 s{S_RED1}, s{S_T1}, {128*2048}")
    A(f"s_cmp_lt_u32 s{S_H}, 16"); A(f"s_cselect_b32 s{S_EJ}, 1, 0")
    A(f"s_cmp_eq_u32 s{S_WV}, 3"); A(f"s_cselect_b32 s{S_EJ}, s{S_EJ}, 0"); A(f"s_cselect_b32 s{S_EL}, s{S_RED1}, s{S_RED}")
    A(f"s_cmp_eq_u32 s{S_WV}, 0"); A(f"s_cselect_b32 s{S_EJ}, 1, s{S_EJ}"); A(f"s_cselect_b32 s{S_FX}, 3072, 0")
    A(f"s_lshl_b32 s{S_T0}, s{S_B}, 16"); A(f"s_add_u32 s{S_T0}, s{S_T0}, {WS_MEMI}")
    A(f"s_lshl_b32 s{S_T2}, s{S_WV}, 11"); A(f"s_add_u32 s{S_T3}, s{S_T2}, 1024")
    A(f"s_cmp_eq_u32 s{S_WV}, 0"); A(f"s_cselect_b32 s{S_T1}, 0, s{S_T3}")
    A(f"s_cselect_b32 s{S_CKM}, {47*16}, {31*16 if False else 's' + str(S_T1)}") if False else None
    A(f"s_add_u32 s{S_MEMG}, s{S_T0}, s{S_T1}")
    A(f"s_add_u32 s{S_M0G}, s{S_T1}, {L_MEM}")
    A(f"s_mov_b32 s{S_CKM}, {31*16}"); A(f"s_cmp_eq_u32 s{S_WV}, 0"); A(f"s_cselect_b32 s{S_CKM}, {47*16}, s{S_CKM}")
    sbits(A, S_MEMW, S_H, [(4, 1, 10), (3, 1, 9), (0, 1, 8), (1, 2, 6)], S_T1)
    A(f"s_add_u32 s{S_MEMW}, s{S_MEMW}, s{S_T3}"); A(f"s_add_u32 s{S_MEMW}, s{S_MEMW}, s{S_T0}")
    A(f"s_lshl_b32 s{S_MEMW1}, s{S_H}, 6"); A(f"s_add_u32 s{S_MEMW1}, s{S_MEMW1}, s{S_T0}")
    A(f"s_lshl_b32 s{S_T2}, s{S_H}, 2"); A(f"s_add_u32 s{S_FW}, s{S_T0}, s{S_T2}"); A(f"s_add_u32 s{S_FW}, s{S_FW}, 12288")
    A(f"s_and_b32 s{S_T2}, s{S_H}, 7"); A(f"s_lshl_b32 s{S_T2}, s{S_T2}, 7"); A(f"s_add_u32 s{S_FR}, s{S_T0}, s{S_T2}")
    A(f"s_add_u32 s{S_FR}, s{S_FR}, 12288")
    A(f"s_lshl_b32 s{S_T2}, s{S_WV}, 10"); A(f"s_add_u32 s{S_FR}, s{S_FR}, s{S_T2}"); A(f"s_add_u32 s{S_FW}, s{S_FW}, s{S_T2}")
    A(f"s_mov_b32 s{S_F8}, 0x01010101"); A(f"s_mov_b32 s{S_F8+1}, 0x01010101")
    A(f"s_mov_b32 s{S_MSL}, 0x4000")
    A(f"s_mov_b32 s{S_PAR}, 0")
    A(f"s_mov_b32 s{S_EXW}, 0x55555555"); A(f"s_mov_b32 s{S_EXW+1}, 0x55555555")
    A(f"s_mov_b32 s{S_GRAY}, 0x8000")
    A(f"s_mov_b32 s{S_STEP}, 0")
    A(f"s_mov_b32 s{S_VER}, 1")
    A(f"s_mov_b32 s{S_LG}, 0")

def advance_ops():
    return [f"s_add_u32 s{S_STEP}, s{S_STEP}, 1",
            f"s_add_u32 s{S_KV}, s{S_KV}, 16384",
            f"s_add_u32 s{S_XM}, s{S_XM}, 8192",
            f"s_add_u32 s{S_VM}, s{S_VM}, 8192",
            f"s_xor_b32 s{S_PAR}, s{S_PAR}, 1",
            f"s_xor_b32 s{S_MSL}, s{S_MSL}, s{S_GRAY}",
            f"s_xor_b32 s{S_GRAY}, s{S_GRAY}, 0xc000",
            f"s_mov_b32 s{S_VER}, 0",
            f"s_lshr_b32 s{S_LG}, s{S_WV}, 1"]

def load_weights(A, nt=" nt", hook=None):
    L = 11; T = 12
    P = dict(q1=48, q0=50, o=52, s=54)
    TQ = 56; TV = 57; TS = 59; TA = 16
    for par in range(2):
        A(f"v_lshrrev_b32 v{T}, 4, v{L}"); A(f"v_lshlrev_b32 v{T}, 1, v{T}"); A(f"v_xor_b32 v{T}, {8*par}, v{T}")
        A(f"v_and_b32 v{T+1}, 15, v{L}"); A(f"v_xor_b32 v{T+1}, v{T}, v{T+1}")
        bits(A, P["q1"] + par, L, [(4, 1, 17), (5, 1, 13)], T)
        bits(A, P["q0"] + par, L, [(4, 2, 13)], T)
        bits(A, P["o"] + par, L, [(4, 1, 0), (5, 1, 5)], T)
        A(f"v_mul_u32_u24 v{P['o']+par}, 1152, v{P['o']+par}")
        A(f"v_lshrrev_b32 v{T}, 3, v{T+1}"); A(f"v_mul_u32_u24 v{P['s']+par}, {64*1152 - 128}, v{T}")
        A(f"v_add_u32 v{P['s']+par}, v{P['s']+par}, v{P['o']+par}")
        for k in P: A(f"v_lshl_add_u32 v{P[k]+par}, v{T+1}, 4, v{P[k]+par}")
    SQ1 = 84; SQ0 = 85; SO = 86; SL = 87
    A(f"s_lshl_b32 s{S_T0}, s{S_H}, 8")
    sbits(A, SQ1, S_WV, [(1, 1, 18), (0, 1, 14)], S_T1); A(f"s_add_u32 s{SQ1}, s{SQ1}, s{S_T0}")
    sbits(A, SQ0, S_WV, [(1, 1, 18), (0, 1, 15)], S_T1); A(f"s_add_u32 s{SQ0}, s{SQ0}, s{S_T0}")
    sbits(A, SO, S_WV, [(1, 1, 3), (0, 1, 1)], S_T1); A(f"s_mul_i32 s{SO}, s{SO}, 1152")
    A(f"s_mul_i32 s{S_T0}, s{S_H}, 147456"); A(f"s_add_u32 s{SO}, s{SO}, s{S_T0}")
    A(f"s_mul_i32 s{SL}, s{S_WV}, {WREG}"); A(f"s_add_u32 s{SL}, s{SL}, {L_W}")
    A(f"v_bfe_u32 v{T}, v{L}, 2, 3"); A(f"v_lshlrev_b32 v{T}, 1, v{T}")
    bits(A, T + 1, L, [(2, 4, 8), (0, 1, 3)], T + 2)
    A(f"v_bfe_u32 v{T+2}, v{L}, 1, 1")
    A(f"s_lshl_b32 s{S_T0}, s{S_WV}, 2"); A(f"s_lshl_b32 s{S_T1}, s{S_WV}, 1")
    def rbase(dst, sreg, add, sh):
        A(f"v_lshlrev_b32 v{T+3}, {sh}, v{T+2}"); A(f"v_add_u32 v{T+3}, s{sreg}, v{T+3}"); A(f"v_add_u32 v{T+3}, {add}, v{T+3}")
        A(f"v_xor_b32 v{T+3}, v{T+3}, v{T}"); A(f"v_lshl_add_u32 v{dst}, v{T+3}, 4, v{T+1}")
    rbase(TQ, S_T0, 0, 1)
    for tau in range(2): rbase(TV + tau, S_T0, 2 * tau, 0); rbase(TS + tau, S_T1, 8 * tau, 0)
    srds = dict(q=S_W1, k=S_W2, v=S_W3, o=S_W4)
    def dma_unit(u, slot):
        m, t = u
        for gb in range(4):
            A(f"s_add_u32 m0, s{SL}, {slot*4096 + gb*1024}")
            if m != "o" and t >= 1:
                A(f"s_add_u32 s{S_T2}, s{SQ1}, {(64*(t-1) + 8*(gb>>1) + 4*(gb&1))*8192}"); vo = P["q1"]
            elif m != "o":
                A(f"s_add_u32 s{S_T2}, s{SQ0}, {(512 + 8*gb)*8192}"); vo = P["q0"]
            elif t < 8:
                A(f"s_add_u32 s{S_T2}, s{SO}, {(64*(t&1) + 4*(gb>>1) + 16*(gb&1))*1152 + (t>>1)*256}"); vo = P["o"]
            else:
                A(f"s_add_u32 s{S_T2}, s{SO}, {(4*(gb>>1) + 16*(gb&1))*1152 + 1024}"); vo = P["s"]
            A(f"buffer_load_dwordx4 v{vo + (gb&1)}, {s(srds[m],4)}, s{S_T2} offen{nt} lds")
    order = REG_UNITS + LDS_UNITS
    for i in range(9): dma_unit(order[i], i)
    issued = 9
    STG = [V_STG, 24]
    for i in range(37):
        if i < 36: A(f"s_waitcnt vmcnt({4*(issued - i - 1)})")
        if i == 0: finish_mem0(A)
        A("s_waitcnt lgkmcnt(0)")
        A("s_barrier")
        if hook is not None: hook(i)
        if i >= 1:
            if i - 1 < 27: dma_unit(order[i + 8], (i - 1) % 9); issued += 1
            else:
                for q in range(4): A(f"ds_write_b128 v{V_TW}, {v(STG[(i-1)&1]+4*q,4)} offset:{((i-1)%9)*4096 + q*1024}")
        if i == 36: break
        u = order[i]
        d = REG_OF[u] if i < 27 else STG[i & 1]
        for tau in range(2):
            for rr in range(4):
                base = TQ if u[0] in "qk" else (TS if u == ("o", 8) else TV) + tau
                if tau == 0 or u[0] not in "qk": A(f"v_add_u32 v{TA+rr}, {L_W + rr*WREG}, v{base}")
            for rr in range(4):
                A(f"ds_read_b64_tr_b16 {R(d+8*tau+2*rr,2)}, v{TA+rr} offset:{(i%9)*4096 + (16*tau if u[0] in 'qk' else 0)}")
    A("s_waitcnt lgkmcnt(0)")

def build_mem0(A):
    L = 11; T = 20
    bits(A, T, L, [(4, 2, 1), (2, 1, 0)], T + 1)
    A(f"v_mul_u32_u24 v{T}, 1152, v{T}")
    A(f"v_mov_b32 v{T+2}, v{T}")
    bits(A, T, L, [(0, 2, 2), (3, 1, 1)], T + 1, first=False)
    bits(A, T + 2, L, [(0, 2, 3), (3, 1, 2)], T + 1, first=False)
    sbits(A, S_T0, S_WV, [(1, 1, 6), (0, 1, 4)], S_T2)
    A(f"s_lshl_b32 s{S_T1}, s{S_WV}, 5")
    A(f"buffer_load_ushort v24, v{T+2}, {s(S_M0,4)}, s{S_T1} offen offset:1024")
    A(f"buffer_load_ushort v25, v{T+2}, {s(S_M0,4)}, s{S_T1} offen offset:1026")
    for t in range(8):
        A(f"buffer_load_ushort v{26+2*t}, v{T}, {s(S_M0,4)}, s{S_T0} offen offset:{128*t}")
        A(f"buffer_load_ushort v{27+2*t}, v{T}, {s(S_M0,4)}, s{S_T0} offen offset:{128*t+32}")
    A(f"v_lshlrev_b32 v{T+1}, 2, v{L}"); A(f"v_add_u32 v{T+1}, s{S_W256}, v{T+1}")

def finish_mem0(A):
    T = 20
    for t in range(9):
        A(f"v_lshl_or_b32 v{24+2*t}, v{25+2*t}, 16, v{24+2*t}")
        A(f"v_min_u32 v{24+2*t}, -2, v{24+2*t}")
        A(f"ds_write_b32 v{T+1}, v{24+2*t} offset:{L_MEM + 1024*t}")

def init_slots(A, st):
    Ls = A.newlabel("r_noinit")
    for i in range(4): A(f"v_mov_b32 v{V_STG+i}, -1")
    def part(sr, sm):
        for i in range(2):
            A(f"buffer_store_dwordx4 {v(V_STG,4)}, v{V_L16}, {s(S_WS,4)}, s{sr} offen offset:{i*1024}{st}")
        A(f"s_mov_b64 exec, 0xf")
        for m in (0, 0x4000, 0x8000, 0xc000):
            A(f"s_add_u32 s{S_T0}, s{sm}, {hex(m)}")
            A(f"buffer_store_dwordx4 {v(V_STG,4)}, v{V_L16}, {s(S_WS,4)}, s{S_T0} offen{st}")
        A(f"s_mov_b64 exec, -1")
    part(S_RED, S_MEMW)
    A(f"s_mov_b64 exec, 0xff")
    A(f"buffer_store_dwordx4 {v(V_STG,4)}, v{V_L16}, {s(S_WS,4)}, s{S_FR} offen{st}")
    A(f"s_mov_b64 exec, -1")
    A(f"s_lshl_b32 s{S_T1}, s{S_WV}, 5"); A(f"s_add_u32 s{S_T1}, s{S_T1}, s{S_H}")
    A(f"s_cmp_ge_u32 s{S_T1}, 16")
    A(f"s_cbranch_scc1 {Ls}")
    part(S_RED1, S_MEMW1)
    A.label(Ls)
    A.flush_hazards()

class Fill:
    def __init__(self): self.s = []; self.m = []; self.v = []
    def pull(self, ns=1, nm=1, nv=1):
        if nm and not self.m: ns += 1
        for q, n in ((self.s, ns), (self.m, nm), (self.v, nv)):
            for _ in range(n):
                if q: q.pop(0)()
    def drain(self):
        for q in (self.s, self.m, self.v):
            while q: q.pop(0)()

def rec_loop(A, st, L_exit, stamp=None, kv_wait=None, publish=None, cfg=None):
    cfg = cfg or {}
    lg = Trk(A, "lgkmcnt", 15); vm = Trk(A, "vmcnt", 63)
    _st = stamp
    smap = cfg.get("smap", {"0": 0, "1": 1, "2": 2, "3": 3, "4": 4, "5": 5})
    def stamp(name):
        if _st is not None and str(name) in smap: _st(smap[str(name)])
    L_top = A.newlabel("r_top"); L_last = A.newlabel("r_last"); L_redo = A.newlabel("r_redo"); L_go = A.newlabel("r_go")
    L_again = A.newlabel("r_again"); L_back = A.newlabel("r_back")
    SM = "v_smfmac_f32_16x16x64_bf16"; MF = "v_mfma_f32_16x16x32_bf16"; MF16 = "v_mfma_f32_16x16x16_bf16"
    QP = "quad_perm:[2,3,0,1] row_mask:0xf bank_mask:0xf"
    WS = s(S_WS, 4)
    KVL = "sc1 nt" if cfg.get("nt", 0) else "sc1"
    F = Fill()
    op = lambda t: (lambda: A(t))
    pend = {}
    def tile_ops(u, tau, dst):
        sl = LSLOT[u]; tag = f"{u[0]}{u[1]}_{tau}"; pend[tag] = 2
        def one(q):
            pend[tag] -= 1
            lg.issue(f"ds_read_b128 {v(dst+8*tau+4*q,4)}, v{V_TW} offset:{sl*4096 + tau*2048 + q*1024}", tag)
        return [(lambda q=q: one(q)) for q in range(2)]
    def stg_ops(u, dst): return tile_ops(u, 0, dst) + tile_ops(u, 1, dst)
    def stg_load(u, dst):
        for f in stg_ops(u, dst): f()
    def stg_wait(u, tau):
        tag = f"{u[0]}{u[1]}_{tau}"
        assert pend[tag] == 0, (tag, pend)
        lg.wait(tag)
    def zero(first, n):
        for i in range(0, n, 2): A(f"v_mov_b64 {v(first+i,2)}, 0")
    def pre1():
        stg_load(("q", 0), V_STG)
        zero(V_QK, 24)
    def pre2():
        A(f"v_and_b32 v{V_TMP}, 0x300, v{V_L16}")
        A(f"v_add_u32 v{V_VX+4}, v{V_TMP}, v{V_L16}")
        A(f"v_and_b32 v{V_TMP}, 0x80, v{V_L16}")
        A(f"v_add_u32 v{V_KX+4}, v{V_TMP}, v{V_VX+4}")
        A(f"v_min_u32 v{V_TMP}, s{S_CKM}, v{V_L16}")
        A(f"v_bfe_u32 v{V_TMP+1}, v{V_TMP}, 5, 4")
        A(f"v_add_lshl_u32 v{V_TMP}, v{V_TMP}, v{V_TMP+1}, 2")
        A(f"v_add_u32 v{V_TMP+1}, s{S_M0G}, v{V_TMP}")

    if kv_wait is not None: kv_wait(A, True)
    pre1(); pre2()
    lg.force_all()
    A("s_barrier")
    A.label(L_top)
    lg.done = lg.n
    vm.n += 16; vm.done = 0
    stamp(0)
    NE = cfg.get("ne", 5)
    order2 = list(range(NE, 9))
    def a_read(i):
        blk = i if i < 9 else order2[i - 9]
        lg.issue(f"ds_read_b128 {v(V_AR+4*(i%3),4)}, v{V_L16} offset:{L_MEM + 1024*blk}", f"a{i}")
    NA = 9 + len(order2)
    a_read(0); a_read(1)
    L_ng = A.newlabel("r_ng"); L_again1 = A.newlabel("r_again1"); L_back1 = A.newlabel("r_back1")
    A(f"s_cmp_eq_u32 s{S_LG}, 0")
    A(f"s_cbranch_scc1 {L_ng}")
    A(f"buffer_load_dwordx4 v{V_L16}, {WS}, s{S_MEMG} offen sc1 lds")
    A(f"buffer_load_dwordx4 v{V_L16}, {WS}, s{S_MEMG} offen offset:1024 sc1 lds")
    A.label(L_ng)
    vm.tags["gat1"] = vm.n
    vm.n += 2
    vm.tags["gat"] = vm.n
    lg.wait("a0")
    def tile(u, tau, stg=V_STG):
        return v(stg + 8 * tau, 8) if u in LSLOT else R(REG_OF[u] + 8 * tau, 8)
    nxt = {("q", 0): ("k", 2), ("k", 2): ("q", 4), ("q", 4): ("k", 6), ("k", 6): ("q", 8), ("q", 8): ("o", 8)}
    ck = 3; cks = (3,)
    F.s += [op(f"s_add_u32 s{S_T0}, s{S_KV}, 8192"), op(f"s_add_u32 s{S_T2}, s{S_KV}, 16384")]
    F.v += [op(f"v_and_b32 v{V_TMP}, 0x1f0, v{V_L16}"), op(f"v_lshlrev_b32 v{V_TMP}, 2, v{V_TMP}"),
            op(f"v_and_b32 v{V_WARM}, 0x200, v{V_L16}"), op(f"v_lshl_add_u32 v{V_WARM}, v{V_WARM}, 4, v{V_TMP}")]
    for t in range(9):
        af = v(V_AR + 4 * (t % 3), 4)
        ms = ["k", "q"] if (("q", t) in LSLOT and t != 0) else ["q", "k"]
        if t < NE: ms = (ms + ["v"]) if t == 0 else (["v"] + ms)
        seq = [(m, tau) for m in ms for tau in range(2)]
        last = len(seq) - 1
        for n, (m, tau) in enumerate(seq):
            if (m, t) in LSLOT: stg_wait((m, t), tau)
            acc = V_VA + 4 * tau if m == "v" else V_QK + 8 * tau + (0 if m == "q" else 4)
            A(f"{SM} {v(acc,4)}, {af}, {tile((m,t),tau)}, v{V_IDX}")
            if (m, t) in nxt: F.m += tile_ops(nxt[(m, t)], tau, V_STG)
            if t in cks and n == 0:
                vm.wait("gat" if t == ck else "gat1")
                lg.issue(f"ds_read_b32 v{V_TMP}, v{V_TMP+1}", "ck")
            elif t in cks and n == 3:
                lg.wait("ck"); F.pull(0, 1, 0)
                A(f"v_cmp_eq_u32 vcc, -1, v{V_TMP}")
            elif t in cks and n == last:
                lg.wait(f"a{t+1}")
                if t == ck:
                    A(f"s_cbranch_vccnz {L_again}")
                    A.label(L_back)
                else:
                    A(f"s_cbranch_vccnz {L_again1}")
                    A.label(L_back1)
                A("s_barrier")
                a_read(t + 2)
                if t == ck:
                    F.s += [op(f"s_xor_b32 s{S_T1}, s{S_GRAY}, 0xc000"), op(f"s_xor_b32 s{S_MEMG}, s{S_MEMG}, s{S_T1}")]
                    F.v += [op(f"v_add_u32 v{V_TMP+1}, s{S_TMW}, v{V_L16}")]
                    if publish is not None: publish(A, vm, F)
            elif t == 1 and n == 0:
                F.pull()
            elif t == 1 and n == cfg.get("b1", 2):
                Lsk = A.newlabel("r_sk")
                A(f"s_cmp_lg_u32 s{S_WV}, 1")
                A(f"s_cbranch_scc1 {Lsk}")
                A(f"s_waitcnt vmcnt({vm.n - vm.tags['gat']})")
                A.label(Lsk)
            elif t == 1 and n == cfg.get("b1", 2) + 1:
                if n == last: lg.wait("a2")
                A("s_barrier")
                a_read(3)
            elif n == 0:
                F.pull(1, 0, 0)
                if t + 2 < NA: a_read(t + 2)
                F.pull(0, 0, 1)
            elif n == last:
                if t + 1 < NA: lg.wait(f"a{t+1}")
                F.pull(0, 1, 1)
            else:
                F.pull()
            vq = {(0, 0): lambda: vm.issue(f"buffer_load_dwordx4 {v(V_KX,4)}, v{V_KX+4}, {WS}, s{S_KV} offen {KVL}"),
                  (0, 4): lambda: vm.issue(f"buffer_load_dwordx4 {v(V_KX+4,4)}, v{V_KX+4}, {WS}, s{S_KV} offen offset:128 {KVL}", "kx"),
                  (1, 3): lambda: vm.issue(f"buffer_load_dwordx4 {v(V_VX,4)}, v{V_VX+4}, {WS}, s{S_T0} offen {KVL}"),
                  (2, 0): lambda: vm.issue(f"buffer_load_dwordx4 {v(V_VX+4,4)}, v{V_VX+4}, {WS}, s{S_T0} offen offset:256 {KVL}", "vx")}
            if (t, n) in vq: F.m.insert(0, vq[(t, n)])
            def warm():
                if cfg.get("w32", 0): A(f"s_mov_b64 exec, {s(S_EXW,2)}")
                vm.issue(f"buffer_load_dword v{V_WARM}, v{V_WARM}, {WS}, s{S_T2} offen sc1", "warm")
                if cfg.get("w32", 0): A(f"s_mov_b64 exec, -1")
            if t == 3 and n == 3: F.m += [warm]
            if t == 5 and n == 1 and kv_wait is not None:
                assert not F.v
                F.v += [op(f"v_bfe_u32 v{V_TMP}, v{V_L16}, 2, 4")]
            if t == 5 and n == 2 and kv_wait is not None:
                F.m += [lambda: vm.issue(f"buffer_load_dword v{V_WARM}, v{V_TMP}, {WS}, s{S_RZ2} offen sc1")]
    assert not F.s and not F.v
    stamp(1)
    vs = {"i": 0}
    def vsm(n=1, nv=1):
        for _ in range(n):
            i = vs["i"]
            if i >= 2 * len(order2): return
            t, tau = i >> 1, i & 1
            if tau == 0: lg.wait(f"a{9+t}")
            A(f"{SM} {v(V_VA+4*tau,4)}, {v(V_AR+4*((9+t)%3),4)}, {tile(('v',order2[t]),tau)}, v{V_IDX}")
            if tau == 0 and 9 + t + 2 < NA:
                a_read(9 + t + 2); F.pull(0, 0, nv)
            else: F.pull(0, 1, nv)
            vs["i"] += 1
    q0 = V_QK; k0 = V_QK + 4; q1 = V_QK + 8; k1 = V_QK + 12
    def fold3(acc, dst):
        return [f"v_add_f32 v{acc}, v{acc}, v{acc+2}", f"v_add_f32 v{acc+1}, v{acc+1}, v{acc+3}",
                f"v_cvt_pk_bf16_f32 v{dst}, v{acc}, v{acc+1}"]
    for o in fold3(k0, k0 + 3) + fold3(k1, k1 + 3) + fold3(q0, k0 + 2): A(o)
    A(f"v_cmp_u_f32 vcc, v{q0}, v{q0+1}")
    for o in fold3(q1, k1 + 2)[:2]: A(o)
    A(f"{MF16} {v(q0,4)}, {v(k0+2,2)}, {v(V_ID,2)}, 0")
    A(fold3(q1, k1 + 2)[2])
    A(f"s_cbranch_vccnz {L_redo}")
    A.label(L_go)
    A(f"{MF16} {v(q1,4)}, {v(k1+2,2)}, {v(V_ID,2)}, 0")
    vsm(1, 0)
    X = k0
    A(f"v_cvt_pk_bf16_f32 v{X}, v{q0}, v{q0+1}")
    A(f"v_cvt_pk_bf16_f32 v{X+1}, v{q0+2}, v{q0+3}")
    vm.wait("kx")
    A(f"v_cvt_pk_bf16_f32 v{X+2}, v{q1}, v{q1+1}")
    A(f"v_cvt_pk_bf16_f32 v{X+3}, v{q1+2}, v{q1+3}")
    S0 = q0; S1 = q1; S2 = k1
    A(f"{MF} {v(S0,4)}, {v(V_KX,4)}, {v(X,4)}, 0")
    A(f"{MF} {v(S1,4)}, {v(V_KX+4,4)}, {v(X,4)}, 0")
    A(f"{MF} {v(S2,4)}, {v(X,4)}, {v(X,4)}, 0")
    A(f"s_mov_b64 exec, {s(S_EXA,2)}")
    lg.issue(f"ds_write_b128 v{V_SW}, {v(S0,4)} offset:{L_S}")
    lg.issue(f"ds_write_b128 v{V_SW}, {v(S1,4)} offset:{L_S+32}")
    lg.issue(f"ds_write_b64 v{V_TMP+1}, {v(S2+2,2)} offset:{L_TM}", "sw")
    A(f"s_mov_b64 exec, -1")
    vsm(cfg.get("v1", 5))
    lg.wait("sw")
    A("s_barrier")
    stamp(2)
    RB = [q0, q1, k1, V_KX + 4]; RM = V_KX
    for w in range(4):
        lg.issue(f"ds_read_b128 {v(RB[w],4)}, v{V_L16} offset:{L_S + w*1024}", f"s{w}")
    lg.issue(f"ds_read_b128 {v(RM,4)}, v{V_L16} offset:{L_TM}", "sm")
    if not cfg.get("nopub"): vm.issue(f"buffer_store_dwordx4 {v(X,4)}, v{V_L16}, {WS}, s{S_XM} offen sc1")
    vsm(cfg.get("v2", 2), 0)
    def needs(tag, text):
        def f():
            lg.wait(tag); A(text)
        return f
    F.v += [needs("s1", f"v_add_f32 v{RB[0]+r}, v{RB[0]+r}, v{RB[1]+r}") for r in range(4)]
    F.v += [needs("s3", f"v_add_f32 v{RB[2]+r}, v{RB[2]+r}, v{RB[3]+r}") for r in range(4)]
    F.v += [needs("sm", f"v_add_f32 v{RM+r}, v{RM+r}, v{RM+2+r}") for r in range(2)]
    F.v += [op(f"v_add_f32 v{RB[0]+r}, v{RB[0]+r}, v{RB[2]+r}") for r in range(4)]
    F.v += [op(f"v_add_f32_dpp v{RM+2+r}, v{RM+r}, v{RM+r} {QP}") for r in range(2)]
    Sv = [q0, q0 + 1, q0 + 2, q0 + 3, RM + 2, RM + 3]
    M = k0; M2 = k0 + 1
    VM0 = V_VA; PUB = V_VA + 6
    PX = q1; PM = k1; ONE = V_KX + 4
    F.v += [op(f"v_max3_f32 v{M}, v{Sv[0]}, v{Sv[1]}, v{Sv[2]}"),
            op(f"v_max3_f32 v{M2}, v{Sv[3]}, v{Sv[4]}, v{Sv[5]}"),
            op(f"v_max_f32 v{M}, v{M}, v{M2}"),
            op(f"v_mov_b64 {v(ONE,2)}, {s(S_ONE,2)}"),
            op(f"v_mov_b64 {v(ONE+2,2)}, {s(S_ONE,2)}"),
            op(f"v_max_f32_dpp v{M2}, v{M}, v{M} {QP}"),
            op(f"v_mov_b32 v{M}, v{M2}"),
            op(f"v_mov_b32 v{PM+1}, 0"),
            op(f"v_lshrrev_b32 v{V_TMP+1}, 1, v{V_L16}"),
            op(f"v_permlane16_swap_b32 v{M}, v{M2}"),
            op(f"v_max_f32 v{M}, v{M}, v{M2}"),
            op(f"v_mov_b32 v{M2}, v{M}")]
    vsm(18, cfg.get("nv", 2))
    F.drain()
    A(f"v_add_f32 v{V_VA}, v{V_VA}, v{V_VA+2}")
    A(f"v_add_f32 v{V_VA+1}, v{V_VA+1}, v{V_VA+3}")
    A(f"v_permlane32_swap_b32 v{M}, v{M2}")
    A(f"v_max_f32 v{M}, v{M}, v{M2}")
    A(f"v_mul_f32 v{M}, s{S_SC}, v{M}")
    for x in Sv: A(f"v_fma_f32 v{x}, v{x}, s{S_SC}, -v{M}")
    for x in Sv: A(f"v_exp_f32 v{x}, v{x}")
    A(f"v_cvt_pk_bf16_f32 v{PX}, v{Sv[0]}, v{Sv[1]}")
    A(f"v_cvt_pk_bf16_f32 v{PX+1}, v{Sv[2]}, v{Sv[3]}")
    A(f"v_cvt_pk_bf16_f32 v{PM}, v{Sv[4]}, v{Sv[5]}")
    A(f"v_mov_b32_dpp v{PX+2}, v{PX} {QP}")
    A(f"v_mov_b32_dpp v{PX+3}, v{PX+1} {QP}")
    O0 = V_AR; O1 = V_AR + 4; LS = q0
    vm.wait("vx")
    A(f"{MF16} {v(LS,4)}, {v(ONE,2)}, {v(PM,2)}, 0")
    A(f"v_add_f32 v{V_VA+4}, v{V_VA+4}, v{V_VA+6}")
    A(f"v_add_f32 v{V_VA+5}, v{V_VA+5}, v{V_VA+7}")
    A(f"{MF} {v(O0,4)}, {v(V_VX,4)}, {v(PX,4)}, 0")
    A(f"v_cvt_pk_bf16_f32 v{PUB}, v{V_VA}, v{V_VA+1}")
    A(f"v_cvt_pk_bf16_f32 v{PUB+1}, v{V_VA+4}, v{V_VA+5}")
    A(f"{MF} {v(LS,4)}, {v(ONE,4)}, {v(PX,4)}, {v(LS,4)}")
    A(f"v_mov_b32 v{VM0+1}, v{PUB+1}")
    A(f"v_mov_b32 v{VM0}, v{PUB+1}")
    A(f"{MF} {v(O1,4)}, {v(V_VX+4,4)}, {v(PX,4)}, 0")
    A(f"{MF16} {v(O0,4)}, {v(PUB,2)}, {v(PM,2)}, {v(O0,4)}")
    A(f"v_rcp_f32 v{LS}, v{LS}")
    A(f"{MF16} {v(O1,4)}, {v(VM0,2)}, {v(PM,2)}, {v(O1,4)}")
    if not cfg.get("nopub"): vm.issue(f"buffer_store_dwordx2 {v(PUB,2)}, v{V_TMP+1}, {WS}, s{S_VM} offen sc1")
    A(f"s_cmp_eq_u32 s{S_STEP}, 63")
    A(f"s_cbranch_scc1 {L_last}")
    for i in range(4): A(f"v_mul_f32 v{O0+i}, v{O0+i}, v{LS}")
    for i in range(2): A(f"v_cvt_pk_bf16_f32 v{O0+i}, v{O0+2*i}, v{O0+2*i+1}")
    for i in range(4, 8): A(f"v_mul_f32 v{O0+i}, v{O0+i}, v{LS}")
    for i in range(2, 4): A(f"v_cvt_pk_bf16_f32 v{O0+i}, v{O0+2*i}, v{O0+2*i+1}")
    A(f"s_mov_b64 exec, {s(S_EXA,2)}")
    lg.issue(f"ds_write_b128 v{V_OW}, {v(O0,4)} offset:{L_O}", "ow")
    A(f"s_mov_b64 exec, -1")
    STG2 = V_KX
    W = V_QK
    stg_load(("o", 0), STG2)
    lg.wait("ow")
    A("s_barrier")
    stamp(3)
    OA = V_AR + 4
    lg.issue(f"ds_read_b128 {v(OA,4)}, v{V_L16} offset:{L_O}", "oa0")
    lg.issue(f"ds_read_b128 {v(OA+4,4)}, v{V_L16} offset:{L_O+1024}", "oa1")
    zero(W, 16)
    where = {("o", 8): V_STG, ("o", 0): STG2, ("o", 5): STG2, ("o", 7): V_STG}
    PK = V_AR
    def fold_ops(n):
        acc = W + 4 * (n % 6)
        dst = V_TMP if n == 0 else PK + 2 * (((n - 1) >> 1) & 1) + ((n - 1) & 1)
        r = [op(o) for o in fold3(acc, dst)]
        if n == 0 or n & 1: r.append(op(f"v_and_or_b32 v{dst}, v{dst}, -2, s{S_PAR}"))
        return r
    def zero_ops(n):
        acc = W + 4 * (n % 6)
        return [op(f"v_mov_b64 {v(acc,2)}, 0"), op(f"v_mov_b64 {v(acc+2,2)}, 0")]
    def wsm(n, u, tau, kh, nv=2):
        if u in LSLOT: stg_wait(u, tau)
        lg.wait(f"oa{kh}")
        b = v(where[u] + 8 * tau, 8) if u in LSLOT else R(REG_OF[u] + 8 * tau, 8)
        A(f"{SM} {v(W+4*(n%6),4)}, {v(OA+4*kh,4)}, {b}, v{V_IDX}")
        F.pull(1, 1, nv)
    PR = [S_PQ, S_T0, S_T1, S_T2]
    pstore = lambda p: (lambda: vm.issue(f"buffer_store_dwordx2 {v(PK+2*(p&1),2)}, v{V_PS}, {WS}, s{PR[p]} offen{st}"))
    F.s += [op(f"s_add_u32 s{PR[p]}, s{S_PQ}, {p*65536}") for p in (1, 2, 3)]
    F.v += zero_ops(4) + zero_ops(5)
    seq = [(0, ("o", 8), 0, 0), (0, ("o", 8), 1, 1)]
    for p in range(4):
        for tau in range(2): seq += [(1 + 2*p + tau, ("o", 2*p), tau, 0), (1 + 2*p + tau, ("o", 2*p + 1), tau, 1)]
    nvs = {1: 1, 2: 1, 3: 2}
    PA_ = V_KX; PB_ = V_VX
    epos = cfg.get("epos", 16)
    for k, (n, u, tau, kh) in enumerate(seq, 1):
        if k == 2: F.m += tile_ops(("o", 7), 0, V_STG)
        if k == 4: F.m += tile_ops(("o", 5), 0, STG2); F.v += fold_ops(0)
        if k == 6:
            assert not F.v and not F.m
            F.m += [lambda: vm.issue(f"buffer_store_dword v{V_TMP}, v{V_P1}, {WS}, s{S_P1} offen{st}")] + tile_ops(("o", 5), 1, STG2)
            F.v += fold_ops(1)
        if k == 8: F.v += fold_ops(2)
        if k == 9:
            assert not F.v and not F.m
            F.m += [pstore(0)] + tile_ops(("o", 7), 1, V_STG)
            F.v += zero_ops(0)
        if k == 10: F.v += fold_ops(3)
        if k == 12: F.v += fold_ops(4) + zero_ops(1)
        if k == 14:
            assert not F.v and not F.m
            F.m += [pstore(1)]
            F.v += zero_ops(2)[:1] + fold_ops(5)[:3] + zero_ops(2)[1:]
        if k == 16: F.v += fold_ops(5)[3:] + fold_ops(6)
        if k == 18:
            assert not F.v and not F.m
            F.m += [pstore(2)]
            F.s += [op(f"s_cmp_eq_u32 s{S_EJ}, 0")]
            F.v += fold_ops(7)
        wsm(n, u, tau, kh, nvs.get(k, 3 if k in (8, 12, 14) else 2))
    F.drain()
    def loads(P, sr):
        for i in range(2):
            A(f"buffer_load_dwordx4 {v(P+4*i,4)}, v{V_L16}, {WS}, s{sr} offen offset:{i*1024} sc1")
    Lne = A.newlabel("r_ne")
    nh = len(A.hist)
    A(f"s_cbranch_scc1 {Lne}")
    keep = list(A.hist)
    loads(PA_, S_EL)
    A.hist = keep
    A.label(Lne)
    for o in fold_ops(8): o()
    pstore(3)()
    stamp(4)
    lg.done = lg.n
    SEL = V_AR + 4; D = V_AR + 8; D2 = V_VA; CKR = V_AR; FA = V_AR + 1; FV = V_VX; FD = V_AR + 3
    sel_ops = [f"v_bfe_u32 v{D}, v{V_L16}, 6, 1", f"v_lshlrev_b32 v{D}, 4, v{D}", f"v_mov_b32 v{D+1}, 0x3f80",
               f"v_lshlrev_b32 v{D}, v{D}, v{D+1}"]
    sel_ops += [f"v_cndmask_b32 v{SEL+i}, 0, v{D}, {s(S_MK+2*i,2)}" for i in range(4)]
    sel_ops += [f"v_lshrrev_b32 v{V_TMP}, 4, v{V_L16}", f"v_and_b32 v{V_TMP}, 0x30, v{V_TMP}",
                f"v_bfe_u32 v{V_TMP+1}, v{V_L16}, 4, 2", f"v_lshl_add_u32 v{V_TMP}, v{V_TMP+1}, 2, v{V_TMP}",
                f"v_cndmask_b32 v{V_TMP+1}, 0, -1, {s(S_EXR,2)}",
                f"v_and_b32 v{D}, 0xc000, v{V_TMP+1}",
                f"v_xor_b32 v{D}, s{S_MSL}, v{D}",
                f"v_add_u32 v{V_TMP}, v{V_TMP}, v{D}"]
    poll = lambda: A(f"buffer_load_dword v{FV}, v{FA}, {WS}, s{S_FR} offen sc1")
    def tags(Ps, waits, Lbad):
        first = True
        for P, w in zip(Ps, waits):
            if w is not None: A(f"s_waitcnt vmcnt({w})")
            for r in (P, P + 2):
                if first: A(f"v_xor_b32 v{CKR}, s{S_PAR}, v{r}"); first = False
                else: A(f"v_bitop3_b32 v{CKR}, v{CKR}, v{r}, s{S_PAR} bitop3:0xf6")
        A(f"v_and_b32 v{CKR}, 1, v{CKR}")
        A(f"v_cmp_ne_u32 vcc, 0, v{CKR}")
        return lambda: A(f"s_cbranch_vccnz {Lbad}")
    def mm(P, Dd):
        for i in range(2): A(f"{MF} {v(Dd,4)}, {v(SEL,4)}, {v(P+4*i,4)}, {'0' if i == 0 else v(Dd,4)}")
    def fin(Dd, sr):
        A(f"v_add_f32_dpp v{Dd+2}, v{Dd}, v{Dd} row_ror:8 row_mask:0xf bank_mask:0xf")
        A(f"v_add_f32_dpp v{Dd+3}, v{Dd+1}, v{Dd+1} row_ror:8 row_mask:0xf bank_mask:0xf")
        A(f"v_add_f32_dpp v{Dd}, v{Dd+2}, v{Dd+2} row_ror:4 row_mask:0xf bank_mask:0xf")
        A(f"v_add_f32_dpp v{Dd+1}, v{Dd+3}, v{Dd+3} row_ror:4 row_mask:0xf bank_mask:0xf")
        A(f"v_cvt_pk_bf16_f32 v{Dd}, v{Dd}, v{Dd+1}")
        A(f"v_min_u32 v{Dd}, -2, v{Dd}")
        A(f"v_or_b32 v{Dd}, v{Dd}, v{V_TMP+1}")
        if Dd == D: A(f"v_mov_b32 v{FV}, -1")
        A(f"buffer_store_dword v{Dd}, v{V_TMP}, {WS}, s{sr} offen{st}")
    def budget(Lp):
        A(f"s_sub_u32 s{S_BUD}, s{S_BUD}, 1")
        A(f"s_cmp_lg_u32 s{S_BUD}, 0")
        A(f"s_cbranch_scc1 {Lp}")
        A(f"s_branch {L_exit}")
    def flag():
        stamp("fl")
        A(f"s_mov_b64 exec, {s(S_F8,2)}")
        A(f"buffer_store_dword v{FD}, v{V_L16}, {WS}, s{S_FW} offen{st}")
        A(f"s_mov_b64 exec, -1")
    cnt = lambda: A(f"s_add_u32 s84, s84, 1") if cfg.get("count") else None
    L_late = A.newlabel("r_late"); L_two = A.newlabel("r_two"); L_h2 = A.newlabel("r_h2"); L_h2b = A.newlabel("r_h2b")
    La = A.newlabel("r_a"); Lab = A.newlabel("r_ab"); Lb = A.newlabel("r_b"); Lbb = A.newlabel("r_bb"); Lc = A.newlabel("r_c"); Lcb = A.newlabel("r_cb")
    A(f"s_cmp_ge_u32 s{S_WV}, 2")
    A(f"s_cbranch_scc1 {L_late}")
    def prep(skip=0):
        for o in sel_ops[skip:]: A(o)
        A(f"v_bfe_u32 v{FA}, v{V_L16}, 2, 7")
        A(f"v_and_b32 v{FD}, 0x3c, v{FA}")
        A(f"v_add_u32 v{FD}, s{S_FX}, v{FD}")
        A(f"s_mov_b32 exec_lo, 0")
        A(f"v_mov_b32 v{FA}, v{FD}")
        A(f"s_mov_b32 exec_lo, -1")
        A(f"v_mov_b32 v{FD}, s{S_STEP}")
    PC_ = V_QK; PD_ = V_QK + 8
    def copy(dst, src):
        for i in range(0, 8, 2): A(f"v_mov_b64 {v(dst+i,2)}, {v(src+i,2)}")
    nb = cfg.get("nb", 12)
    L1 = A.newlabel("r_w1"); Ld = A.newlabel("r_d"); Ldb = A.newlabel("r_db"); Lb2 = A.newlabel("r_b2"); Lbb2 = A.newlabel("r_bb2")
    A(f"s_cmp_eq_u32 s{S_WV}, 1")
    A(f"s_cbranch_scc1 {L1}")
    for o in sel_ops[:nb]: A(o)
    loads(PC_, S_RED)
    prep(nb)
    A("s_waitcnt vmcnt(3)")
    A.label(La)
    br = tags([PA_, PA_ + 4], [None, None], Lab)
    mm(PA_, D); br(); flag(); fin(D, S_MEMW)
    A(f"s_branch {L_h2}")
    A.label(Lab)
    cnt(); A("s_waitcnt vmcnt(0)"); copy(PA_, PC_); loads(PC_, S_RED); budget(La)
    A.label(L1)
    n1 = cfg.get("n1", 16)
    for o in sel_ops[:n1]: A(o)
    for _ in range(cfg.get("d1", 0)): A("s_nop 3")
    loads(PA_, S_RED)
    prep(n1)
    pre1()
    A.label(Ld)
    A("s_waitcnt vmcnt(0)")
    br = tags([PA_, PA_ + 4], [None, None], Ldb)
    mm(PA_, D); br(); flag(); fin(D, S_MEMW)
    A(f"s_branch {L_h2b}")
    A.label(Ldb)
    cnt(); loads(PA_, S_RED); budget(Ld)
    A.label(L_late)
    for o in sel_ops: A(o)
    A(f"s_cmp_eq_u32 s{S_EJ}, 0")
    A(f"s_cbranch_scc1 {L_two}")
    A(f"v_mov_b32 v{FD}, s{S_STEP}")
    A("s_waitcnt vmcnt(1)")
    A.label(Lb)
    br = tags([PA_, PA_ + 4], [None, None], Lbb)
    mm(PA_, D); br(); flag(); fin(D, S_MEMW1)
    loads(PA_, S_RED)
    pre1()
    A(f"s_branch {Lb2}")
    A.label(Lbb)
    cnt(); loads(PA_, S_RED1); A("s_waitcnt vmcnt(0)"); budget(Lb)
    A.label(L_two)
    pre1()
    for _ in range(cfg.get("d2w", 3)): A("s_nop 3")
    A(f"s_cmp_eq_u32 s{S_WV}, 2")
    A(f"s_cbranch_scc1 {Lc}")
    for _ in range(cfg.get("d3w", 9)): A("s_nop 3")
    A.label(Lc)
    loads(PA_, S_RED)
    A.label(Lb2)
    A("s_waitcnt vmcnt(0)")
    br = tags([PA_, PA_ + 4], [None, None], Lcb)
    mm(PA_, D); br(); fin(D, S_MEMW)
    stamp(5)
    A(f"s_mov_b32 m0, s{S_M0G}")
    for o in advance_ops(): A(o)
    pre2()
    if kv_wait is not None: kv_wait(A)
    stamp("chk")
    A("s_waitcnt lgkmcnt(0)")
    A("s_barrier")
    A(f"s_branch {L_top}")
    A.label(Lcb)
    cnt(); budget(Lc)
    L_chk = A.newlabel("r_chk"); L_rep = A.newlabel("r_rep"); L_g3 = A.newlabel("r_g3"); L_fp = A.newlabel("r_fp"); L_fok = A.newlabel("r_fok")
    def gather(lab, mid=None):
        A(f"buffer_load_dwordx4 v{V_L16}, {WS}, s{S_MEMG} offen sc1 lds")
        A(f"s_cmp_lg_u32 s{S_WV}, 0")
        A(f"buffer_load_dwordx4 v{V_L16}, {WS}, s{S_MEMG} offen offset:1024 sc1 lds")
        if mid: A(mid)
        A(f"s_cbranch_scc1 {lab}")
        A(f"buffer_load_dwordx4 v{V_L16}, {WS}, s{S_MEMG} offen offset:2048 sc1 lds")
        A.label(lab)
    def flag_loop():
        Lp = A.newlabel("r_fp"); Lok = A.newlabel("r_fok")
        A.label(Lp)
        for _ in range(4):
            A(f"v_cmp_ne_u32 vcc, s{S_T3}, v{FV}")
            poll()
            A(f"s_cbranch_vccz {Lok}")
        A("s_waitcnt vmcnt(24)")
        budget(Lp)
        A.label(Lok)
        stamp("fok")
    A.label(L_h2b)
    poll()
    stamp(5)
    A(f"s_mov_b32 m0, s{S_M0G}")
    A(f"s_mov_b32 s{S_T3}, s{S_STEP}")
    for o in advance_ops(): A(o)
    poll()
    pre2(); poll()
    if kv_wait is not None: kv_wait(A)
    flag_loop()
    for i in range(2): A(f"buffer_load_dwordx4 v{V_L16}, {WS}, s{S_MEMG} offen offset:{i*1024} sc1 lds")
    A(f"s_branch {L_chk}")
    A.label(L_h2)
    poll()
    stamp(5)
    A(f"s_mov_b32 m0, s{S_M0G}")
    A(f"s_mov_b32 s{S_T3}, s{S_STEP}")
    stg_load(("q", 0), V_STG)
    poll()
    for o in advance_ops(): A(o)
    poll()
    flag_loop()
    for i in range(3): A(f"buffer_load_dwordx4 v{V_L16}, {WS}, s{S_MEMG} offen offset:{i*1024} sc1 lds")
    pre2()
    if kv_wait is not None: kv_wait(A)
    A("s_waitcnt vmcnt(8)")
    zero(V_QK, 24)
    A("s_waitcnt vmcnt(0)")
    A.label(L_chk)
    A("s_waitcnt lgkmcnt(0)")
    stamp("chk")
    A("s_barrier")
    A(f"s_branch {L_top}")
    for La, Lb in ((L_again, L_back),):
        A.label(La)
        A(f"s_cmp_lt_u32 s{S_WV}, 2")
        A(f"s_cbranch_scc1 {Lb}")
        if cfg.get("count"): A(f"s_add_u32 s85, s85, 0x10000")
        A(f"ds_read_b32 v{V_TMP}, v{V_TMP+1}")
        gather(A.newlabel("r_g4"))
        A(f"s_waitcnt vmcnt(12) lgkmcnt(0)")
        A(f"v_cmp_eq_u32 vcc, -1, v{V_TMP}")
        A(f"s_cbranch_vccz {Lb}")
        budget(La)
    A.label(L_redo)
    L_rp = A.newlabel("r_rp"); L_rok = A.newlabel("r_rok")
    A(f"s_cmp_eq_u32 s{S_VER}, 1")
    A(f"s_cbranch_scc1 {L_go}")
    if cfg.get("count"): A(f"s_add_u32 s85, s85, 0x100")
    A("s_waitcnt vmcnt(0) lgkmcnt(0)")
    A("s_nop 15")
    A("s_barrier")
    G = V_QK
    A(f"s_xor_b32 s{S_T0}, s{S_GRAY}, 0xc000")
    A(f"s_xor_b32 s{S_MEMG}, s{S_MEMG}, s{S_T0}")
    A(f"v_add_u32 v{G+13}, s{S_M0G}, v{V_L16}")
    A(f"s_sub_u32 s{S_T3}, s{S_MEMG}, s{S_M0G}")
    A(f"s_add_u32 s{S_T3}, s{S_T3}, {L_MEM}")
    A.label(L_rp)
    A(f"buffer_load_dwordx4 {v(G,4)}, v{V_L16}, {WS}, s{S_MEMG} offen sc1")
    A(f"buffer_load_dwordx4 {v(G+4,4)}, v{V_L16}, {WS}, s{S_MEMG} offen offset:1024 sc1")
    A(f"buffer_load_dwordx4 {v(G+8,4)}, v{V_L16}, {WS}, s{S_T3} offen offset:2048 sc1")
    A(f"s_waitcnt vmcnt(0)")
    A(f"v_max3_u32 v{G+14}, v{G}, v{G+1}, v{G+2}")
    for i in range(3, 11, 2): A(f"v_max3_u32 v{G+14}, v{G+14}, v{G+i}, v{G+i+1}")
    A(f"v_max_u32 v{G+14}, v{G+14}, v{G+11}")
    A(f"v_cmp_eq_u32 vcc, -1, v{G+14}")
    A(f"s_cbranch_vccz {L_rok}")
    A(f"s_sub_u32 s{S_BUD}, s{S_BUD}, 1")
    A(f"s_cmp_lg_u32 s{S_BUD}, 0")
    A(f"s_cbranch_scc1 {L_rp}")
    A(f"s_branch {L_exit}")
    A.label(L_rok)
    A(f"ds_write_b128 v{G+13}, {v(G,4)}")
    A(f"ds_write_b128 v{G+13}, {v(G+4,4)} offset:1024")
    A(f"ds_write_b128 v{V_L16}, {v(G+8,4)} offset:{L_MEM+2048}")
    A("s_waitcnt lgkmcnt(0)")
    pre1(); pre2()
    A(f"s_mov_b32 s{S_VER}, 1")
    A(f"s_mov_b32 s{S_LG}, 0")
    A("s_waitcnt lgkmcnt(0)")
    A("s_barrier")
    A(f"s_branch {L_top}")
    A.label(L_last)

def snapshot(A):
    A(f"v_lshrrev_b32 v12, 2, v{V_L16}")
    A(f"global_load_dword v13, v12, {s(S_DBG,2)} sc1")

def team_ready(A, L_fast, L_slow, L_exit):
    Lp = A.newlabel("tm_p"); La = A.newlabel("tm_a")
    A.label(Lp)
    for i in range(9): A(f"v_readlane_b32 s{84+i}, v13, {DIE_DW[i]}")
    A(f"v_readlane_b32 s95, v13, {DBG_TEAM//4}")
    A(f"v_readlane_b32 s96, v13, {DBG_TEAM//4 + 16}")
    A(f"v_readlane_b32 s97, v13, {DBG_INIT//4}")
    A("s_nop 3")
    A(f"s_add_u32 s93, s84, s85")
    for i in range(2, 9): A(f"s_add_u32 s93, s93, s{84+i}")
    A(f"s_cmp_eq_u32 s{S_B}, 0")
    A(f"s_cselect_b32 s94, s84, s85")
    A(f"s_cselect_b32 s95, s95, s96")
    A(f"s_cmp_lt_u32 s95, 32")
    A(f"s_cbranch_scc1 {La}")
    A(f"s_cmp_lt_u32 s97, 192")
    A(f"s_cbranch_scc1 {La}")
    A(f"s_cmp_ge_u32 s94, 32")
    A(f"s_cbranch_scc1 {L_fast}")
    A(f"s_cmp_ge_u32 s93, 256")
    A(f"s_cbranch_scc1 {L_slow}")
    A.label(La)
    A(f"s_sub_u32 s{S_BUD}, s{S_BUD}, 1")
    A(f"s_cmp_eq_u32 s{S_BUD}, 0")
    A(f"s_cbranch_scc1 {L_exit}")
    snapshot(A)
    A("s_waitcnt vmcnt(0)")
    A(f"s_branch {Lp}")

def rec_role(A, L_exit, stamp=None, force_slow=False, kv_wait=None, publish=None, publish_last=None, cfg=None, at_end=None, before_loop=None, after_load=None):
    A(f"s_lshr_b32 s{S_B}, s{S_SLOTID}, 5")
    A(f"s_and_b32 s{S_H}, s{S_SLOTID}, 31")
    rec_setup(A)
    build_mem0(A)
    rec_bases(A)
    init_slots(A, " sc1")
    def hook(i):
        if i == 0:
            Lw = A.newlabel("tb_w")
            A(f"s_lshl_b32 s{S_T0}, s{S_B}, 6"); A(f"s_add_u32 s{S_T0}, s{S_T0}, {DBG_TEAM}")
            A(f"v_mov_b32 v12, s{S_T0}"); A(f"v_mov_b32 v13, 1")
            A(f"s_cmp_lg_u32 s{S_WV}, 0")
            A(f"s_cbranch_scc1 {Lw}")
            A(f"s_mov_b64 exec, 1")
            A(f"global_atomic_add v12, v13, {s(S_DBG,2)}")
            A(f"s_mov_b64 exec, -1")
            A.label(Lw)
        if i == 27: snapshot(A)
    load_weights(A, '' if (cfg or {}).get('wnt', 1) == 0 else ' nt', hook)
    if after_load is not None: after_load(A)
    L_fast = A.newlabel("r_fast"); L_slow = A.newlabel("r_slow")
    team_ready(A, L_slow if force_slow else L_fast, L_slow, L_exit)
    for lab, st in ((L_fast, ""), (L_slow, " sc1")):
        A.label(lab)
        if before_loop is not None: before_loop(A)
        if cfg and cfg.get("count"):
            for r in (84, 85, 71): A(f"s_mov_b32 s{r}, 0")
        rec_loop(A, st, L_exit, stamp=stamp, kv_wait=kv_wait, publish=publish, cfg=cfg)
        A("s_waitcnt vmcnt(0) lgkmcnt(0)")
        if publish_last is not None: publish_last(A)
        if at_end is not None: at_end(A)
        A(f"s_branch {L_exit}")
```

```python
import sys, json
from common import *
import phase_a as PA
import rec as RC
import phase_b as PB
import outproj as OP

NAME = "gated_mix__memory_aug_recurrent_mem_tr__memory_aug_recurrent_mem_tr__prompt_kernel"
WS = s(S_WS, 4)

def merged(cfg=None, force_slow=False, prof=False):
    cfg = cfg or {}
    A = Asm()
    X = "L_exit"
    A.raw(kernel_header(NAME))
    A("s_cmp_ge_u32 s2, 256")
    A(f"s_cbranch_scc1 {X}")
    def tstamp(i, vt=10):
        if not prof: return
        A("s_memrealtime s[0:1]")
        A(f"s_lshl_b32 s2, s{S_SLOTID}, 6"); A(f"s_add_u32 s2, s2, {WS_DBG + 0x100000 + 4*i}")
        A("s_waitcnt lgkmcnt(0)")
        A(f"v_mov_b32 v{vt}, s0")
        A(f"buffer_store_dword v{vt}, off, {WS}, s2")
        A("s_waitcnt vmcnt(0)")
    load_ptrs(A)
    build_common_srds(A)
    assign_slot(A, X)
    tstamp(0)
    A(f"s_cmp_ge_u32 s{S_SLOTID}, 64")
    A("s_cbranch_scc1 L_worker")
    S_KVOK = 37
    def r_before(A):
        A(f"s_mov_b32 s{S_KVOK}, 0")
        A(f"s_lshl_b32 s{RC.S_RZ}, s{RC.S_BH}, 2"); A(f"s_add_u32 s{RC.S_RZ}, s{RC.S_RZ}, s{RC.S_WV}")
        A(f"s_lshl_b32 s{RC.S_RZ}, s{RC.S_RZ}, 7"); A(f"s_add_u32 s{RC.S_RZ}, s{RC.S_RZ}, {WS_MP}")
        A(f"s_lshl_b32 s{RC.S_RZ2}, s{RC.S_BH}, 4"); A(f"s_add_u32 s{RC.S_RZ2}, s{RC.S_RZ2}, {WS_KVP}")
        tstamp(1, 12)
    def kv_wait(A, first=False):
        Lok = A.newlabel("kv_ok"); Lp = A.newlabel("kv_p"); Lu = A.newlabel("kv_u")
        W = RC.V_WARM
        A(f"s_cmp_gt_i32 s{S_KVOK}, s{RC.S_STEP}")
        A(f"s_cbranch_scc1 {Lok}")
        if not first: A(f"s_branch {Lu}")
        A.label(Lp)
        A(f"s_sub_u32 s{RC.S_BUD}, s{RC.S_BUD}, 1")
        A(f"s_cmp_eq_u32 s{RC.S_BUD}, 0")
        A(f"s_cbranch_scc1 {X}")
        A(f"v_bfe_u32 v{W}, v{RC.V_L16}, 2, 4")
        A(f"buffer_load_dword v{W}, v{W}, {WS}, s{RC.S_RZ2} offen sc1")
        A("s_waitcnt vmcnt(0)")
        A.label(Lu)
        for i in range(3): A(f"v_readlane_b32 s{RC.S_T0+i}, v{W}, {i}")
        A("s_nop 3")
        for i in range(3):
            A(f"s_mul_i32 s{RC.S_T0+i}, s{RC.S_T0+i}, 3")
            if i: A(f"s_add_u32 s{RC.S_T0+i}, s{RC.S_T0+i}, {i}")
        A(f"s_min_u32 s{S_KVOK}, s{RC.S_T0}, s{RC.S_T1}")
        A(f"s_min_u32 s{S_KVOK}, s{S_KVOK}, s{RC.S_T2}")
        A(f"s_cmp_ge_u32 s{S_KVOK}, 64")
        A(f"s_cselect_b32 s{S_KVOK}, 65, s{S_KVOK}")
        A(f"s_sub_u32 s{S_KVOK}, s{S_KVOK}, 1")
        A(f"s_cmp_gt_i32 s{S_KVOK}, s{RC.S_STEP}")
        A(f"s_cbranch_scc0 {Lp}")
        A.label(Lok)
    def r_publish(A, vm, F):
        if cfg.get("nopf"): return
        def st():
            A(f"s_mov_b64 exec, 1")
            vm.issue(f"buffer_store_dword v{RC.V_TMP}, off, {WS}, s{RC.S_RZ} sc1")
            A("s_mov_b64 exec, -1")
        F.v += [lambda: A(f"v_mov_b32 v{RC.V_TMP}, s{RC.S_STEP}"), st]
    def r_last(A):
        A("s_barrier")
        A(f"v_mov_b32 v{RC.V_WARM}, 64")
        A(f"s_mov_b64 exec, 1")
        A(f"buffer_store_dword v{RC.V_WARM}, off, {WS}, s{RC.S_RZ} sc1")
        A("s_mov_b64 exec, -1")
        tstamp(2, 12)
    stamp = None
    if cfg.get("rst"):
        cfg["count"] = 1
        def stamp(i):
            if i == 0:
                for k in range(6): A(f"v_writelane_b32 v16, s{86+2*k}, {k}")
                A(f"v_writelane_b32 v16, s84, 6")
                A(f"v_writelane_b32 v16, s85, 7")
                A(f"v_lshrrev_b32 v17, 2, v{RC.V_L16}")
                A(f"s_lshl_b32 s41, s{S_SLOTID}, 2")
                A(f"s_add_u32 s41, s41, s{RC.S_WV}")
                A(f"s_lshl_b32 s41, s41, 6")
                A(f"s_add_u32 s41, s41, s{RC.S_STEP}")
                A(f"s_lshl_b32 s41, s41, 5")
                A(f"s_add_u32 s41, s41, {WS_DBG}")
                A("s_mov_b64 exec, 0xff")
                A(f"buffer_store_dword v16, v17, {s(S_WS,4)}, s41 offen")
                A("s_mov_b64 exec, -1")
            A(f"{'s_memrealtime' if cfg.get('rt') else 's_memtime'} s[{86+2*i}:{87+2*i}]")
            A("s_waitcnt lgkmcnt(0)")
    RC.rec_role(A, X, stamp=stamp, force_slow=force_slow, kv_wait=kv_wait, publish=r_publish, publish_last=r_last, cfg=cfg, before_loop=r_before, after_load=lambda A: tstamp(3, 14))
    A.label("L_worker")
    A(f"s_sub_u32 s{PA.S_WI}, s{S_SLOTID}, 64")
    PA.worker_setup(A)
    PA.worker_consts(A)
    S_BUD = PB.S_BUD
    A(f"s_mov_b32 s{S_BUD}, 0x100000")
    Lz = A.newlabel("w_z")
    A(f"s_lshl_b32 s{PA.S_T0}, s{PA.S_WI}, 9"); A(f"s_lshl_b32 s{PA.S_T1}, s{PA.S_WV}, 7"); A(f"s_add_u32 s{PA.S_T0}, s{PA.S_T0}, s{PA.S_T1}")
    A(f"s_add_u32 s{PA.S_T0}, s{PA.S_T0}, {WS_FLAG}")
    for i in range(4): A(f"v_mov_b32 v{32+i}, 0")
    A("s_mov_b64 exec, 0xff")
    A(f"buffer_store_dwordx4 v[32:35], v{PA.V_L16}, {WS}, s{PA.S_T0} offen sc1")
    A("s_mov_b64 exec, -1")
    PB.gate_part(A)
    A("s_waitcnt vmcnt(0)")
    A("s_barrier")
    A(f"s_cmp_lg_u32 s{PA.S_WV}, 0")
    A(f"s_cbranch_scc1 {Lz}")
    A(f"v_mov_b32 v32, {DBG_INIT}"); A("v_mov_b32 v33, 1")
    A("s_mov_b64 exec, 1")
    A(f"global_atomic_add v32, v33, {s(S_DBG,2)}")
    A("s_mov_b64 exec, -1")
    A.label(Lz)
    S_KP = 92; S_W0 = 94
    def a_before(A):
        wait_init(A, X, S_BUD, PA.V_T, PA.S_T2)
        tstamp(1, PA.V_T)
    A(f"s_mov_b32 s100, s70"); A(f"s_mov_b32 s101, s71")
    A(f"s_mov_b32 s4, s84"); A(f"s_mov_b32 s5, s85")
    A(f"s_lshl_b32 s{S_KP}, s{PA.S_BH}, 4"); A(f"s_lshl_b32 s{PA.S_T0}, s{PA.S_C}, 2"); A(f"s_add_u32 s{S_KP}, s{S_KP}, s{PA.S_T0}")
    A(f"s_add_u32 s{S_KP}, s{S_KP}, {WS_KVP}")
    A(f"s_cmp_eq_u32 s{PA.S_WV}, 0"); A(f"s_cselect_b32 s{S_W0}, 1, 0"); A(f"s_mov_b32 s{S_W0+1}, 0")
    def a_publish(A):
        A(f"s_max_i32 s{PA.S_T2}, s{PA.S_CNT}, 0")
        A(f"v_mov_b32 v{PA.V_T}, s{PA.S_T2}")
        A(f"s_mov_b64 exec, {s(S_W0,2)}")
        A(f"buffer_store_dword v{PA.V_T}, off, {WS}, s{S_KP} sc1")
        A("s_mov_b64 exec, -1")
        A(f"s_add_u32 s{PA.S_CNT}, s{PA.S_CNT}, 1")
    PA.phase_a(A, publish=a_publish, before_loop=a_before)
    A(f"v_mov_b32 v{PA.V_T}, 22")
    A(f"s_mov_b64 exec, {s(S_W0,2)}")
    A(f"buffer_store_dword v{PA.V_T}, off, {WS}, s{S_KP} sc1")
    A("s_mov_b64 exec, -1")
    tstamp(2, PA.V_T)
    A(f"s_cmp_eq_u32 s{PA.S_C}, 2")
    A("s_cbranch_scc1 L_outproj")
    Lp = A.newlabel("b_kv")
    A(f"s_and_b32 s{S_KP}, s{S_KP}, 0xfffffff0")
    A.label(Lp)
    A(f"s_sub_u32 s{S_BUD}, s{S_BUD}, 1")
    A(f"s_cmp_eq_u32 s{S_BUD}, 0")
    A(f"s_cbranch_scc1 {X}")
    A(f"buffer_load_dwordx4 v[32:35], off, {WS}, s{S_KP} sc1")
    A("s_waitcnt vmcnt(0)")
    A("v_min3_u32 v32, v32, v33, v34")
    A(f"v_readfirstlane_b32 s{PA.S_T0}, v32")
    A("s_nop 3")
    A(f"s_cmp_lt_u32 s{PA.S_T0}, 22")
    A(f"s_cbranch_scc1 {Lp}")
    def mem_wait(A):
        Lp = A.newlabel("b_mp"); Lok = A.newlabel("b_mok")
        A(f"s_lshl_b32 s{PA.S_T0}, s{PA.S_BH}, 2"); A(f"s_add_u32 s{PA.S_T0}, s{PA.S_T0}, s{PA.S_WV}")
        A(f"s_lshl_b32 s{PA.S_T0}, s{PA.S_T0}, 7"); A(f"s_add_u32 s{PA.S_T0}, s{PA.S_T0}, {WS_MP}")
        A.label(Lp)
        A(f"buffer_load_dword v{PB.V_PKQ+1}, off, {WS}, s{PA.S_T0} sc1")
        A("s_waitcnt vmcnt(0)")
        A(f"v_readfirstlane_b32 s{PA.S_T1}, v{PB.V_PKQ+1}")
        A("s_nop 3")
        A(f"s_cmp_gt_u32 s{PA.S_T1}, s{PA.S_SEG}")
        A(f"s_cbranch_scc1 {Lok}")
        A("s_sleep 4")
        A(f"s_sub_u32 s{S_BUD}, s{S_BUD}, 1")
        A(f"s_cmp_lg_u32 s{S_BUD}, 0")
        A(f"s_cbranch_scc1 {Lp}")
        A(f"s_branch {X}")
        A.label(Lok)
    def b_publish(A):
        A(f"s_lshl_b32 s{PA.S_T0}, s{PA.S_SEG}, 2"); A(f"s_lshr_b32 s{PA.S_T1}, s{PA.S_BH}, 4"); A(f"s_add_u32 s{PA.S_T0}, s{PA.S_T0}, s{PA.S_T1}")
        A(f"s_lshl_b32 s{PA.S_T0}, s{PA.S_T0}, 6"); A(f"s_add_u32 s{PA.S_T0}, s{PA.S_T0}, {WS_OC}")
        A(f"v_mov_b32 v{PB.V_PKQ}, 1")
        A("s_waitcnt vmcnt(0)")
        A("s_mov_b64 exec, 1")
        A(f"buffer_atomic_add v{PB.V_PKQ}, off, {WS}, s{PA.S_T0}")
        A("s_mov_b64 exec, -1")
    PB.phase_b(A, X, PA.S_C, 2, mem_wait=mem_wait, publish=b_publish)
    tstamp(3, 32)
    A(f"s_branch {X}")
    A.label("L_outproj")
    A(f"s_and_b32 s{OP.S_T0}, s{PA.S_BH}, 31")
    A(f"s_cmp_ge_u32 s{OP.S_T0}, 30")
    A(f"s_cbranch_scc1 {X}")
    A(f"s_lshr_b32 s{OP.S_SEG}, s{PA.S_BH}, 5")
    A(f"s_mul_hi_u32 s{OP.S_KQ}, s{OP.S_T0}, {hex((1<<32)//6+1)}")
    A(f"s_mul_i32 s{OP.S_T1}, s{OP.S_KQ}, 6")
    A(f"s_sub_u32 s{OP.S_NJ}, s{OP.S_T0}, s{OP.S_T1}")
    A(f"s_cmp_eq_u32 s{OP.S_KQ}, 4")
    A("s_cbranch_scc1 L_final")
    A(f"s_cmp_lt_u32 s{OP.S_KQ}, 2")
    A(f"s_cselect_b32 s{S_W4}, s100, s4"); A(f"s_cselect_b32 s{S_W4+1}, s101, s5")
    OP.op_consts_and_weights(A)
    tstamp(3, OP.V_T)
    OP.op_loop2(A, X, 2)
    tstamp(4, OP.V_T)
    A(f"s_branch {X}")
    A.label("L_final")
    OP.op_final(A, X, 2)
    tstamp(4, OP.V_T)
    A.label(X)
    A("s_endpgm")
    return A.text()

def write(path, txt, as_list=False):
    hdr = "".join(l for l in open("cdna_kernels/" + NAME[:-7] + ".s.ref") if l.startswith(";") and "launch" not in l.lower() and "Harness parses" not in l)
    hdr += f"; @launch kernel={NAME} grid=(256,1,1) block=(256,1,1) lds=163840\n" if as_list else "; @launch grid=(256,1,1) block=(256,1,1) lds=163840\n"
    out = hdr + '.amdgcn_target "amdgcn-amd-amdhsa--gfx950"\n.text\n' + txt + '.section .rodata,"a"\n' + kernel_desc(NAME)
    open(path, "w").write(out)

if __name__ == "__main__":
    cfg = json.loads(sys.argv[1]) if len(sys.argv) > 1 else {}
    write("merged.s", merged(dict(cfg)), True)
    write("merged_prof.s", merged(dict(cfg), prof=True), True)
    write("merged_slow.s", merged(dict(cfg), force_slow=True), True)
    write("final.s", merged(dict(cfg)), False)
    for k, arg in enumerate(sys.argv[2:]):
        c = dict(cfg); c.update(json.loads(arg))
        write(f"merged_v{k}.s", merged(c, prof=bool(c.get("prof"))), True)
```

```python
from asmlib import *

KA = dict(x=0, A_mem0=8, A_Wq=16, A_Wk=24, A_Wv=32, A_Wo=40, B_mem0=64, B_Wq=72, B_Wk=80, B_Wv=88, B_Wo=96,
          gate=112, out=120, dbg=128, ws=136)
X_BYTES = 2048 * 1152
W_BYTES = 576 * 8192
MEM0_BYTES = 8 * 1152
WS_BYTES = 1 << 28
MB = 1 << 20
WS_KV = 0
WS_KVM = 64 * MB
WS_O = 96 * MB
WS_PART = 128 * MB
WS_MEMI = 132 * MB
WS_GATE = 133 * MB
WS_FLAG = 134 * MB
WS_OP = 136 * MB
WS_DBG = 200 * MB

S_X = 8
S_W1 = 12
S_W2 = 16
S_W3 = 20
S_W4 = 24
S_WS = 28
S_OUT = 32
S_M0 = 36
S_GW = 40
S_DBG = 44

def srd(A, dst, lo, nbytes):
    A(f"s_mov_b32 s{dst}, s{lo}")
    A(f"s_mov_b32 s{dst+1}, s{lo+1}")
    A(f"s_mov_b32 s{dst+2}, {hex(nbytes)}")
    A(f"s_mov_b32 s{dst+3}, 0x20000")

def load_ptrs(A):
    A("s_load_dwordx16 s[60:75], s[0:1], 0")
    A("s_load_dwordx16 s[76:91], s[0:1], 64")
    A("s_load_dwordx4 s[92:95], s[0:1], 128")
    A("s_waitcnt lgkmcnt(0)")

def build_common_srds(A):
    srd(A, S_X, 60, X_BYTES)
    srd(A, S_WS, 94, WS_BYTES)
    srd(A, S_OUT, 90, X_BYTES)
    srd(A, S_GW, 88, 1152)
    A(f"s_mov_b32 s{S_DBG}, s92")
    A(f"s_mov_b32 s{S_DBG+1}, s93")

def build_branch_srds(A, s_b):
    A(f"s_cmp_eq_u32 s{s_b}, 0")
    for dst, la, lb, nb in ((S_M0, 62, 76, MEM0_BYTES), (S_W1, 64, 78, W_BYTES), (S_W2, 66, 80, W_BYTES),
                            (S_W3, 68, 82, W_BYTES), (S_W4, 70, 84, W_BYTES)):
        A(f"s_cselect_b32 s{dst}, s{la}, s{lb}")
        A(f"s_cselect_b32 s{dst+1}, s{la+1}, s{lb+1}")
        A(f"s_mov_b32 s{dst+2}, {hex(nb)}")
        A(f"s_mov_b32 s{dst+3}, 0x20000")

DIE_DW = [0, 16, 32, 33, 34, 48, 49, 50, 51]
DBG_OVF = 35 * 4; DBG_TEAM = 4
S_SLOTID = 3

def read_counts(A, sdst, vt):
    A(f"v_and_b32 v{vt}, 63, v0")
    A(f"v_lshlrev_b32 v{vt}, 2, v{vt}")
    A(f"global_load_dword v{vt+1}, v{vt}, {s(S_DBG,2)} sc1")
    A("s_waitcnt vmcnt(0)")
    for i in range(9): A(f"v_readlane_b32 s{sdst+i}, v{vt+1}, {DIE_DW[i]}")
    A("s_nop 3")
    A(f"s_add_u32 s{sdst+9}, s{sdst}, s{sdst+1}")
    for i in range(2, 9): A(f"s_add_u32 s{sdst+9}, s{sdst+9}, s{sdst+i}")

def assign_slot(A, L_exit):
    L_w = A.newlabel("tk_w"); L_home = A.newlabel("tk_home"); L_ov = A.newlabel("tk_ov"); L_ovp = A.newlabel("tk_ovp")
    L_done = A.newlabel("tk_done"); L_w2 = A.newlabel("tk_w2")
    A("s_getreg_b32 s46, hwreg(HW_REG_XCC_ID)")
    A("s_and_b32 s46, s46, 15")
    A("s_min_u32 s46, s46, 8")
    A("s_lshl_b32 s47, s46, 4")
    A("s_add_u32 s48, s46, 30"); A("s_cmp_ge_u32 s46, 2"); A("s_cselect_b32 s47, s48, s47")
    A("s_add_u32 s48, s46, 43"); A("s_cmp_ge_u32 s46, 5"); A("s_cselect_b32 s47, s48, s47")
    A("s_lshl_b32 s47, s47, 2")
    A("v_mov_b32 v1, s47")
    A("v_mov_b32 v2, 1")
    A("v_mov_b32 v4, 0")
    A("v_cmp_eq_u32 vcc, 0, v0")
    A("s_and_saveexec_b64 s[48:49], vcc")
    A(f"s_cbranch_execz {L_w}")
    A(f"global_atomic_add v3, v1, v2, {s(S_DBG,2)} sc0")
    A("s_waitcnt vmcnt(0)")
    A("ds_write_b32 v4, v3")
    A("s_waitcnt lgkmcnt(0)")
    A.label(L_w)
    A("s_mov_b64 exec, s[48:49]")
    A("s_barrier")
    A("ds_read_b32 v3, v4")
    A("s_waitcnt lgkmcnt(0)")
    A("v_readfirstlane_b32 s47, v3")
    A("s_barrier")
    A("s_cmp_ge_u32 s46, 8")
    A(f"s_cbranch_scc1 {L_ov}")
    A("s_cmp_lt_u32 s47, 32")
    A(f"s_cbranch_scc1 {L_home}")
    A.label(L_ov)
    A(f"v_mov_b32 v1, {DBG_OVF}")
    A("v_cmp_eq_u32 vcc, 0, v0")
    A("s_and_saveexec_b64 s[48:49], vcc")
    A(f"s_cbranch_execz {L_w2}")
    A(f"global_atomic_add v3, v1, v2, {s(S_DBG,2)} sc0")
    A("s_waitcnt vmcnt(0)")
    A("ds_write_b32 v4, v3")
    A("s_waitcnt lgkmcnt(0)")
    A.label(L_w2)
    A("s_mov_b64 exec, s[48:49]")
    A("s_barrier")
    A("ds_read_b32 v3, v4")
    A("s_waitcnt lgkmcnt(0)")
    A("v_readfirstlane_b32 s47, v3")
    A("s_barrier")
    A("s_mov_b32 s46, 0x100000")
    A.label(L_ovp)
    A("s_sub_u32 s46, s46, 1")
    A("s_cmp_eq_u32 s46, 0")
    A(f"s_cbranch_scc1 {L_exit}")
    read_counts(A, 50, 1)
    A("s_cmp_lt_u32 s59, 256")
    A(f"s_cbranch_scc1 {L_ovp}")
    A(f"s_mov_b32 s{S_SLOTID}, 0")
    for x in range(8):
        Ln = A.newlabel("tk_n")
        A(f"s_min_u32 s48, s{50+x}, 32")
        A(f"s_sub_u32 s49, 32, s48")
        A(f"s_cmp_lt_u32 s47, s49")
        A(f"s_cbranch_scc0 {Ln}")
        A(f"s_add_u32 s{S_SLOTID}, s48, s47")
        A(f"s_add_u32 s{S_SLOTID}, s{S_SLOTID}, {32*x}")
        A(f"s_branch {L_done}")
        A.label(Ln)
        A(f"s_sub_u32 s47, s47, s49")
    A(f"s_branch {L_exit}")
    A.label(L_home)
    A(f"s_lshl_b32 s{S_SLOTID}, s46, 5")
    A(f"s_add_u32 s{S_SLOTID}, s{S_SLOTID}, s47")
    A.label(L_done)
    A.flush_hazards()

WS_KVP = WS_FLAG + 0x18000
WS_MP = WS_FLAG + 0x10000
WS_OC = WS_FLAG + 0x1000
WS_CNT = WS_FLAG + 0x5000
DBG_INIT = 144

def wait_init(A, L_exit, s_bud, vt, st):
    Lp = A.newlabel("wi"); Lok = A.newlabel("wi_ok")
    A(f"v_mov_b32 v{vt}, {DBG_INIT}")
    A.label(Lp)
    A("s_sleep 127")
    A(f"global_load_dword v{vt+1}, v{vt}, {s(S_DBG,2)} sc1")
    A("s_waitcnt vmcnt(0)")
    A(f"v_readfirstlane_b32 s{st}, v{vt+1}")
    A("s_nop 3")
    A(f"s_cmp_ge_u32 s{st}, 192")
    A(f"s_cbranch_scc1 {Lok}")
    A(f"s_sub_u32 s{s_bud}, s{s_bud}, 1")
    A(f"s_cmp_lg_u32 s{s_bud}, 0")
    A(f"s_cbranch_scc1 {Lp}")
    A(f"s_branch {L_exit}")
    A.label(Lok)
```

```python
from common import *

S_KQ = 46; S_NJ = 47; S_SEG = 48; S_B = 49; S_WV = 51
S_T0 = 52; S_T1 = 53; S_T2 = 54; S_T3 = 55
S_OA = 56; S_PB = 57; S_CT = 58; S_WB = 59; S_BUD = 99

V_L16 = 1; V_GO = 2; V_TR = 3; V_RW = 4; V_RR = 5; V_OUT = 6; V_T = 8
V_F = 16
V_ACC = 80
WO = 128

def op_setup(A):
    A("v_lshrrev_b32 v1, 6, v0")
    A(f"v_readfirstlane_b32 s{S_WV}, v1")
    A("v_and_b32 v0, 63, v0")

def op_consts_and_weights(A):
    T = V_T
    A(f"v_lshlrev_b32 v{V_L16}, 4, v0")
    A(f"v_lshrrev_b32 v{T}, 2, v0"); A(f"v_mul_u32_u24 v{V_GO}, 1152, v{T}")
    A(f"v_and_b32 v{T+1}, 3, v0"); A(f"v_lshl_add_u32 v{V_GO}, v{T+1}, 4, v{V_GO}")
    A(f"v_lshrrev_b32 v{T}, 5, v0"); A(f"v_lshlrev_b32 v{V_TR}, 8, v{T}")
    A(f"v_bfe_u32 v{T+2}, v0, 2, 2"); A(f"v_lshl_add_u32 v{V_TR}, v{T+2}, 6, v{V_TR}")
    A(f"v_bfe_u32 v{T+2}, v0, 4, 1"); A(f"v_lshl_add_u32 v{V_TR}, v{T+2}, 5, v{V_TR}")
    A(f"v_lshl_add_u32 v{V_TR}, v{T+1}, 3, v{V_TR}")
    A(f"s_mul_i32 s{S_T1}, s{S_WV}, 36864")
    A(f"v_add_u32 v{V_TR}, s{S_T1}, v{V_TR}")
    A(f"s_mul_i32 s{S_T0}, s{S_WV}, 12288"); A(f"v_add_u32 v{V_RW}, s{S_T0}, v{V_L16}")
    A(f"s_mul_i32 s{S_T0}, s{S_WV}, 3072"); A(f"v_add_u32 v{V_RR}, s{S_T0}, v{V_L16}")
    A(f"v_and_b32 v{T+2}, 31, v0"); A(f"v_mul_u32_u24 v{V_OUT}, 1152, v{T+2}"); A(f"v_lshl_add_u32 v{V_OUT}, v{T}, 3, v{V_OUT}")
    A(f"s_and_b32 s{S_T0}, s{S_KQ}, 1"); A(f"s_lshl_b32 s{S_T0}, s{S_T0}, 2"); A(f"s_add_u32 s{S_T0}, s{S_T0}, s{S_WV}")
    A(f"s_mul_i32 s{S_WB}, s{S_T0}, {4*147456}")
    A(f"s_mul_i32 s{S_T0}, s{S_NJ}, 192"); A(f"s_add_u32 s{S_WB}, s{S_WB}, s{S_T0}")
    pieces = [(f, nt) for f in range(32) for nt in range(3)]
    def dma(i):
        f, nt = pieces[i]
        A(f"s_add_u32 m0, s{S_T1}, {(i%36)*1024}")
        A(f"s_add_u32 s{S_T2}, s{S_WB}, {16*f*1152 + nt*64}")
        A(f"buffer_load_dwordx4 v{V_GO}, {s(S_W4,4)}, s{S_T2} offen lds")
    for i in range(36): dma(i)
    G = 4
    for i0 in range(0, 96, G):
        out = min(36, 96 - i0)
        A(f"s_waitcnt vmcnt({out - G})")
        for i in range(i0, i0 + G):
            A(f"ds_read_b64_tr_b16 {R(WO+4*i,2)}, v{V_TR} offset:{(i%36)*1024}")
            A(f"ds_read_b64_tr_b16 {R(WO+4*i+2,2)}, v{V_TR} offset:{(i%36)*1024+512}")
        A("s_waitcnt lgkmcnt(0)")
        for i in range(i0 + 36, min(i0 + 36 + G, 96)): dma(i)
    A("s_barrier")

def op_loop(A, L_exit, stride, ready=None):
    WS = s(S_WS, 4); MF = "v_mfma_f32_32x32x16_bf16"
    L_loop = A.newlabel("p_loop"); L_next = A.newlabel("p_next"); L_w = A.newlabel("p_w")
    A.label(L_loop)
    if ready is not None: ready(A)
    A(f"s_lshl_b32 s{S_OA}, s{S_SEG}, 4"); A(f"s_lshl_b32 s{S_T0}, s{S_KQ}, 2"); A(f"s_add_u32 s{S_OA}, s{S_OA}, s{S_T0}")
    A(f"s_add_u32 s{S_OA}, s{S_OA}, s{S_WV}"); A(f"s_lshl_b32 s{S_OA}, s{S_OA}, 15"); A(f"s_add_u32 s{S_OA}, s{S_OA}, {WS_O}")
    def ld(f):
        if f % 4 == 0 and f: A(f"s_add_u32 s{S_OA}, s{S_OA}, 4096")
        A(f"buffer_load_dwordx4 {v(V_F+4*(f%16),4)}, v{V_L16}, {WS}, s{S_OA} offen offset:{(f&3)*1024} sc1")
    for f in range(16): ld(f)
    A(f"s_mul_i32 s{S_CT}, s{S_SEG}, 6"); A(f"s_add_u32 s{S_CT}, s{S_CT}, s{S_NJ}")
    A(f"s_mul_i32 s{S_PB}, s{S_CT}, {4*12288}"); A(f"s_add_u32 s{S_PB}, s{S_PB}, {WS_OP}")
    for f in range(32):
        A(f"s_waitcnt vmcnt({min(15, 31-f) if f == 0 or f > 16 else 14})")
        for nt in range(3):
            acc = v(V_ACC + 16 * nt, 16)
            A(f"{MF} {acc}, {R(WO+4*(3*f+nt),4)}, {v(V_F+4*(f%16),4)}, {'0' if f == 0 else acc}")
            if nt == 0 and 1 <= f <= 16: ld(f + 15)
    for j in range(12): A(f"ds_write_b128 v{V_RW}, {v(V_ACC+4*j,4)} offset:{j*1024}")
    A("s_waitcnt lgkmcnt(0)")
    A("s_barrier")
    for src in range(4):
        for i in range(3): A(f"ds_read_b128 {v(V_F+12*src+4*i,4)}, v{V_RR} offset:{src*12288 + i*1024}")
    A("s_waitcnt lgkmcnt(6)")
    for r in range(12): A(f"v_add_f32 v{V_F+r}, v{V_F+r}, v{V_F+12+r}")
    A("s_waitcnt lgkmcnt(0)")
    for r in range(12): A(f"v_add_f32 v{V_F+24+r}, v{V_F+24+r}, v{V_F+36+r}")
    for r in range(12): A(f"v_add_f32 v{V_F+r}, v{V_F+r}, v{V_F+24+r}")
    A(f"s_mul_i32 s{S_T0}, s{S_KQ}, 12288"); A(f"s_add_u32 s{S_T0}, s{S_T0}, s{S_PB}")
    for i in range(3): A(f"buffer_store_dwordx4 {v(V_F+4*i,4)}, v{V_RR}, {WS}, s{S_T0} offen offset:{i*1024} sc1")
    A("s_waitcnt vmcnt(0)")
    A("s_barrier")
    A(f"s_lshl_b32 s{S_T0}, s{S_CT}, 6"); A(f"s_add_u32 s{S_T0}, s{S_T0}, {WS_CNT}")
    A(f"v_mov_b32 v{V_T}, 1"); A(f"v_mov_b32 v{V_T+1}, 0xc000")
    A(f"s_cmp_lg_u32 s{S_WV}, 0")
    A(f"s_cbranch_scc1 {L_w}")
    A("s_mov_b64 exec, 1")
    A(f"buffer_atomic_add v{V_T}, off, {WS}, s{S_T0} sc0")
    A("s_waitcnt vmcnt(0)")
    A(f"ds_write_b32 v{V_T+1}, v{V_T}")
    A("s_waitcnt lgkmcnt(0)")
    A("s_mov_b64 exec, -1")
    A.label(L_w)
    A("s_barrier")
    A(f"ds_read_b32 v{V_T}, v{V_T+1}")
    A("s_waitcnt lgkmcnt(0)")
    A(f"v_readfirstlane_b32 s{S_T0}, v{V_T}")
    A("s_nop 3")
    A(f"s_cmp_lg_u32 s{S_T0}, 3")
    A(f"s_cbranch_scc1 {L_next}")
    A(f"s_mov_b32 s{S_T0}, s{S_PB}")
    for src in range(4):
        for i in range(3): A(f"buffer_load_dwordx4 {v(V_F+12*src+4*i,4)}, v{V_RR}, {WS}, s{S_T0} offen offset:{i*1024} sc1")
        A(f"s_add_u32 s{S_T0}, s{S_T0}, 12288")
    A(f"s_mul_i32 s{S_T0}, s{S_SEG}, 36864"); A(f"s_mul_i32 s{S_T1}, s{S_NJ}, 192"); A(f"s_add_u32 s{S_T0}, s{S_T0}, s{S_T1}")
    A(f"s_mul_i32 s{S_T1}, s{S_WV}, 48"); A(f"s_add_u32 s{S_T0}, s{S_T0}, s{S_T1}")
    A("s_waitcnt vmcnt(0)")
    for r in range(12): A(f"v_add_f32 v{V_F+r}, v{V_F+r}, v{V_F+12+r}")
    for r in range(12): A(f"v_add_f32 v{V_F+24+r}, v{V_F+24+r}, v{V_F+36+r}")
    for r in range(12): A(f"v_add_f32 v{V_F+r}, v{V_F+r}, v{V_F+24+r}")
    for j in range(6): A(f"v_cvt_pk_bf16_f32 v{V_F+12+j}, v{V_F+2*j}, v{V_F+2*j+1}")
    for i in range(3): A(f"buffer_store_dwordx2 {v(V_F+12+2*i,2)}, v{V_OUT}, {s(S_OUT,4)}, s{S_T0} offen offset:{i*16}")
    A.label(L_next)
    A(f"s_add_u32 s{S_SEG}, s{S_SEG}, {stride}")
    A(f"s_cmp_lt_u32 s{S_SEG}, 64")
    A.flush_hazards()
    A(f"s_cbranch_scc1 {L_loop}")
    A("s_waitcnt vmcnt(0)")

S_NX = 60; S_PEND = 61; S_RDY = 62; S_OC = 63
OOR = 0x20000000

def op_loop2(A, L_exit, stride, cfg=None):
    cfg = cfg or {}
    WS = s(S_WS, 4); MF = "v_mfma_f32_32x32x16_bf16"
    L_loop = A.newlabel("p_loop"); L_have = A.newlabel("p_have"); Lp = A.newlabel("p_rp"); Lok = A.newlabel("p_rok")
    V_ONE = V_T + 2; V_PL = V_T + 3; V_PA = V_T + 4; V_TA = V_T + 5; V_TD = V_T + 6
    S_TCH = 64
    def touch(sr):
        if cfg.get("touch", 0): A(f"buffer_load_dword v{V_TD}, v{V_TA}, {WS}, s{sr} offen sc1")
    def ost(i):
        if not cfg.get("ost"): return
        A(f"s_memrealtime s[{70+2*i}:{71+2*i}]")
        A("s_waitcnt lgkmcnt(0)")
    def odump():
        if not cfg.get("ost"): return
        for k in range(5): A(f"v_writelane_b32 v{V_T+7}, s{70+2*k}, {k}")
        A(f"v_writelane_b32 v{V_T+7}, s{S_RDY}, 5")
        A(f"v_lshrrev_b32 v{V_T}, 2, v{V_L16}")
        A(f"s_lshl_b32 s2, s{S_SLOTID}, 2"); A(f"s_add_u32 s2, s2, s{S_WV}"); A(f"s_lshl_b32 s2, s2, 7"); A(f"s_add_u32 s2, s2, s{S_SEG}")
        A(f"s_lshl_b32 s2, s2, 5"); A(f"s_add_u32 s2, s2, {WS_DBG + 0x200000}")
        A("s_mov_b64 exec, 0xff")
        A(f"buffer_store_dword v{V_T+7}, v{V_T}, {WS}, s2 offen")
        A("s_mov_b64 exec, -1")
    def seg_addr(dst, seg):
        A(f"s_lshl_b32 s{dst}, s{seg}, 4"); A(f"s_lshl_b32 s{S_T0}, s{S_KQ}, 2"); A(f"s_add_u32 s{dst}, s{dst}, s{S_T0}")
        A(f"s_add_u32 s{dst}, s{dst}, s{S_WV}"); A(f"s_lshl_b32 s{dst}, s{dst}, 15"); A(f"s_add_u32 s{dst}, s{dst}, {WS_O}")
    def signal():
        A("s_mov_b64 exec, 1")
        A(f"buffer_atomic_add v{V_ONE}, off, {WS}, s{S_PEND}")
        A("s_mov_b64 exec, -1")
        A(f"s_mov_b32 s{S_PEND}, {hex(OOR)}")
    def ld(f, sr):
        if f % 4 == 0 and f: A(f"s_add_u32 s{sr}, s{sr}, 4096")
        A(f"buffer_load_dwordx4 {v(V_F+4*(f%16),4)}, v{V_L16}, {WS}, s{sr} offen offset:{(f&3)*1024} sc1")
    A(f"v_mov_b32 v{V_ONE}, 1")
    A(f"v_and_b32 v{V_PA}, 1, v0"); A(f"v_mul_u32_u24 v{V_PA}, {stride*256}, v{V_PA}")
    A(f"v_min_u32 v{V_TA}, 42, v0"); A(f"v_mul_u32_u24 v{V_TA}, 6, v{V_TA}"); A(f"v_add_u32 v{V_TA}, s{S_NJ}, v{V_TA}")
    A(f"v_min_u32 v{V_TA}, 0xff, v{V_TA}"); A(f"v_lshlrev_b32 v{V_TA}, 7, v{V_TA}")
    A(f"s_mov_b32 s{S_PEND}, {hex(OOR)}")
    A(f"s_mov_b32 s{S_RDY}, 0")
    A(f"s_lshl_b32 s{S_OC}, s{S_SEG}, 2"); A(f"s_add_u32 s{S_OC}, s{S_OC}, s{S_KQ}")
    A(f"s_lshl_b32 s{S_OC}, s{S_OC}, 6"); A(f"s_add_u32 s{S_OC}, s{S_OC}, {WS_OC}")
    A.label(L_loop)
    ost(0)
    A(f"s_cmp_lg_u32 s{S_RDY}, 0")
    A(f"s_cbranch_scc1 {L_have}")
    A("s_waitcnt vmcnt(0)")
    signal()
    A.label(Lp)
    A(f"buffer_load_dword v{V_PL}, off, {WS}, s{S_OC} sc1")
    A("s_waitcnt vmcnt(0)")
    A(f"v_readfirstlane_b32 s{S_T1}, v{V_PL}")
    A("s_nop 3")
    A(f"s_cmp_ge_u32 s{S_T1}, 16")
    A(f"s_cbranch_scc1 {Lok}")
    A("s_sleep 2")
    A(f"s_sub_u32 s{S_BUD}, s{S_BUD}, 1")
    A(f"s_cmp_lg_u32 s{S_BUD}, 0")
    A(f"s_cbranch_scc1 {Lp}")
    A(f"s_branch {L_exit}")
    A.label(Lok)
    seg_addr(S_NX, S_SEG)
    touch(S_NX)
    for f in range(16): ld(f, S_NX)
    A.label(L_have)
    ost(1)
    A(f"s_mov_b32 s{S_OA}, s{S_NX}")
    A(f"s_add_u32 s{S_OC}, s{S_OC}, {stride*256}")
    A(f"s_mul_i32 s{S_CT}, s{S_SEG}, 6"); A(f"s_add_u32 s{S_CT}, s{S_CT}, s{S_NJ}")
    A(f"s_mul_i32 s{S_PB}, s{S_CT}, {4*12288}"); A(f"s_add_u32 s{S_PB}, s{S_PB}, {WS_OP}")
    A(f"s_mul_i32 s{S_T0}, s{S_KQ}, 12288"); A(f"s_add_u32 s{S_PB}, s{S_PB}, s{S_T0}")
    A(f"s_add_u32 s{S_SEG}, s{S_SEG}, {stride}")
    for f in range(32):
        if f == 0: n = 15
        elif f <= 15: n = 15
        elif f == 16: n = 14
        elif f == 17: n = 14
        else: n = (31 - f) + (f - 17)
        A(f"s_waitcnt vmcnt({n})")
        if f == 16: ost(2)
        for nt in range(3):
            acc = v(V_ACC + 16 * nt, 16)
            A(f"{MF} {acc}, {R(WO+4*(3*f+nt),4)}, {v(V_F+4*(f%16),4)}, {'0' if f == 0 else acc}")
            if f == 0 and nt == 0: A(f"buffer_load_dword v{V_PL}, v{V_PA}, {WS}, s{S_OC} offen sc1")
            if nt == 0 and 1 <= f <= 16: ld(f + 15, S_OA)
            if f == 16 and nt == 1:
                A(f"v_readlane_b32 s{S_T1}, v{V_PL}, 0")
                A(f"v_readlane_b32 s{S_T2}, v{V_PL}, 1")
                seg_addr(S_NX, S_SEG)
                A(f"s_add_u32 s{S_TCH}, s{S_NX}, {stride << 19}")
                A(f"s_cmp_lt_u32 s{S_SEG}, {64 - stride}"); A(f"s_cselect_b32 s{S_T2}, s{S_T2}, 0")
                A(f"s_cmp_ge_u32 s{S_T1}, 16"); A(f"s_cselect_b32 s{S_RDY}, 1, 0")
                A(f"s_cmp_lt_u32 s{S_SEG}, 64"); A(f"s_cselect_b32 s{S_RDY}, s{S_RDY}, 0")
                A(f"s_cmp_lg_u32 s{S_RDY}, 0"); A(f"s_cselect_b32 s{S_NX}, s{S_NX}, {hex(OOR)}")
                A(f"s_cmp_ge_u32 s{S_T2}, 16"); A(f"s_cselect_b32 s{S_TCH}, s{S_TCH}, s{S_NX}")
            if f == 17 and nt == 0: signal(); touch(S_TCH)
            if nt == 1 and f >= 17: ld(f - 17, S_NX)
    ld(15, S_NX)
    ost(3)
    for j in range(12): A(f"ds_write_b128 v{V_RW}, {v(V_ACC+4*j,4)} offset:{j*1024}")
    A("s_waitcnt lgkmcnt(0)")
    A("s_barrier")
    for src in range(4):
        for i in range(3): A(f"ds_read_b128 {v(V_ACC+12*src+4*i,4)}, v{V_RR} offset:{src*12288 + i*1024}")
    A("s_waitcnt lgkmcnt(6)")
    for r in range(0, 12, 2): A(f"v_pk_add_f32 {v(V_ACC+r,2)}, {v(V_ACC+r,2)}, {v(V_ACC+12+r,2)}")
    A("s_waitcnt lgkmcnt(0)")
    A("s_barrier")
    for r in range(0, 12, 2): A(f"v_pk_add_f32 {v(V_ACC+24+r,2)}, {v(V_ACC+24+r,2)}, {v(V_ACC+36+r,2)}")
    for r in range(0, 12, 2): A(f"v_pk_add_f32 {v(V_ACC+r,2)}, {v(V_ACC+r,2)}, {v(V_ACC+24+r,2)}")
    for i in range(3): A(f"buffer_store_dwordx4 {v(V_ACC+4*i,4)}, v{V_RR}, {WS}, s{S_PB} offen offset:{i*1024} sc1")
    A(f"s_lshl_b32 s{S_PEND}, s{S_CT}, 6"); A(f"s_lshl_b32 s{S_T0}, s{S_WV}, 4"); A(f"s_add_u32 s{S_PEND}, s{S_PEND}, s{S_T0}")
    A(f"s_add_u32 s{S_PEND}, s{S_PEND}, {WS_CNT}")
    ost(4); odump()
    A(f"s_cmp_lt_u32 s{S_SEG}, 64")
    A.flush_hazards()
    A(f"s_cbranch_scc1 {L_loop}")
    A("s_waitcnt vmcnt(0)")
    signal()
    A("s_waitcnt vmcnt(0)")

def op_final(A, L_exit, stride):
    WS = s(S_WS, 4); T = V_T
    A(f"v_lshlrev_b32 v{V_L16}, 4, v0")
    A(f"s_mul_i32 s{S_T0}, s{S_WV}, 3072"); A(f"v_add_u32 v{V_RR}, s{S_T0}, v{V_L16}")
    A(f"v_lshrrev_b32 v{T}, 5, v0")
    A(f"v_and_b32 v{T+2}, 31, v0"); A(f"v_mul_u32_u24 v{V_OUT}, 1152, v{T+2}"); A(f"v_lshl_add_u32 v{V_OUT}, v{T}, 3, v{V_OUT}")
    L_loop = A.newlabel("f_loop"); Lp = A.newlabel("f_p"); Lok = A.newlabel("f_ok")
    A.label(L_loop)
    A(f"s_mul_i32 s{S_CT}, s{S_SEG}, 6"); A(f"s_add_u32 s{S_CT}, s{S_CT}, s{S_NJ}")
    A(f"s_lshl_b32 s{S_OC}, s{S_CT}, 6"); A(f"s_lshl_b32 s{S_T0}, s{S_WV}, 4"); A(f"s_add_u32 s{S_OC}, s{S_OC}, s{S_T0}")
    A(f"s_add_u32 s{S_OC}, s{S_OC}, {WS_CNT}")
    A(f"s_mul_i32 s{S_PB}, s{S_CT}, {4*12288}"); A(f"s_add_u32 s{S_PB}, s{S_PB}, {WS_OP}")
    A.label(Lp)
    A(f"buffer_load_dword v{T}, off, {WS}, s{S_OC} sc1")
    A("s_waitcnt vmcnt(0)")
    A(f"v_readfirstlane_b32 s{S_T1}, v{T}")
    A("s_nop 3")
    A(f"s_cmp_ge_u32 s{S_T1}, 4")
    A(f"s_cbranch_scc1 {Lok}")
    A("s_sleep 2")
    A(f"s_sub_u32 s{S_BUD}, s{S_BUD}, 1")
    A(f"s_cmp_lg_u32 s{S_BUD}, 0")
    A(f"s_cbranch_scc1 {Lp}")
    A(f"s_branch {L_exit}")
    A.label(Lok)
    for src in range(4):
        for i in range(3): A(f"buffer_load_dwordx4 {v(V_F+12*src+4*i,4)}, v{V_RR}, {WS}, s{S_PB} offen offset:{i*1024} sc1")
        A(f"s_add_u32 s{S_PB}, s{S_PB}, 12288")
    A(f"s_mul_i32 s{S_T0}, s{S_SEG}, 36864"); A(f"s_mul_i32 s{S_T1}, s{S_NJ}, 192"); A(f"s_add_u32 s{S_T0}, s{S_T0}, s{S_T1}")
    A(f"s_mul_i32 s{S_T1}, s{S_WV}, 48"); A(f"s_add_u32 s{S_T0}, s{S_T0}, s{S_T1}")
    A("s_waitcnt vmcnt(0)")
    for r in range(12): A(f"v_add_f32 v{V_F+r}, v{V_F+r}, v{V_F+12+r}")
    for r in range(12): A(f"v_add_f32 v{V_F+24+r}, v{V_F+24+r}, v{V_F+36+r}")
    for r in range(12): A(f"v_add_f32 v{V_F+r}, v{V_F+r}, v{V_F+24+r}")
    for j in range(6): A(f"v_cvt_pk_bf16_f32 v{V_F+12+j}, v{V_F+2*j}, v{V_F+2*j+1}")
    for i in range(3): A(f"buffer_store_dwordx2 {v(V_F+12+2*i,2)}, v{V_OUT}, {s(S_OUT,4)}, s{S_T0} offen offset:{i*16}")
    A(f"s_add_u32 s{S_SEG}, s{S_SEG}, {stride}")
    A(f"s_cmp_lt_u32 s{S_SEG}, 64")
    A.flush_hazards()
    A(f"s_cbranch_scc1 {L_loop}")
    A("s_waitcnt vmcnt(0)")

def op_prefetch(A, L_exit, stride, ahead=3):
    WS = s(S_WS, 4); T = V_T
    A(f"v_lshlrev_b32 v{V_L16}, 7, v0")
    A(f"s_lshl_b32 s{S_KQ}, s{S_NJ}, 1"); A(f"s_lshr_b32 s{S_T0}, s{S_WV}, 1"); A(f"s_add_u32 s{S_KQ}, s{S_KQ}, s{S_T0}")
    L_loop = A.newlabel("x_loop"); Lgo = A.newlabel("x_go")
    def spin(soff, target):
        Lp = A.newlabel("x_p"); Lok = A.newlabel("x_ok")
        A.label(Lp)
        A(f"buffer_load_dword v{T}, off, {WS}, s{soff} sc1")
        A("s_waitcnt vmcnt(0)")
        A(f"v_readfirstlane_b32 s{S_T1}, v{T}")
        A("s_nop 3")
        A(f"s_cmp_ge_u32 s{S_T1}, {target}")
        A(f"s_cbranch_scc1 {Lok}")
        A("s_sleep 2")
        A(f"s_sub_u32 s{S_BUD}, s{S_BUD}, 1")
        A(f"s_cmp_lg_u32 s{S_BUD}, 0")
        A(f"s_cbranch_scc1 {Lp}")
        A(f"s_branch {L_exit}")
        A.label(Lok)
    A.label(L_loop)
    A(f"s_cmp_lt_u32 s{S_SEG}, {ahead*stride}")
    A(f"s_cbranch_scc1 {Lgo}")
    A(f"s_sub_u32 s{S_CT}, s{S_SEG}, {ahead*stride}"); A(f"s_mul_i32 s{S_CT}, s{S_CT}, {6*64}"); A(f"s_add_u32 s{S_CT}, s{S_CT}, {WS_CNT}")
    spin(S_CT, 1)
    A.label(Lgo)
    A(f"s_lshl_b32 s{S_OC}, s{S_SEG}, 2"); A(f"s_add_u32 s{S_OC}, s{S_OC}, s{S_KQ}")
    A(f"s_lshl_b32 s{S_OA}, s{S_OC}, 17"); A(f"s_and_b32 s{S_T0}, s{S_WV}, 1"); A(f"s_lshl_b32 s{S_T0}, s{S_T0}, 16")
    A(f"s_add_u32 s{S_OA}, s{S_OA}, s{S_T0}"); A(f"s_add_u32 s{S_OA}, s{S_OA}, {WS_O}")
    A(f"s_lshl_b32 s{S_OC}, s{S_OC}, 6"); A(f"s_add_u32 s{S_OC}, s{S_OC}, {WS_OC}")
    spin(S_OC, 16)
    for i in (0, 4, 1, 5, 2, 6, 3, 7):
        A(f"s_add_u32 s{S_T0}, s{S_OA}, {i*8192}")
        A(f"buffer_load_dword v{V_F+i}, v{V_L16}, {WS}, s{S_T0} offen sc1")
    A(f"s_add_u32 s{S_SEG}, s{S_SEG}, {stride}")
    A(f"s_cmp_lt_u32 s{S_SEG}, 64")
    A(f"s_cbranch_scc1 {L_loop}")
    A("s_waitcnt vmcnt(0)")
```

```python
from common import *

S_WI = 46; S_BH = 47; S_C = 48; S_B = 49; S_H = 50; S_WV = 51
S_T0 = 52; S_T1 = 53; S_T2 = 54; S_T3 = 55; S_SLOT = 56; S_SEG = 57; S_N = 58; S_LSLOT = 59
S_XOFF = 96; S_KVOFF = 97; S_CNT = 98

XT = 36864

def load_w32(A, srd_list, dst_list, v_goff, v_tr, lane_tmp=None):
    nm = len(srd_list)
    def dma(m, u):
        A(f"s_add_u32 m0, s{S_T1}, {u*1024}")
        A(f"s_add_u32 s{S_T2}, s{S_T0}, {u*131072}")
        A(f"buffer_load_dwordx4 {v(v_goff)}, {s(srd_list[m],4)}, s{S_T2} offen lds")
    for u in range(36): dma(0, u)
    G = 4
    for m in range(nm):
        for u0 in range(0, 36, G):
            out = 36 if m < nm - 1 else 36 - u0
            A(f"s_waitcnt vmcnt({out - G})")
            for u in range(u0, u0 + G):
                d = dst_list[m] + 4 * u
                A(f"ds_read_b64_tr_b16 {R(d,2)}, {v(v_tr)} offset:{u*1024}")
                A(f"ds_read_b64_tr_b16 {R(d+2,2)}, {v(v_tr)} offset:{u*1024+256}")
            if m < nm - 1:
                A("s_waitcnt lgkmcnt(0)")
                for u in range(u0, u0 + G): dma(m + 1, u)
    A("s_waitcnt lgkmcnt(0)")

def worker_setup(A):
    A(f"s_lshr_b32 s{S_T0}, s{S_WI}, 5"); A(f"s_and_b32 s{S_T1}, s{S_WI}, 31")
    A(f"s_mul_i32 s{S_T2}, s{S_T0}, 11"); A(f"s_mul_i32 s{S_T3}, s{S_T0}, 10"); A(f"s_add_u32 s{S_T3}, s{S_T3}, 4")
    A(f"s_cmp_lt_u32 s{S_T0}, 4")
    A(f"s_cselect_b32 s{S_T2}, s{S_T2}, s{S_T3}"); A(f"s_cselect_b32 s{S_T3}, 10, 12")
    A(f"s_sub_u32 s{S_C}, s{S_T1}, s{S_T3}")
    A(f"s_lshr_b32 s{S_BH}, s{S_C}, 1"); A(f"s_add_u32 s{S_BH}, s{S_BH}, s{S_T2}"); A(f"s_and_b32 s{S_C}, s{S_C}, 1")
    A(f"s_cmp_lt_u32 s{S_T1}, s{S_T3}")
    A(f"s_cselect_b32 s{S_C}, 2, s{S_C}"); A(f"s_cselect_b32 s{S_BH}, s{S_T1}, s{S_BH}")
    A(f"s_lshr_b32 s{S_B}, s{S_BH}, 5")
    A(f"s_and_b32 s{S_H}, s{S_BH}, 31")
    A("v_lshrrev_b32 v1, 6, v0")
    A(f"v_readfirstlane_b32 s{S_WV}, v1")
    A("v_and_b32 v0, 63, v0")
    build_branch_srds(A, S_B)

V_GOFF = 1; V_TR = 2; V_XG = 3; V_XB = 4
V_XA = 8
V_L16 = 12
V_T = 13
V_XF = 16
V_PK = 32
V_ACC = 48
WK = 112
WVV = 256

def worker_consts(A):
    A(f"v_lshrrev_b32 v{V_T}, 2, v0")
    A(f"v_lshlrev_b32 v{V_GOFF}, 13, v{V_T}")
    A(f"v_and_b32 v{V_T+1}, 3, v0")
    A(f"v_lshl_add_u32 v{V_GOFF}, v{V_T+1}, 4, v{V_GOFF}")
    A(f"v_lshrrev_b32 v{V_T}, 5, v0")
    A(f"v_lshlrev_b32 v{V_TR}, 9, v{V_T}")
    A(f"v_bfe_u32 v{V_T}, v0, 2, 2")
    A(f"v_lshl_add_u32 v{V_TR}, v{V_T}, 6, v{V_TR}")
    A(f"v_bfe_u32 v{V_T}, v0, 4, 1")
    A(f"v_lshl_add_u32 v{V_TR}, v{V_T}, 5, v{V_TR}")
    A(f"v_lshl_add_u32 v{V_TR}, v{V_T+1}, 3, v{V_TR}")
    A(f"s_mul_i32 s{S_T1}, s{S_WV}, {XT}")
    A(f"v_add_u32 v{V_TR}, s{S_T1}, v{V_TR}")
    A(f"v_lshlrev_b32 v{V_L16}, 4, v0")
    A(f"v_lshrrev_b32 v{V_T}, 3, v0")
    A(f"s_lshl_b32 s{S_T2}, s{S_WV}, 3")
    A(f"v_add_u32 v{V_T}, s{S_T2}, v{V_T}")
    A(f"v_bfe_u32 v{V_T+1}, v{V_T}, 1, 3")
    A(f"v_and_b32 v{V_T+2}, 7, v0")
    A(f"v_xor_b32 v{V_T+1}, v{V_T+1}, v{V_T+2}")
    A(f"v_mul_u32_u24 v{V_XG}, 1152, v{V_T}")
    A(f"v_lshl_add_u32 v{V_XG}, v{V_T+1}, 4, v{V_XG}")
    A(f"v_and_b32 v{V_T}, 31, v0")
    A(f"v_bfe_u32 v{V_T+1}, v0, 1, 3")
    A(f"v_lshrrev_b32 v{V_T+2}, 5, v0")
    A(f"v_xor_b32 v{V_T+1}, v{V_T+1}, v{V_T+2}")
    for q in range(4):
        A(f"v_xor_b32 v{V_T+2}, {2*q}, v{V_T+1}")
        A(f"v_lshlrev_b32 v{V_T+2}, 4, v{V_T+2}")
        A(f"v_lshl_add_u32 v{V_XB+q}, v{V_T}, 7, v{V_T+2}")

def x_dma(A, cb):
    A(f"s_add_u32 m0, s{S_LSLOT}, {cb*4096}")
    A(f"s_add_u32 s{S_T2}, s{S_XOFF}, {cb*128}")
    A(f"buffer_load_dwordx4 {v(V_XG)}, {s(S_X,4)}, s{S_T2} offen lds")

def phase_a(A, publish=None, before_loop=None, stride=1, first_reg=None, cfg=None):
    cfg = cfg or {}
    A(f"s_lshl_b32 s{S_T0}, s{S_H}, 8")
    A(f"s_lshl_b32 s{S_T2}, s{S_WV}, 6")
    A(f"s_add_u32 s{S_T0}, s{S_T0}, s{S_T2}")
    A(f"s_mul_i32 s{S_T1}, s{S_WV}, {XT}")
    load_w32(A, [S_W2, S_W3], [WK, WVV], V_GOFF, V_TR)
    A("s_barrier")
    if first_reg is None: A(f"s_mov_b32 s{S_SEG}, 0")
    else: A(f"s_mov_b32 s{S_SEG}, s{first_reg}")
    A(f"s_mul_i32 s{S_XOFF}, s{S_SEG}, {XT}")
    A(f"s_lshl_b32 s{S_LSLOT}, s{S_WV}, 10")
    for t in range(3):
        for cb in range(9): x_dma(A, cb)
        A(f"s_add_u32 s{S_XOFF}, s{S_XOFF}, {stride*XT}")
        A(f"s_add_u32 s{S_LSLOT}, s{S_LSLOT}, {XT}")
    A(f"s_mov_b32 s{S_SLOT}, {XT}")
    A(f"s_mov_b32 s{S_CNT}, 0")
    A(f"s_lshl_b32 s{S_KVOFF}, s{S_BH}, 6")
    A(f"s_add_u32 s{S_KVOFF}, s{S_KVOFF}, s{S_SEG}")
    A(f"s_lshl_b32 s{S_KVOFF}, s{S_KVOFF}, 14")
    A(f"s_lshl_b32 s{S_T2}, s{S_WV}, 11")
    A(f"s_add_u32 s{S_KVOFF}, s{S_KVOFF}, s{S_T2}")
    if before_loop is not None: before_loop(A)
    A("s_waitcnt vmcnt(18)")
    A("s_barrier")
    for q in range(4): A(f"v_mov_b32 v{V_XA+q}, v{V_XB+q}")
    def rd(u):
        u %= 36
        A(f"ds_read_b128 {v(V_XF+4*(u%4),4)}, {v(V_XA+(u&3))} offset:{(u>>2)*4096}")
    for u in range(3): rd(u)

    def epi(accset):
        g = []
        base = V_ACC + 32 * accset
        for m in range(2):
            for hf in range(2):
                pk = V_PK + (m * 2 + hf) * 4
                cv = [f"v_cvt_pk_bf16_f32 v{pk+i}, v{base+16*m+8*hf+2*i}, v{base+16*m+8*hf+2*i+1}" for i in range(4)]
                g.append((cv, f"buffer_store_dwordx4 {v(pk,4)}, {v(V_L16)}, {s(S_WS,4)}, s{S_T3 if m == 0 else S_N} offen offset:{hf*1024} sc1"))
        return g

    def body(accset, first):
        accK = V_ACC + 32 * accset; accV = accK + 16
        plan = {}
        put = lambda u, h, f: plan.setdefault((u, h), []).append(f)
        if not first:
            put(0, 0, lambda: A(f"s_mov_b32 s{S_T3}, s{S_KVOFF}")); put(0, 0, lambda: A(f"s_add_u32 s{S_N}, s{S_KVOFF}, 8192"))
            for k, (cv, st) in enumerate(epi(1 - accset)):
                for o in cv: put(1 + 2 * k, 0, lambda o=o: A(o))
                if not cfg.get("anost"): put(1 + 2 * k, 1, lambda st=st: A(st))
            put(8, 0, lambda: A(f"s_add_u32 s{S_KVOFF}, s{S_KVOFF}, {stride*16384}"))
        put(8, 1, lambda: A("s_barrier"))
        for cb in range(9):
            if not cfg.get("anodma"): put(9 + 2 * cb, 0, lambda cb=cb: x_dma(A, cb))
        put(28, 0, lambda: A(f"s_waitcnt vmcnt({cfg.get('avm', 9)})"))
        put(28, 1, lambda: A("s_barrier"))
        if publish is not None: put(29, 0, lambda: publish(A))
        for q in range(4): put(30 + q, 1, lambda q=q: A(f"v_add_u32 v{V_XA+q}, s{S_SLOT}, v{V_XB+q}"))
        adv = [f"s_add_u32 s{S_XOFF}, s{S_XOFF}, {stride*XT}", f"s_add_u32 s{S_LSLOT}, s{S_LSLOT}, {XT}",
               f"s_cmp_ge_u32 s{S_LSLOT}, {4*XT}", f"s_cselect_b32 s{S_T2}, {4*XT}, 0", f"s_sub_u32 s{S_LSLOT}, s{S_LSLOT}, s{S_T2}"]
        for o in adv: put(27, 0, lambda o=o: A(o))
        adv2 = [f"s_add_u32 s{S_SLOT}, s{S_SLOT}, {XT}", f"s_cmp_ge_u32 s{S_SLOT}, {4*XT}", f"s_cselect_b32 s{S_SLOT}, 0, s{S_SLOT}",
                f"s_add_u32 s{S_SEG}, s{S_SEG}, {stride}"]
        for o in adv2: put(34, 1, lambda o=o: A(o))
        for u in range(36):
            A(f"s_waitcnt lgkmcnt(2)")
            xf = v(V_XF + 4 * (u % 4), 4)
            A(f"v_mfma_f32_32x32x16_bf16 {v(accK,16)}, {R(WK+4*u,4)}, {xf}, {'0' if u == 0 else v(accK,16)}")
            rd(u + 3)
            for f in plan.get((u, 0), []): f()
            A(f"v_mfma_f32_32x32x16_bf16 {v(accV,16)}, {xf}, {R(WVV+4*u,4)}, {'0' if u == 0 else v(accV,16)}")
            for f in plan.get((u, 1), []): f()

    L_loop = A.newlabel("a_loop"); L_end0 = A.newlabel("a_end0"); L_end1 = A.newlabel("a_end1"); L_done = A.newlabel("a_done")
    body(0, True)
    A.label(L_loop)
    body(1, False)
    A(f"s_cmp_ge_u32 s{S_SEG}, 64")
    A(f"s_cbranch_scc1 {L_end1}")
    body(0, False)
    A(f"s_cmp_lt_u32 s{S_SEG}, 64")
    A(f"s_cbranch_scc1 {L_loop}")
    for lab, st in ((L_end0, 0), (L_end1, 1)):
        A.label(lab)
        A(f"s_mov_b32 s{S_T3}, s{S_KVOFF}")
        A(f"s_add_u32 s{S_N}, s{S_KVOFF}, 8192")
        A("s_nop 15")
        for cv, sto in epi(st):
            for o in cv: A(o)
            A(sto)
        if st == 0: A(f"s_branch {L_done}")
    A.label(L_done)
    A("s_waitcnt vmcnt(0) lgkmcnt(0)")
    A("s_barrier")
```

```python
from common import *
import phase_a as PA
from phase_a import S_WI, S_BH, S_C, S_B, S_H, S_WV, S_T0, S_T1, S_T2, S_T3, S_SLOT, S_SEG, S_N, S_LSLOT, S_XOFF, S_KVOFF, S_CNT, XT
from phase_a import V_GOFF, V_TR, V_XG, V_XB, V_XA, V_L16, V_T, V_XF

S_BUD = 99
S_MASK = 60
S_SC = 100; S_NEG = 101
S_BATCH = 92; S_O = 93; S_KM = 94; S_G = 95
L_Q = 3 * XT

WQ = 256
V_QA = 32
V_PKQ = 48
V_QF = 56
V_KF = 88
V_VF = 120
V_MF = 152
V_VM = 184
V_SX = 192
V_SM = 208
V_O = 224
V_KMA = 4 + 0
V_AK = 13; V_AV = 14; V_GT = 15

def gate_part(A):
    Ls = A.newlabel("g_skip")
    A(f"s_cmp_lg_u32 s{S_C}, 1")
    A(f"s_cbranch_scc1 {Ls}")
    X = 32; G = 72; T = 112
    A(f"v_lshrrev_b32 v{T}, 3, v0")
    A(f"v_mul_u32_u24 v{T}, 1152, v{T}")
    A(f"v_and_b32 v{T+1}, 7, v0")
    A(f"v_lshlrev_b32 v{T+1}, 4, v{T+1}")
    A(f"v_add_u32 v{T}, v{T}, v{T+1}")
    A(f"s_lshl_b32 s{S_T0}, s{S_BH}, 2"); A(f"s_add_u32 s{S_T0}, s{S_T0}, s{S_WV}")
    A(f"s_mul_i32 s{S_T1}, s{S_T0}, {8*1152}")
    for i in range(9):
        A(f"buffer_load_dwordx4 {v(X+4*i,4)}, v{T}, {s(S_X,4)}, s{S_T1} offen offset:{128*i}")
        A(f"buffer_load_dwordx4 {v(G+4*i,4)}, v{T+1}, {s(S_GW,4)}, 0 offen offset:{128*i}")
    A(f"v_mov_b32 v{T+2}, 0"); A(f"v_mov_b32 v{T+3}, 0")
    A("s_waitcnt vmcnt(0)")
    for i in range(36):
        A(f"v_lshlrev_b32 v{T+4}, 16, v{X+i}"); A(f"v_lshlrev_b32 v{T+5}, 16, v{G+i}")
        A(f"v_fmac_f32 v{T+2}, v{T+4}, v{T+5}")
        A(f"v_and_b32 v{T+4}, 0xffff0000, v{X+i}"); A(f"v_and_b32 v{T+5}, 0xffff0000, v{G+i}")
        A(f"v_fmac_f32 v{T+3}, v{T+4}, v{T+5}")
    A(f"v_add_f32 v{T+2}, v{T+2}, v{T+3}")
    for pat in ("quad_perm:[1,0,3,2]", "quad_perm:[2,3,0,1]", "row_half_mirror"):
        A(f"v_add_f32_dpp v{T+3}, v{T+2}, v{T+2} {pat} row_mask:0xf bank_mask:0xf")
        A(f"v_mov_b32 v{T+2}, v{T+3}")
    A(f"v_mul_f32 v{T+2}, 0xbfb8aa3b, v{T+2}")
    A(f"v_exp_f32 v{T+2}, v{T+2}")
    A(f"v_add_f32 v{T+2}, 1.0, v{T+2}")
    A(f"v_rcp_f32 v{T+2}, v{T+2}")
    A(f"v_lshrrev_b32 v{T}, 3, v0"); A(f"v_lshlrev_b32 v{T}, 2, v{T}")
    A(f"s_lshl_b32 s{S_T0}, s{S_T0}, 5"); A(f"s_add_u32 s{S_T0}, s{S_T0}, {WS_GATE}")
    A(f"s_mov_b32 exec_lo, 0x01010101"); A(f"s_mov_b32 exec_hi, 0x01010101")
    A(f"buffer_store_dword v{T+2}, v{T}, {s(S_WS,4)}, s{S_T0} offen sc1")
    A(f"s_mov_b64 exec, -1")
    A("s_waitcnt vmcnt(0)")
    A.label(Ls)
    A.flush_hazards()

def phase_b(A, L_exit, first_batch_reg, stride, mem_wait=None, publish=None, kv_wait=None, before_loop=None):
    WS = s(S_WS, 4)
    MF = "v_mfma_f32_32x32x16_bf16"; MF8 = "v_mfma_f32_32x32x8_bf16"
    A(f"s_lshl_b32 s{S_T0}, s{S_H}, 8")
    A(f"s_lshl_b32 s{S_T2}, s{S_WV}, 6")
    A(f"s_add_u32 s{S_T0}, s{S_T0}, s{S_T2}")
    A(f"s_mul_i32 s{S_T1}, s{S_WV}, {XT}")
    PA.load_w32(A, [S_W1], [WQ], V_GOFF, V_TR)
    A("s_barrier")
    A(f"s_mov_b32 s{S_SC}, 0x3e0293ee")
    A(f"s_mov_b32 s{S_NEG}, 0xd028965f")
    A(f"v_and_b32 v{V_QA}, 31, v0"); A(f"v_lshrrev_b32 v{V_QA+1}, 5, v0"); A(f"v_lshlrev_b32 v{V_QA+2}, 2, v{V_QA+1}")
    A(f"v_sub_u32 v{V_QA+2}, v{V_QA}, v{V_QA+2}")
    for r in range(16):
        A(f"v_cmp_le_i32 {s(S_MASK+2*r,2)}, {8*(r>>2) + (r&3)}, v{V_QA+2}")
    A(f"v_and_b32 v{V_QA+2}, 7, v0"); A(f"v_lshlrev_b32 v{V_AK}, 4, v{V_QA+2}")
    A(f"v_lshl_add_u32 v{V_AK}, v{V_QA+1}, 7, v{V_AK}")
    A(f"v_and_b32 v{V_QA+2}, 15, v0"); A(f"v_lshlrev_b32 v{V_AV}, 3, v{V_QA+2}")
    A(f"v_lshl_add_u32 v{V_AV}, v{V_QA+1}, 8, v{V_AV}")
    A(f"v_bfe_u32 v{V_QA+2}, v0, 4, 1"); A(f"v_lshl_add_u32 v{V_AV}, v{V_QA+2}, 2, v{V_AV}")
    V_GA = V_GOFF
    A(f"v_lshlrev_b32 v{V_GA}, 2, v{V_QA}")
    V_QW = V_TR
    A(f"s_lshl_b32 s{S_T0}, s{S_WV}, 11"); A(f"s_add_u32 s{S_T0}, s{S_T0}, {L_Q}")
    A(f"v_add_u32 v{V_QW}, s{S_T0}, v{V_L16}")
    A(f"s_mov_b32 s{S_BATCH}, {first_batch_reg}")
    A(f"s_mul_i32 s{S_XOFF}, s{S_BATCH}, {4*XT}")
    A(f"s_lshl_b32 s{S_LSLOT}, s{S_WV}, 10")
    for t in range(2):
        for cb in range(9): PA.x_dma(A, cb)
        A(f"s_add_u32 s{S_XOFF}, s{S_XOFF}, {XT}")
        A(f"s_add_u32 s{S_LSLOT}, s{S_LSLOT}, {XT}")
    A(f"s_mov_b32 s{S_SLOT}, 0")
    if before_loop is not None: before_loop(A)
    def q_gemm(kv):
        for i in range(4):
            A("s_waitcnt vmcnt(9)")
            A("s_barrier")
            for q in range(4): A(f"v_add_u32 v{V_XA+q}, s{S_SLOT}, v{V_XB+q}")
            def rd(u): A(f"ds_read_b128 {v(V_XF+4*(u%4),4)}, {v(V_XA+(u&3))} offset:{(u>>2)*4096}")
            for u in range(3): rd(u)
            fill = []
            if kv:
                A(f"s_add_u32 s{S_T3}, s{S_KVOFF}, {4096*i}")
                for f in range(4):
                    fill.append(lambda f=f: A(f"buffer_load_dwordx4 {v(V_KF+16*i+4*f,4)}, v{V_L16}, {WS}, s{S_T3} offen offset:{f*1024} sc1"))
                    fill += [None] * 3
                if i == 0: fill.append(lambda: A(f"buffer_load_dword v{V_GT}, v{V_GA}, {WS}, s{S_G} offen sc1"))
            for cb in range(9): fill += [lambda cb=cb: PA.x_dma(A, cb), None]
            for u in range(36):
                if u + 3 < 36: rd(u + 3)
                A(f"s_waitcnt lgkmcnt({min(3, 35-u)})")
                A(f"{MF} {v(V_QA,16)}, {R(WQ+4*u,4)}, {v(V_XF+4*(u%4),4)}, {'0' if u == 0 else v(V_QA,16)}")
                if fill:
                    f = fill.pop(0)
                    if f is not None: f()
            assert not any(fill)
            A(f"s_add_u32 s{S_XOFF}, s{S_XOFF}, {XT if i != 1 else XT + (stride-1)*4*XT}")
            A(f"s_add_u32 s{S_LSLOT}, s{S_LSLOT}, {XT}")
            A(f"s_cmp_ge_u32 s{S_LSLOT}, {3*XT}")
            A(f"s_cselect_b32 s{S_T2}, {3*XT}, 0")
            A(f"s_sub_u32 s{S_LSLOT}, s{S_LSLOT}, s{S_T2}")
            A(f"s_add_u32 s{S_SLOT}, s{S_SLOT}, {XT}")
            A(f"s_cmp_ge_u32 s{S_SLOT}, {3*XT}")
            A(f"s_cselect_b32 s{S_SLOT}, 0, s{S_SLOT}")
            for j in range(8): A(f"v_cvt_pk_bf16_f32 v{V_PKQ+j}, v{V_QA+2*j}, v{V_QA+2*j+1}")
            A(f"ds_write_b128 v{V_QW}, {v(V_PKQ,4)} offset:{i*8192}")
            A(f"ds_write_b128 v{V_QW}, {v(V_PKQ+4,4)} offset:{i*8192+1024}")
        A("s_waitcnt lgkmcnt(0)")
        A("s_barrier")
    q_gemm(False)
    L_loop = A.newlabel("b_loop"); L_lastb = A.newlabel("b_lastb"); L_att = A.newlabel("b_att")
    A.label(L_loop)
    A(f"s_lshl_b32 s{S_SEG}, s{S_BATCH}, 2"); A(f"s_add_u32 s{S_SEG}, s{S_SEG}, s{S_WV}")
    A(f"s_lshl_b32 s{S_T0}, s{S_BH}, 6"); A(f"s_add_u32 s{S_T0}, s{S_T0}, s{S_SEG}")
    A(f"s_lshl_b32 s{S_KVOFF}, s{S_T0}, 14")
    A(f"s_lshl_b32 s{S_KM}, s{S_T0}, 13"); A(f"s_add_u32 s{S_KM}, s{S_KM}, {WS_KVM}")
    A(f"s_lshl_b32 s{S_O}, s{S_SEG}, 6"); A(f"s_add_u32 s{S_O}, s{S_O}, s{S_BH}"); A(f"s_lshl_b32 s{S_O}, s{S_O}, 13")
    A(f"s_add_u32 s{S_O}, s{S_O}, {WS_O}")
    A(f"s_lshl_b32 s{S_G}, s{S_SEG}, 7"); A(f"s_add_u32 s{S_G}, s{S_G}, {WS_GATE}")
    A(f"s_lshl_b32 s{S_T0}, s{S_WV}, 13"); A(f"s_add_u32 s{S_T0}, s{S_T0}, {L_Q}")
    A(f"v_add_u32 v{V_PKQ}, s{S_T0}, v{V_L16}")
    for f in range(8): A(f"ds_read_b128 {v(V_QF+4*f,4)}, v{V_PKQ} offset:{f*1024}")
    if kv_wait is not None: kv_wait(A)
    A("s_waitcnt lgkmcnt(0)")
    A(f"s_cmp_ge_u32 s{S_BATCH}, {16 - stride}")
    A(f"s_cbranch_scc1 {L_lastb}")
    q_gemm(True)
    A("s_waitcnt vmcnt(9)")
    A(f"s_branch {L_att}")
    A.label(L_lastb)
    for i in range(4):
        A(f"s_add_u32 s{S_T3}, s{S_KVOFF}, {4096*i}")
        for f in range(4): A(f"buffer_load_dwordx4 {v(V_KF+16*i+4*f,4)}, v{V_L16}, {WS}, s{S_T3} offen offset:{f*1024} sc1")
    A(f"buffer_load_dword v{V_GT}, v{V_GA}, {WS}, s{S_G} offen sc1")
    A("s_waitcnt vmcnt(0)")
    A.label(L_att)
    for f in range(8):
        A(f"{MF} {v(V_SX,16)}, {v(V_KF+4*f,4)}, {v(V_QF+4*f,4)}, {'0' if f == 0 else v(V_SX,16)}")
    if mem_wait is not None: mem_wait(A)
    for u in range(8): A(f"buffer_load_dwordx4 {v(V_MF+4*u,4)}, v{V_AK}, {WS}, s{S_KM} offen offset:{u*256} sc1")
    A(f"s_add_u32 s{S_T0}, s{S_KM}, 4096")
    for e in range(4):
        A(f"buffer_load_dword v{V_VM+2*e}, v{V_AV}, {WS}, s{S_T0} offen offset:{e*512} sc1")
        A(f"buffer_load_dword v{V_VM+2*e+1}, v{V_AV}, {WS}, s{S_T0} offen offset:{e*512+128} sc1")
    A(f"v_mov_b32 v{V_PKQ}, s{S_NEG}")
    for r in range(16): A(f"v_cndmask_b32 v{V_SX+r}, v{V_PKQ}, v{V_SX+r}, {s(S_MASK+2*r,2)}")
    M = V_QA; M2 = V_QA + 1; LS = V_QA + 2; L2 = V_QA + 3
    A(f"v_max3_f32 v{M}, v{V_SX}, v{V_SX+1}, v{V_SX+2}")
    for r in range(3, 15, 2): A(f"v_max3_f32 v{M}, v{M}, v{V_SX+r}, v{V_SX+r+1}")
    A(f"v_max_f32 v{M}, v{M}, v{V_SX+15}")
    for u in range(8):
        A(f"s_waitcnt vmcnt({15-u})")
        A(f"{MF} {v(V_SM,16)}, {v(V_MF+4*u,4)}, {v(V_QF+4*u,4)}, {'0' if u == 0 else v(V_SM,16)}")
    A(f"v_max3_f32 v{M}, v{M}, v{V_SM}, v{V_SM+1}")
    A(f"v_max3_f32 v{M}, v{M}, v{V_SM+2}, v{V_SM+3}")
    A(f"v_mov_b32 v{M2}, v{M}")
    A(f"v_permlane32_swap_b32 v{M}, v{M2}")
    A(f"v_max_f32 v{M}, v{M}, v{M2}")
    A(f"v_mul_f32 v{M}, s{S_SC}, v{M}")
    Sv = [V_SX + r for r in range(16)] + [V_SM + r for r in range(4)]
    for x in Sv: A(f"v_fma_f32 v{x}, v{x}, s{S_SC}, -v{M}")
    for x in Sv: A(f"v_exp_f32 v{x}, v{x}")
    P = V_QA + 4
    for j in range(10): A(f"v_cvt_pk_bf16_f32 v{P+j}, v{Sv[2*j]}, v{Sv[2*j+1]}")
    A("s_waitcnt vmcnt(0)")
    def pv(e, o):
        A(f"{MF8} {v(o,16)}, {v(V_VM+2*e,2)}, {v(P+8,2)}, 0")
    def pv2(e, o):
        A(f"{MF} {v(o,16)}, {v(V_VF+8*e,4)}, {v(P,4)}, {v(o,16)}")
        A(f"{MF} {v(o,16)}, {v(V_VF+8*e+4,4)}, {v(P+4,4)}, {v(o,16)}")
    OT = [V_O, V_O + 16, V_KF, V_KF + 16]
    for e in range(4): pv(e, OT[e])
    A(f"v_add_f32 v{LS}, v{Sv[0]}, v{Sv[1]}"); A(f"v_add_f32 v{L2}, v{Sv[2]}, v{Sv[3]}")
    for j in range(4, 20, 2):
        A(f"v_add_f32 v{LS}, v{LS}, v{Sv[j]}"); A(f"v_add_f32 v{L2}, v{L2}, v{Sv[j+1]}")
    for e in range(4): pv2(e, OT[e])
    A(f"v_add_f32 v{LS}, v{LS}, v{L2}")
    A(f"v_mov_b32 v{L2}, v{LS}")
    A(f"v_permlane32_swap_b32 v{LS}, v{L2}")
    A(f"v_add_f32 v{LS}, v{LS}, v{L2}")
    A(f"v_rcp_f32 v{LS}, v{LS}")
    A(f"v_sub_f32 v{L2}, 1.0, v{V_GT}")
    A(f"s_cmp_eq_u32 s{S_B}, 0")
    A(f"s_cselect_b64 vcc, -1, 0")
    A(f"v_cndmask_b32 v{L2}, v{L2}, v{V_GT}, vcc")
    A(f"v_mul_f32 v{LS}, v{LS}, v{L2}")
    A(f"s_add_u32 s{S_T0}, s{S_O}, 4096")
    for e in range(4):
        o = OT[e]
        for r in range(16): A(f"v_mul_f32 v{o+r}, v{o+r}, v{LS}")
        for j in range(8): A(f"v_cvt_pk_bf16_f32 v{o+j}, v{o+2*j}, v{o+2*j+1}")
        sr = S_O if e < 2 else S_T0
        A(f"buffer_store_dwordx4 {v(o,4)}, v{V_L16}, {WS}, s{sr} offen offset:{(e&1)*2048} sc1")
        A(f"buffer_store_dwordx4 {v(o+4,4)}, v{V_L16}, {WS}, s{sr} offen offset:{(e&1)*2048+1024} sc1")
    if publish is not None: publish(A)
    A(f"s_add_u32 s{S_BATCH}, s{S_BATCH}, {stride}")
    A(f"s_cmp_lt_u32 s{S_BATCH}, 16")
    A.flush_hazards()
    A(f"s_cbranch_scc1 {L_loop}")
    A("s_waitcnt vmcnt(0)")
```

```python
from common import *

S_VER = 48
S_B = 49; S_H = 50; S_WV = 51
S_T0 = 52; S_T1 = 53; S_T2 = 54; S_T3 = 55
S_STEP = 56; S_BUD = 57
S_KV = 58
S_XM = 59
S_VM = 60
S_PQ = 61
S_P1 = 62
S_RED = 63
S_RED1 = 46
S_MEMW = 66
S_MEMW1 = 47
S_RZ = 64; S_RZ2 = 98
S_MEMG = 65
S_MSL = 67
S_GRAY = 68
S_W256 = 69
S_M0G = 70
S_TMW = 99
S_PAR = 36
S_EXW = 38
S_LG = 35
S_EL = 32
S_EJ = 33
S_FX = 43; S_FW = 40; S_FR = 42; S_F8 = 72
S_CKM = 34
S_MK = 76
S_EXA = 4
S_EXR = 6
S_SC = 100; S_BH = 101
S_ONE = 74

L_TM = 0; L_S = 1024; L_O = 5120; L_MEM = 7168; L_W = 16384; WREG = 36864

V_IDX = 0; V_P1 = 1; V_L16 = 2; V_TW = 3; V_ID = 4; V_SW = 6; V_OW = 7; V_PS = 8
V_WARM = 9
V_TMP = 10
V_AR = 12
V_QK = 24
V_VA = 40
V_KX = 48
V_VX = 56
V_STG = 64
TILE0 = 80

LDS_UNITS = [("q", 0), ("k", 2), ("q", 4), ("k", 6), ("q", 8), ("o", 8), ("o", 0), ("o", 5), ("o", 7)]
ALL_UNITS = [(m, t) for m in "qkvo" for t in range(9)]
REG_UNITS = [u for u in ALL_UNITS if u not in LDS_UNITS]
assert len(REG_UNITS) == 27
REG_OF = {u: TILE0 + 16 * i for i, u in enumerate(REG_UNITS)}
LSLOT = {u: i for i, u in enumerate(LDS_UNITS)}

def bits(A, dst, L, terms, tmp, first=True):
    for pos, n, sh in terms:
        A(f"v_bfe_u32 v{tmp}, v{L}, {pos}, {n}")
        if first:
            A(f"v_lshlrev_b32 v{dst}, {sh}, v{tmp}"); first = False
        else:
            A(f"v_lshl_add_u32 v{dst}, v{tmp}, {sh}, v{dst}")

def sbits(A, dst, src, terms, tmp, base=None):
    first = base is None
    if base is not None: A(f"s_mov_b32 s{dst}, {base}")
    for pos, n, sh in terms:
        A(f"s_bfe_u32 s{tmp}, s{src}, {hex((n << 16) | pos)}")
        A(f"s_lshl_b32 s{tmp}, s{tmp}, {sh}")
        if first: A(f"s_mov_b32 s{dst}, s{tmp}"); first = False
        else: A(f"s_add_u32 s{dst}, s{dst}, s{tmp}")

def rec_setup(A):
    A("v_lshrrev_b32 v1, 6, v0")
    A(f"v_readfirstlane_b32 s{S_WV}, v1")
    A("v_and_b32 v11, 63, v0")
    build_branch_srds(A, S_B)
    L = 11; T = 12
    A(f"s_lshl_b32 s{S_BH}, s{S_B}, 5")
    A(f"s_add_u32 s{S_BH}, s{S_BH}, s{S_H}")
    A(f"s_mov_b32 s{S_EXA}, 0x33333333"); A(f"s_mov_b32 s{S_EXA+1}, 0x33333333")
    A(f"s_mov_b32 s{S_EXR}, 0xf0f0f0f0"); A(f"s_mov_b32 s{S_EXR+1}, 0xf0f0f0f0")
    for d, m in enumerate((0x00110011, 0x00220022, 0x11001100, 0x22002200)):
        A(f"s_mov_b32 s{S_MK+2*d}, {hex(m)}"); A(f"s_mov_b32 s{S_MK+2*d+1}, {hex(m)}")
    A(f"s_mov_b32 s{S_SC}, 0x3e0293ee")
    A(f"s_mov_b32 s{S_BUD}, 0x100000")
    A(f"s_mov_b32 s{S_ONE}, 0x3f803f80"); A(f"s_mov_b32 s{S_ONE+1}, 0x3f803f80")
    A(f"s_lshl_b32 s{S_W256}, s{S_WV}, 8")
    A(f"v_lshlrev_b32 v{V_L16}, 4, v{L}")
    A(f"v_bfe_u32 v{T}, v{L}, 1, 1")
    A(f"v_mul_u32_u24 v{V_IDX}, 0xaaaa, v{T}")
    A(f"v_add_u32 v{V_IDX}, 0x4444, v{V_IDX}")
    A(f"s_mul_i32 s{S_T1}, s{S_WV}, {WREG}"); A(f"s_add_u32 s{S_T1}, s{S_T1}, {L_W}")
    A(f"v_add_u32 v{V_TW}, s{S_T1}, v{V_L16}")
    A(f"v_and_b32 v{T}, 1, v{L}"); A(f"v_lshlrev_b32 v{T}, 4, v{T}")
    A(f"v_mov_b32 v{T+1}, 0x3f80"); A(f"v_lshlrev_b32 v{T}, v{T}, v{T+1}")
    A(f"v_bfe_u32 v{T+1}, v{L}, 1, 3"); A(f"v_lshrrev_b32 v{T+2}, 4, v{L}"); A(f"v_lshlrev_b32 v{T+2}, 1, v{T+2}")
    A(f"v_sub_u32 v{T+1}, v{T+1}, v{T+2}")
    for d in range(2):
        A(f"v_cmp_eq_u32 vcc, {d}, v{T+1}")
        A(f"v_cndmask_b32 v{V_ID+d}, 0, v{T}, vcc")
    A(f"s_lshl_b32 s{S_T2}, s{S_WV}, 10"); A(f"v_add_u32 v{V_SW}, s{S_T2}, v{V_L16}")
    sbits(A, S_T2, S_WV, [(1, 1, 10), (0, 1, 5)], S_T3); A(f"v_add_u32 v{V_OW}, s{S_T2}, v{V_L16}")
    sbits(A, S_TMW, S_WV, [(1, 1, 5), (0, 1, 3)], S_T3)
    bits(A, V_PS, L, [(3, 3, 11), (0, 3, 3)], T)
    bits(A, V_P1, L, [(4, 2, 11), (0, 4, 2)], T)

def rec_bases(A):
    A(f"s_lshl_b32 s{S_KV}, s{S_BH}, 20")
    A(f"s_lshl_b32 s{S_T0}, s{S_WV}, 11")
    A(f"s_add_u32 s{S_KV}, s{S_KV}, s{S_T0}")
    A(f"s_lshl_b32 s{S_T1}, s{S_BH}, 19")
    A(f"s_add_u32 s{S_T1}, s{S_T1}, {WS_KVM}")
    A(f"s_lshl_b32 s{S_T0}, s{S_WV}, 9")
    A(f"s_add_u32 s{S_XM}, s{S_T1}, s{S_T0}")
    A(f"s_add_u32 s{S_VM}, s{S_T1}, 4096")
    A(f"s_add_u32 s{S_VM}, s{S_VM}, s{S_T0}")
    A(f"s_lshl_b32 s{S_T0}, s{S_B}, 20"); A(f"s_add_u32 s{S_T0}, s{S_T0}, {WS_PART}")
    A(f"s_lshl_b32 s{S_T1}, s{S_H}, 6"); A(f"s_add_u32 s{S_T1}, s{S_T1}, s{S_T0}")
    A(f"s_lshl_b32 s{S_T2}, s{S_WV}, 14"); A(f"s_add_u32 s{S_PQ}, s{S_T1}, s{S_T2}")
    A(f"s_lshl_b32 s{S_T2}, s{S_WV}, 13"); A(f"s_add_u32 s{S_P1}, s{S_T1}, s{S_T2}"); A(f"s_add_u32 s{S_P1}, s{S_P1}, {128*2048}")
    A(f"s_lshl_b32 s{S_T1}, s{S_H}, 11"); A(f"s_add_u32 s{S_T1}, s{S_T1}, s{S_T0}")
    A(f"s_lshl_b32 s{S_T2}, s{S_WV}, 16"); A(f"s_add_u32 s{S_RED}, s{S_T1}, s{S_T2}")
    A(f"s_add_u32 s{S_RED1}, s{S_T1}, {128*2048}")
    A(f"s_cmp_lt_u32 s{S_H}, 16"); A(f"s_cselect_b32 s{S_EJ}, 1, 0")
    A(f"s_cmp_eq_u32 s{S_WV}, 3"); A(f"s_cselect_b32 s{S_EJ}, s{S_EJ}, 0"); A(f"s_cselect_b32 s{S_EL}, s{S_RED1}, s{S_RED}")
    A(f"s_cmp_eq_u32 s{S_WV}, 0"); A(f"s_cselect_b32 s{S_EJ}, 1, s{S_EJ}"); A(f"s_cselect_b32 s{S_FX}, 3072, 0")
    A(f"s_lshl_b32 s{S_T0}, s{S_B}, 16"); A(f"s_add_u32 s{S_T0}, s{S_T0}, {WS_MEMI}")
    A(f"s_lshl_b32 s{S_T2}, s{S_WV}, 11"); A(f"s_add_u32 s{S_T3}, s{S_T2}, 1024")
    A(f"s_cmp_eq_u32 s{S_WV}, 0"); A(f"s_cselect_b32 s{S_T1}, 0, s{S_T3}")
    A(f"s_cselect_b32 s{S_CKM}, {47*16}, {31*16 if False else 's' + str(S_T1)}") if False else None
    A(f"s_add_u32 s{S_MEMG}, s{S_T0}, s{S_T1}")
    A(f"s_add_u32 s{S_M0G}, s{S_T1}, {L_MEM}")
    A(f"s_mov_b32 s{S_CKM}, {31*16}"); A(f"s_cmp_eq_u32 s{S_WV}, 0"); A(f"s_cselect_b32 s{S_CKM}, {47*16}, s{S_CKM}")
    sbits(A, S_MEMW, S_H, [(4, 1, 10), (3, 1, 9), (0, 1, 8), (1, 2, 6)], S_T1)
    A(f"s_add_u32 s{S_MEMW}, s{S_MEMW}, s{S_T3}"); A(f"s_add_u32 s{S_MEMW}, s{S_MEMW}, s{S_T0}")
    A(f"s_lshl_b32 s{S_MEMW1}, s{S_H}, 6"); A(f"s_add_u32 s{S_MEMW1}, s{S_MEMW1}, s{S_T0}")
    A(f"s_lshl_b32 s{S_T2}, s{S_H}, 2"); A(f"s_add_u32 s{S_FW}, s{S_T0}, s{S_T2}"); A(f"s_add_u32 s{S_FW}, s{S_FW}, 12288")
    A(f"s_and_b32 s{S_T2}, s{S_H}, 7"); A(f"s_lshl_b32 s{S_T2}, s{S_T2}, 7"); A(f"s_add_u32 s{S_FR}, s{S_T0}, s{S_T2}")
    A(f"s_add_u32 s{S_FR}, s{S_FR}, 12288")
    A(f"s_lshl_b32 s{S_T2}, s{S_WV}, 10"); A(f"s_add_u32 s{S_FR}, s{S_FR}, s{S_T2}"); A(f"s_add_u32 s{S_FW}, s{S_FW}, s{S_T2}")
    A(f"s_mov_b32 s{S_F8}, 0x01010101"); A(f"s_mov_b32 s{S_F8+1}, 0x01010101")
    A(f"s_mov_b32 s{S_MSL}, 0x4000")
    A(f"s_mov_b32 s{S_PAR}, 0")
    A(f"s_mov_b32 s{S_EXW}, 0xcccccccc"); A(f"s_mov_b32 s{S_EXW+1}, 0xcccccccc")
    A(f"s_mov_b32 s{S_GRAY}, 0x8000")
    A(f"s_mov_b32 s{S_STEP}, 0")
    A(f"s_mov_b32 s{S_VER}, 1")
    A(f"s_mov_b32 s{S_LG}, 0")

def advance_ops():
    return [f"s_add_u32 s{S_STEP}, s{S_STEP}, 1",
            f"s_add_u32 s{S_KV}, s{S_KV}, 16384",
            f"s_add_u32 s{S_XM}, s{S_XM}, 8192",
            f"s_add_u32 s{S_VM}, s{S_VM}, 8192",
            f"s_xor_b32 s{S_PAR}, s{S_PAR}, 1",
            f"s_xor_b32 s{S_MSL}, s{S_MSL}, s{S_GRAY}",
            f"s_xor_b32 s{S_GRAY}, s{S_GRAY}, 0xc000",
            f"s_mov_b32 s{S_VER}, 0",
            f"s_lshr_b32 s{S_LG}, s{S_WV}, 1"]

def load_weights(A, nt=" nt", hook=None):
    L = 11; T = 12
    P = dict(q1=48, q0=50, o=52, s=54)
    TQ = 56; TV = 57; TS = 59; TA = 16
    for par in range(2):
        A(f"v_lshrrev_b32 v{T}, 4, v{L}"); A(f"v_lshlrev_b32 v{T}, 1, v{T}"); A(f"v_xor_b32 v{T}, {8*par}, v{T}")
        A(f"v_and_b32 v{T+1}, 15, v{L}"); A(f"v_xor_b32 v{T+1}, v{T}, v{T+1}")
        bits(A, P["q1"] + par, L, [(4, 1, 17), (5, 1, 13)], T)
        bits(A, P["q0"] + par, L, [(4, 2, 13)], T)
        bits(A, P["o"] + par, L, [(4, 1, 0), (5, 1, 5)], T)
        A(f"v_mul_u32_u24 v{P['o']+par}, 1152, v{P['o']+par}")
        A(f"v_lshrrev_b32 v{T}, 3, v{T+1}"); A(f"v_mul_u32_u24 v{P['s']+par}, {64*1152 - 128}, v{T}")
        A(f"v_add_u32 v{P['s']+par}, v{P['s']+par}, v{P['o']+par}")
        for k in P: A(f"v_lshl_add_u32 v{P[k]+par}, v{T+1}, 4, v{P[k]+par}")
    SQ1 = 84; SQ0 = 85; SO = 86; SL = 87
    A(f"s_lshl_b32 s{S_T0}, s{S_H}, 8")
    sbits(A, SQ1, S_WV, [(1, 1, 18), (0, 1, 14)], S_T1); A(f"s_add_u32 s{SQ1}, s{SQ1}, s{S_T0}")
    sbits(A, SQ0, S_WV, [(1, 1, 18), (0, 1, 15)], S_T1); A(f"s_add_u32 s{SQ0}, s{SQ0}, s{S_T0}")
    sbits(A, SO, S_WV, [(1, 1, 3), (0, 1, 1)], S_T1); A(f"s_mul_i32 s{SO}, s{SO}, 1152")
    A(f"s_mul_i32 s{S_T0}, s{S_H}, 147456"); A(f"s_add_u32 s{SO}, s{SO}, s{S_T0}")
    A(f"s_mul_i32 s{SL}, s{S_WV}, {WREG}"); A(f"s_add_u32 s{SL}, s{SL}, {L_W}")
    A(f"v_bfe_u32 v{T}, v{L}, 2, 3"); A(f"v_lshlrev_b32 v{T}, 1, v{T}")
    bits(A, T + 1, L, [(2, 4, 8), (0, 1, 3)], T + 2)
    A(f"v_bfe_u32 v{T+2}, v{L}, 1, 1")
    A(f"s_lshl_b32 s{S_T0}, s{S_WV}, 2"); A(f"s_lshl_b32 s{S_T1}, s{S_WV}, 1")
    def rbase(dst, sreg, add, sh):
        A(f"v_lshlrev_b32 v{T+3}, {sh}, v{T+2}"); A(f"v_add_u32 v{T+3}, s{sreg}, v{T+3}"); A(f"v_add_u32 v{T+3}, {add}, v{T+3}")
        A(f"v_xor_b32 v{T+3}, v{T+3}, v{T}"); A(f"v_lshl_add_u32 v{dst}, v{T+3}, 4, v{T+1}")
    rbase(TQ, S_T0, 0, 1)
    for tau in range(2): rbase(TV + tau, S_T0, 2 * tau, 0); rbase(TS + tau, S_T1, 8 * tau, 0)
    srds = dict(q=S_W1, k=S_W2, v=S_W3, o=S_W4)
    def dma_unit(u, slot):
        m, t = u
        for gb in range(4):
            A(f"s_add_u32 m0, s{SL}, {slot*4096 + gb*1024}")
            if m != "o" and t >= 1:
                A(f"s_add_u32 s{S_T2}, s{SQ1}, {(64*(t-1) + 8*(gb>>1) + 4*(gb&1))*8192}"); vo = P["q1"]
            elif m != "o":
                A(f"s_add_u32 s{S_T2}, s{SQ0}, {(512 + 8*gb)*8192}"); vo = P["q0"]
            elif t < 8:
                A(f"s_add_u32 s{S_T2}, s{SO}, {(64*(t&1) + 4*(gb>>1) + 16*(gb&1))*1152 + (t>>1)*256}"); vo = P["o"]
            else:
                A(f"s_add_u32 s{S_T2}, s{SO}, {(4*(gb>>1) + 16*(gb&1))*1152 + 1024}"); vo = P["s"]
            A(f"buffer_load_dwordx4 v{vo + (gb&1)}, {s(srds[m],4)}, s{S_T2} offen{' nt' if m in nt else ''} lds")
    order = REG_UNITS + LDS_UNITS
    for i in range(9): dma_unit(order[i], i)
    issued = 9
    STG = [V_STG, 24]
    for i in range(37):
        if i < 36: A(f"s_waitcnt vmcnt({4*(issued - i - 1)})")
        if i == 0: finish_mem0(A)
        A("s_waitcnt lgkmcnt(0)")
        A("s_barrier")
        if hook is not None: hook(i)
        if i >= 1:
            if i - 1 < 27: dma_unit(order[i + 8], (i - 1) % 9); issued += 1
            else:
                for q in range(4): A(f"ds_write_b128 v{V_TW}, {v(STG[(i-1)&1]+4*q,4)} offset:{((i-1)%9)*4096 + q*1024}")
        if i == 36: break
        u = order[i]
        d = REG_OF[u] if i < 27 else STG[i & 1]
        for tau in range(2):
            for rr in range(4):
                base = TQ if u[0] in "qk" else (TS if u == ("o", 8) else TV) + tau
                if tau == 0 or u[0] not in "qk": A(f"v_add_u32 v{TA+rr}, {L_W + rr*WREG}, v{base}")
            for rr in range(4):
                A(f"ds_read_b64_tr_b16 {R(d+8*tau+2*rr,2)}, v{TA+rr} offset:{(i%9)*4096 + (16*tau if u[0] in 'qk' else 0)}")
    A("s_waitcnt lgkmcnt(0)")

def build_mem0(A):
    L = 11; T = 20
    bits(A, T, L, [(4, 2, 1), (2, 1, 0)], T + 1)
    A(f"v_mul_u32_u24 v{T}, 1152, v{T}")
    A(f"v_mov_b32 v{T+2}, v{T}")
    bits(A, T, L, [(0, 2, 2), (3, 1, 1)], T + 1, first=False)
    bits(A, T + 2, L, [(0, 2, 3), (3, 1, 2)], T + 1, first=False)
    sbits(A, S_T0, S_WV, [(1, 1, 6), (0, 1, 4)], S_T2)
    A(f"s_lshl_b32 s{S_T1}, s{S_WV}, 5")
    A(f"buffer_load_ushort v24, v{T+2}, {s(S_M0,4)}, s{S_T1} offen offset:1024")
    A(f"buffer_load_ushort v25, v{T+2}, {s(S_M0,4)}, s{S_T1} offen offset:1026")
    for t in range(8):
        A(f"buffer_load_ushort v{26+2*t}, v{T}, {s(S_M0,4)}, s{S_T0} offen offset:{128*t}")
        A(f"buffer_load_ushort v{27+2*t}, v{T}, {s(S_M0,4)}, s{S_T0} offen offset:{128*t+32}")
    A(f"v_lshlrev_b32 v{T+1}, 2, v{L}"); A(f"v_add_u32 v{T+1}, s{S_W256}, v{T+1}")

def finish_mem0(A):
    T = 20
    for t in range(9):
        A(f"v_lshl_or_b32 v{24+2*t}, v{25+2*t}, 16, v{24+2*t}")
        A(f"v_min_u32 v{24+2*t}, -2, v{24+2*t}")
        A(f"ds_write_b32 v{T+1}, v{24+2*t} offset:{L_MEM + 1024*t}")

def init_slots(A, st):
    Ls = A.newlabel("r_noinit")
    for i in range(4): A(f"v_mov_b32 v{V_STG+i}, -1")
    def part(sr, sm):
        for i in range(2):
            A(f"buffer_store_dwordx4 {v(V_STG,4)}, v{V_L16}, {s(S_WS,4)}, s{sr} offen offset:{i*1024}{st}")
        A(f"s_mov_b64 exec, 0xf")
        for m in (0, 0x4000, 0x8000, 0xc000):
            A(f"s_add_u32 s{S_T0}, s{sm}, {hex(m)}")
            A(f"buffer_store_dwordx4 {v(V_STG,4)}, v{V_L16}, {s(S_WS,4)}, s{S_T0} offen{st}")
        A(f"s_mov_b64 exec, -1")
    part(S_RED, S_MEMW)
    A(f"s_mov_b64 exec, 0xff")
    A(f"buffer_store_dwordx4 {v(V_STG,4)}, v{V_L16}, {s(S_WS,4)}, s{S_FR} offen{st}")
    A(f"s_mov_b64 exec, -1")
    A(f"s_lshl_b32 s{S_T1}, s{S_WV}, 5"); A(f"s_add_u32 s{S_T1}, s{S_T1}, s{S_H}")
    A(f"s_cmp_ge_u32 s{S_T1}, 16")
    A(f"s_cbranch_scc1 {Ls}")
    part(S_RED1, S_MEMW1)
    A.label(Ls)
    A.flush_hazards()

class Fill:
    def __init__(self): self.s = []; self.m = []; self.v = []
    def pull(self, ns=1, nm=1, nv=1):
        if nm and not self.m: ns += 1
        for q, n in ((self.s, ns), (self.m, nm), (self.v, nv)):
            for _ in range(n):
                if q: q.pop(0)()
    def drain(self):
        for q in (self.s, self.m, self.v):
            while q: q.pop(0)()

def rec_loop(A, st, L_exit, stamp=None, kv_wait=None, publish=None, cfg=None):
    cfg = cfg or {}
    lg = Trk(A, "lgkmcnt", 15); vm = Trk(A, "vmcnt", 63)
    _st = stamp
    smap = cfg.get("smap", {"0": 0, "1": 1, "2": 2, "3": 3, "4": 4, "5": 5})
    def stamp(name):
        if _st is not None and str(name) in smap: _st(smap[str(name)])
    L_top = A.newlabel("r_top"); L_last = A.newlabel("r_last"); L_redo = A.newlabel("r_redo"); L_go = A.newlabel("r_go")
    L_again = A.newlabel("r_again"); L_back = A.newlabel("r_back")
    SM = "v_smfmac_f32_16x16x64_bf16"; MF = "v_mfma_f32_16x16x32_bf16"; MF16 = "v_mfma_f32_16x16x16_bf16"
    QP = "quad_perm:[2,3,0,1] row_mask:0xf bank_mask:0xf"
    WS = s(S_WS, 4)
    KVL = "sc1 nt" if cfg.get("nt", 0) else "sc1"
    F = Fill()
    op = lambda t: (lambda: A(t))
    pend = {}
    def tile_ops(u, tau, dst):
        sl = LSLOT[u]; tag = f"{u[0]}{u[1]}_{tau}"; pend[tag] = 2
        def one(q):
            pend[tag] -= 1
            lg.issue(f"ds_read_b128 {v(dst+8*tau+4*q,4)}, v{V_TW} offset:{sl*4096 + tau*2048 + q*1024}", tag)
        return [(lambda q=q: one(q)) for q in range(2)]
    def stg_ops(u, dst): return tile_ops(u, 0, dst) + tile_ops(u, 1, dst)
    def stg_load(u, dst):
        for f in stg_ops(u, dst): f()
    def stg_wait(u, tau):
        tag = f"{u[0]}{u[1]}_{tau}"
        assert pend[tag] == 0, (tag, pend)
        lg.wait(tag)
    def zero(first, n):
        for i in range(0, n, 2): A(f"v_mov_b64 {v(first+i,2)}, 0")
    def pre1():
        stg_load(("q", 0), V_STG)
        zero(V_QK, 24)
    def pre2():
        A(f"v_and_b32 v{V_TMP}, 0x300, v{V_L16}")
        A(f"v_add_u32 v{V_VX+4}, v{V_TMP}, v{V_L16}")
        A(f"v_and_b32 v{V_TMP}, 0x80, v{V_L16}")
        A(f"v_add_u32 v{V_KX+4}, v{V_TMP}, v{V_VX+4}")
        A(f"v_min_u32 v{V_TMP}, s{S_CKM}, v{V_L16}")
        A(f"v_bfe_u32 v{V_TMP+1}, v{V_TMP}, 5, 4")
        A(f"v_add_lshl_u32 v{V_TMP}, v{V_TMP}, v{V_TMP+1}, 2")
        A(f"v_add_u32 v{V_TMP+1}, s{S_M0G}, v{V_TMP}")

    if kv_wait is not None: kv_wait(A, True)
    pre1(); pre2()
    if cfg.get("prio"): A(f"s_setprio {cfg['prio']}")
    for _ in range(cfg.get("pad", 1)): A("s_nop 0")
    L_bar0 = A.newlabel("r_bar0"); L_bar = A.newlabel("r_bar")
    A.label(L_bar0)
    A("s_waitcnt vmcnt(0)")
    A.label(L_bar)
    lg.force_all()
    stamp("chk")
    A("s_barrier")
    A.label(L_top)
    lg.done = lg.n
    vm.n += 16; vm.done = 0
    stamp(0)
    NE = cfg.get("ne", 6)
    order2 = list(range(NE, 9))
    def a_read(i):
        blk = i if i < 9 else order2[i - 9]
        lg.issue(f"ds_read_b128 {v(V_AR+4*(i%3),4)}, v{V_L16} offset:{L_MEM + 1024*blk}", f"a{i}")
    NA = 9 + len(order2)
    a_read(0); a_read(1)
    L_ng = A.newlabel("r_ng"); L_again1 = A.newlabel("r_again1"); L_back1 = A.newlabel("r_back1")
    A(f"s_cmp_eq_u32 s{S_LG}, 0")
    A(f"s_cbranch_scc1 {L_ng}")
    A(f"buffer_load_dwordx4 v{V_L16}, {WS}, s{S_MEMG} offen sc1 lds")
    A(f"buffer_load_dwordx4 v{V_L16}, {WS}, s{S_MEMG} offen offset:1024 sc1 lds")
    A.label(L_ng)
    vm.tags["gat1"] = vm.n
    vm.n += 2
    vm.tags["gat"] = vm.n
    lg.wait("a0")
    def tile(u, tau, stg=V_STG):
        return v(stg + 8 * tau, 8) if u in LSLOT else R(REG_OF[u] + 8 * tau, 8)
    nxt = {("q", 0): ("k", 2), ("k", 2): ("q", 4), ("q", 4): ("k", 6), ("k", 6): ("q", 8), ("q", 8): ("o", 8)}
    b1 = cfg.get('b1', 8); ck0 = cfg.get('ck0', 18); gi = [0]; aq = []
    F.s += [op(f"s_add_u32 s{S_T0}, s{S_KV}, 8192"), op(f"s_add_u32 s{S_T2}, s{S_KV}, 16384")]
    F.v += [op(f"v_and_b32 v{V_TMP}, 0x1f0, v{V_L16}"), op(f"v_lshlrev_b32 v{V_TMP}, 2, v{V_TMP}"),
            op(f"v_and_b32 v{V_WARM}, 0x200, v{V_L16}"), op(f"v_lshl_add_u32 v{V_WARM}, v{V_WARM}, 4, v{V_TMP}")]
    for t in range(9):
        af = v(V_AR + 4 * (t % 3), 4)
        ms = ["k", "q"] if (("q", t) in LSLOT and t != 0) else ["q", "k"]
        if t < NE: ms = (ms + ["v"]) if t == 0 else (["v"] + ms)
        seq = [(m, tau) for m in ms for tau in range(2)]
        last = len(seq) - 1
        for n, (m, tau) in enumerate(seq):
            if (m, t) in LSLOT: stg_wait((m, t), tau)
            acc = V_VA + 4 * tau if m == "v" else V_QK + 8 * tau + (0 if m == "q" else 4)
            A(f"{SM} {v(acc,4)}, {af}, {tile((m,t),tau)}, v{V_IDX}")
            if (m, t) in nxt: F.m += tile_ops(nxt[(m, t)], tau, V_STG)
            g = gi[0]; gi[0] += 1
            if n == 0 and t + 2 < NA: aq.append(t + 2)
            if n == last and t + 1 < NA:
                assert t + 1 not in aq
                lg.wait(f"a{t+1}")
            def can(i): return i < 3 or (i < 5 and g >= b1 + 1) or g >= ck0 + 5
            if g == ck0:
                vm.wait("gat")
                lg.issue(f"ds_read_b32 v{V_TMP}, v{V_TMP+1}", "ck")
            elif g == ck0 + 3:
                lg.wait("ck"); F.pull(0, 1, 0)
                A(f"v_cmp_eq_u32 vcc, -1, v{V_TMP}")
            elif g == ck0 + 5:
                A(f"s_cbranch_vccnz {L_again}")
                A.label(L_back)
                A("s_barrier")
                a_read(aq.pop(0))
                F.s += [op(f"s_xor_b32 s{S_T1}, s{S_GRAY}, 0xc000"), op(f"s_xor_b32 s{S_MEMG}, s{S_MEMG}, s{S_T1}")]
                F.v += [op(f"v_add_u32 v{V_TMP+1}, s{S_TMW}, v{V_L16}")]
                if publish is not None: publish(A, vm, F)
            elif g == b1:
                Lsk = A.newlabel("r_sk")
                A(f"s_cmp_lg_u32 s{S_WV}, 1")
                A(f"s_cbranch_scc1 {Lsk}")
                A(f"s_waitcnt vmcnt({vm.n - vm.tags['gat']})")
                A.label(Lsk)
            elif g == b1 + 1:
                A("s_barrier")
                a_read(aq.pop(0))
            elif aq and can(aq[0]):
                F.pull(0 if n == last else 1, 0, 0); a_read(aq.pop(0)); F.pull(0, 0, 1)
            elif n == last:
                F.pull(0, 1, 1)
            else:
                F.pull()
            vq = {(0, 0): lambda: vm.issue(f"buffer_load_dwordx4 {v(V_KX,4)}, v{V_KX+4}, {WS}, s{S_KV} offen {KVL}"),
                  (0, 4): lambda: vm.issue(f"buffer_load_dwordx4 {v(V_KX+4,4)}, v{V_KX+4}, {WS}, s{S_KV} offen offset:128 {KVL}", "kx"),
                  (1, 2): lambda: vm.issue(f"buffer_load_dwordx4 {v(V_VX,4)}, v{V_VX+4}, {WS}, s{S_T0} offen {KVL}"),
                  (2, 0): lambda: vm.issue(f"buffer_load_dwordx4 {v(V_VX+4,4)}, v{V_VX+4}, {WS}, s{S_T0} offen offset:256 {KVL}", "vx")}
            if (t, n) in vq: F.m.insert(0, vq[(t, n)])
            def warm():
                vm.issue(f"buffer_load_dword v{V_WARM}, v{V_WARM}, {WS}, s{S_T2} offen sc1", "warm")
            if g == 16: F.m += [warm]
            if t == 5 and n == 1 and kv_wait is not None:
                assert not F.v
                F.v += [op(f"v_bfe_u32 v{V_TMP}, v{V_L16}, 2, 4")]
            if t == 5 and n == 2 and kv_wait is not None:
                F.m += [lambda: vm.issue(f"buffer_load_dword v{V_WARM}, v{V_TMP}, {WS}, s{S_RZ2} offen sc1")]
            if t == 6 and n == 0:
                F.v += [op(f"v_lshrrev_b32 v{V_TMP}, 1, v{V_L16}"), op(f"v_bfi_b32 v{V_TMP}, 31, v{V_L16}, v{V_TMP}")]
    assert not F.s and not F.v
    stamp(1)
    vs = {"i": 0}
    def vsm(n=1, nv=1):
        for _ in range(n):
            i = vs["i"]
            if i >= 2 * len(order2): return
            t, tau = i >> 1, i & 1
            if tau == 0: lg.wait(f"a{9+t}")
            A(f"{SM} {v(V_VA+4*tau,4)}, {v(V_AR+4*((9+t)%3),4)}, {tile(('v',order2[t]),tau)}, v{V_IDX}")
            if tau == 0 and 9 + t + 2 < NA:
                a_read(9 + t + 2); F.pull(0, 0, nv)
            else: F.pull(0, 1, nv)
            vs["i"] += 1
    q0 = V_QK; k0 = V_QK + 4; q1 = V_QK + 8; k1 = V_QK + 12
    def fold3(acc, dst):
        return [f"v_add_f32 v{acc}, v{acc}, v{acc+2}", f"v_add_f32 v{acc+1}, v{acc+1}, v{acc+3}",
                f"v_cvt_pk_bf16_f32 v{dst}, v{acc}, v{acc+1}"]
    for o in fold3(k0, k0 + 3) + fold3(k1, k1 + 3) + fold3(q0, k0 + 2): A(o)
    A(f"v_cmp_u_f32 vcc, v{q0}, v{q0+1}")
    for o in fold3(q1, k1 + 2)[:2]: A(o)
    A(f"{MF16} {v(q0,4)}, {v(k0+2,2)}, {v(V_ID,2)}, 0")
    A(fold3(q1, k1 + 2)[2])
    A(f"s_cbranch_vccnz {L_redo}")
    A.label(L_go)
    stamp("x0")
    A(f"{MF16} {v(q1,4)}, {v(k1+2,2)}, {v(V_ID,2)}, 0")
    vsm(1, 0)
    X = k0
    A(f"v_cvt_pk_bf16_f32 v{X}, v{q0}, v{q0+1}")
    A(f"v_cvt_pk_bf16_f32 v{X+1}, v{q0+2}, v{q0+3}")
    vm.wait("kx")
    A(f"v_cvt_pk_bf16_f32 v{X+2}, v{q1}, v{q1+1}")
    A(f"v_cvt_pk_bf16_f32 v{X+3}, v{q1+2}, v{q1+3}")
    S0 = q0; S1 = q1; S2 = k1
    VM0 = V_VA; PUB = V_VA + 6
    def pub_k():
        A(f"s_mov_b64 exec, {s(S_EXW,2)}")
        if not cfg.get("nopub"): vm.issue(f"buffer_store_dwordx4 {v(X,4)}, v{V_TMP}, {WS}, s{S_XM} offen sc1")
        A(f"s_mov_b64 exec, -1")
    def pub_v():
        if not cfg.get("nopub"): vm.issue(f"buffer_store_dwordx2 {v(PUB,2)}, v{V_TMP+1}, {WS}, s{S_VM} offen sc1")
    stamp("x1")
    A(f"{MF} {v(S0,4)}, {v(V_KX,4)}, {v(X,4)}, 0")
    A(f"{MF} {v(S1,4)}, {v(V_KX+4,4)}, {v(X,4)}, 0")
    A(f"{MF} {v(S2,4)}, {v(X,4)}, {v(X,4)}, 0")
    A(f"s_mov_b64 vcc, {s(S_EXA,2)}")
    if cfg.get("ek", 1): pub_k()
    else: vsm(1, 0)
    for r in range(4):
        A(f"v_cndmask_b32_dpp v{S0+r}, v{S1+r}, v{S0+r}, vcc quad_perm:[0,1,0,1] row_mask:0xf bank_mask:0xf")
    lg.issue(f"ds_write_b128 v{V_SW}, {v(S0,4)} offset:{L_S}")
    A(f"s_mov_b64 exec, {s(S_EXA,2)}")
    lg.issue(f"ds_write_b64 v{V_TMP+1}, {v(S2+2,2)} offset:{L_TM}", "sw")
    A(f"s_mov_b64 exec, -1")
    stamp("x2")
    vsm(cfg.get("v1", 8))
    if cfg.get("ev", 0):
        A(f"v_lshrrev_b32 v{V_TMP}, 1, v{V_L16}")
        for o in fold3(V_VA + 4, PUB + 1) + fold3(V_VA, PUB): A(o)
        vm.issue(f"buffer_store_dwordx2 {v(PUB,2)}, v{V_TMP}, {WS}, s{S_VM} offen sc1")
    lg.wait("sw")
    stamp("x3")
    A("s_barrier")
    stamp(2)
    RB = [q0, q1, k1, V_KX + 4]; RM = V_KX
    assert vs["i"] == 2 * len(order2)
    vf = [f"v_lshrrev_b32 v{V_TMP+1}, 1, v{V_L16}"] + fold3(V_VA + 4, PUB + 1) + fold3(V_VA, PUB)
    il = cfg.get("il", 0)
    for w in range(4):
        lg.issue(f"ds_read_b128 {v(RB[w],4)}, v{V_L16} offset:{L_S + w*1024}", f"s{w}")
        if il: A(vf.pop(0))
    lg.issue(f"ds_read_b128 {v(RM,4)}, v{V_L16} offset:{L_TM}", "sm")
    for o in vf: A(o)
    pub_v()
    A(f"s_cmp_eq_u32 s{S_STEP}, 63")
    A(f"s_cbranch_scc1 {L_last}")
    F.drain()
    lg.wait("s1")
    PKA = lambda a, b: A(f"v_pk_add_f32 {v(a,2)}, {v(a,2)}, {v(b,2)}")
    PKA(RB[0], RB[1]); PKA(RB[0] + 2, RB[1] + 2)
    lg.wait("s3")
    PKA(RB[2], RB[3]); PKA(RB[2] + 2, RB[3] + 2)
    lg.wait("sm")
    PKA(RM, RM + 2)
    PKA(RB[0], RB[2]); PKA(RB[0] + 2, RB[2] + 2)
    for r in range(2): A(f"v_add_f32_dpp v{RM+2+r}, v{RM+r}, v{RM+r} {QP}")
    Sv = [q0, q0 + 1, q0 + 2, q0 + 3, RM + 2, RM + 3]
    M = k0; M2 = k0 + 1
    PX = q1; PM = k1; ONE = V_KX + 4
    A(f"v_max3_f32 v{M}, v{Sv[0]}, v{Sv[1]}, v{Sv[2]}")
    A(f"v_max3_f32 v{M2}, v{Sv[3]}, v{Sv[4]}, v{Sv[5]}")
    A(f"v_max_f32 v{M}, v{M}, v{M2}")
    A(f"v_mov_b64 {v(ONE,2)}, {s(S_ONE,2)}")
    A(f"v_mov_b64 {v(ONE+2,2)}, {s(S_ONE,2)}")
    A(f"v_max_f32_dpp v{M2}, v{M}, v{M} {QP}")
    A(f"v_mov_b32 v{M}, v{M2}")
    A(f"v_mov_b32 v{PM+1}, 0")
    A(f"v_mov_b32 v{VM0}, v{PUB+1}")
    A(f"v_permlane16_swap_b32 v{M}, v{M2}")
    A(f"v_max_f32 v{M}, v{M}, v{M2}")
    A(f"v_mov_b32 v{M2}, v{M}")
    A(f"v_mov_b32 v{VM0+1}, v{PUB+1}")
    stamp("y0")
    A(f"v_permlane32_swap_b32 v{M}, v{M2}")
    A(f"v_max_f32 v{M}, v{M}, v{M2}")
    A(f"v_mul_f32 v{M}, s{S_SC}, v{M}")
    for x in Sv: A(f"v_fma_f32 v{x}, v{x}, s{S_SC}, -v{M}")
    for x in Sv[4:] + Sv[:4]: A(f"v_exp_f32 v{x}, v{x}")
    A(f"v_cvt_pk_bf16_f32 v{PM}, v{Sv[4]}, v{Sv[5]}")
    A(f"v_cvt_pk_bf16_f32 v{PX}, v{Sv[0]}, v{Sv[1]}")
    A(f"v_cvt_pk_bf16_f32 v{PX+1}, v{Sv[2]}, v{Sv[3]}")
    O0 = V_AR; O1 = V_AR + 4; LS = q0
    stamp("y1")
    A(f"{MF16} {v(LS,4)}, {v(ONE,2)}, {v(PM,2)}, 0")
    A(f"v_mov_b32_dpp v{PX+2}, v{PX} {QP}")
    A(f"v_mov_b32_dpp v{PX+3}, v{PX+1} {QP}")
    A(f"{MF16} {v(O0,4)}, {v(PUB,2)}, {v(PM,2)}, 0")
    vm.wait("vx")
    A(f"{MF} {v(LS,4)}, {v(ONE,4)}, {v(PX,4)}, {v(LS,4)}")
    A(f"{MF16} {v(O1,4)}, {v(VM0,2)}, {v(PM,2)}, 0")
    A(f"{MF} {v(O0,4)}, {v(V_VX,4)}, {v(PX,4)}, {v(O0,4)}")
    A(f"v_rcp_f32 v{LS}, v{LS}")
    A(f"{MF} {v(O1,4)}, {v(V_VX+4,4)}, {v(PX,4)}, {v(O1,4)}")
    zero(V_VA, 8)
    A(f"v_mov_b64 {v(k0,2)}, 0"); A(f"v_mov_b64 {v(k0+2,2)}, 0")
    stamp("y2")
    if cfg.get("pk", 1):
        for i in range(0, 8, 2): A(f"v_pk_mul_f32 {v(O0+i,2)}, {v(O0+i,2)}, {v(LS,2)} op_sel_hi:[1,0]")
        for i in range(4): A(f"v_cvt_pk_bf16_f32 v{O0+i}, v{O0+2*i}, v{O0+2*i+1}")
    else:
        for i in range(4): A(f"v_mul_f32 v{O0+i}, v{O0+i}, v{LS}")
        for i in range(2): A(f"v_cvt_pk_bf16_f32 v{O0+i}, v{O0+2*i}, v{O0+2*i+1}")
        for i in range(4, 8): A(f"v_mul_f32 v{O0+i}, v{O0+i}, v{LS}")
        for i in range(2, 4): A(f"v_cvt_pk_bf16_f32 v{O0+i}, v{O0+2*i}, v{O0+2*i+1}")
    A(f"s_mov_b64 exec, {s(S_EXA,2)}")
    lg.issue(f"ds_write_b128 v{V_OW}, {v(O0,4)} offset:{L_O}", "ow")
    A(f"s_mov_b64 exec, -1")
    STG2 = V_KX
    W = V_QK
    stamp("y3")
    stg_load(("o", 0), STG2)
    lg.wait("ow")
    A("s_barrier")
    stamp(3)
    OA = V_AR + 4
    lg.issue(f"ds_read_b128 {v(OA,4)}, v{V_L16} offset:{L_O}", "oa0")
    lg.issue(f"ds_read_b128 {v(OA+4,4)}, v{V_L16} offset:{L_O+1024}", "oa1")
    zero(W, 4); zero(W + 8, 8)
    where = {("o", 8): V_STG, ("o", 0): STG2, ("o", 5): STG2, ("o", 7): V_STG}
    PK = V_AR
    def fold_ops(n):
        acc = W + 4 * (n % 6)
        dst = V_TMP if n == 0 else PK + 2 * (((n - 1) >> 1) & 1) + ((n - 1) & 1)
        r = [op(o) for o in fold3(acc, dst)]
        if n == 0 or n & 1: r.append(op(f"v_and_or_b32 v{dst}, v{dst}, -2, s{S_PAR}"))
        return r
    def zero_ops(n):
        acc = W + 4 * (n % 6)
        return [op(f"v_mov_b64 {v(acc,2)}, 0"), op(f"v_mov_b64 {v(acc+2,2)}, 0")]
    def wsm(n, u, tau, kh, nv=2):
        if u in LSLOT: stg_wait(u, tau)
        lg.wait(f"oa{kh}")
        b = v(where[u] + 8 * tau, 8) if u in LSLOT else R(REG_OF[u] + 8 * tau, 8)
        A(f"{SM} {v(W+4*(n%6),4)}, {v(OA+4*kh,4)}, {b}, v{V_IDX}")
        F.pull(1, 1, nv)
    PR = [S_PQ, S_T0, S_T1, S_T2]
    pstore = lambda p: (lambda: vm.issue(f"buffer_store_dwordx2 {v(PK+2*(p&1),2)}, v{V_PS}, {WS}, s{PR[p]} offen{st}"))
    F.s += [op(f"s_add_u32 s{PR[p]}, s{S_PQ}, {p*65536}") for p in (1, 2, 3)]
    seq = [(0, ("o", 8), 0, 0), (0, ("o", 8), 1, 1)]
    for p in range(4):
        for tau in range(2): seq += [(1 + 2*p + tau, ("o", 2*p), tau, 0), (1 + 2*p + tau, ("o", 2*p + 1), tau, 1)]
    nvs = {1: 1, 2: 1, 3: 2}
    PA_ = V_KX; PB_ = V_VX
    epos = cfg.get("epos", 16)
    for k, (n, u, tau, kh) in enumerate(seq, 1):
        if k == 2: F.m += tile_ops(("o", 7), 0, V_STG)
        if k == 4: F.m += tile_ops(("o", 5), 0, STG2); F.v += fold_ops(0)
        if k == 6:
            assert not F.v and not F.m
            F.m += [lambda: vm.issue(f"buffer_store_dword v{V_TMP}, v{V_P1}, {WS}, s{S_P1} offen{st}")] + tile_ops(("o", 5), 1, STG2)
            F.v += fold_ops(1)
        if k == 8: F.v += fold_ops(2)
        if k == 9:
            assert not F.v and not F.m
            F.m += [pstore(0)] + tile_ops(("o", 7), 1, V_STG)
            F.v += zero_ops(0)
        if k == 10: F.v += fold_ops(3)
        if k == 12: F.v += fold_ops(4) + zero_ops(1)
        if k == 14:
            assert not F.v and not F.m
            F.m += [pstore(1)]
            F.v += zero_ops(2)[:1] + fold_ops(5)[:3] + zero_ops(2)[1:]
        if k == 16: F.v += fold_ops(5)[3:] + fold_ops(6)
        if k == 18:
            assert not F.v and not F.m
            if not cfg.get("l2", 0): F.m += [pstore(2)]
            F.s += [op(f"s_cmp_eq_u32 s{S_EJ}, 0")]
            F.v += fold_ops(7)
        wsm(n, u, tau, kh, nvs.get(k, 3 if k in (8, 12, 14) else 2))
    F.drain()
    def loads(P, sr):
        for i in range(2):
            A(f"buffer_load_dwordx4 {v(P+4*i,4)}, v{V_L16}, {WS}, s{sr} offen offset:{i*1024} sc1")
    Lne = A.newlabel("r_ne")
    nh = len(A.hist)
    A(f"s_cbranch_scc1 {Lne}")
    keep = list(A.hist)
    loads(PA_, S_EL)
    A.hist = keep
    A.label(Lne)
    if cfg.get("l2", 0): pstore(2)()
    ey = 1 if cfg.get("l2", 0) else 0
    for o in fold_ops(8): o()
    pstore(3)()
    stamp(4)
    lg.done = lg.n
    SEL = V_AR + 4; D = V_AR + 8; D2 = V_VA; CKR = V_AR; FA = V_AR + 1; FV = V_VX; FD = V_AR + 3
    sel_ops = [f"v_bfe_u32 v{D}, v{V_L16}, 6, 1", f"v_lshlrev_b32 v{D}, 4, v{D}", f"v_mov_b32 v{D+1}, 0x3f80",
               f"v_lshlrev_b32 v{D}, v{D}, v{D+1}"]
    sel_ops += [f"v_cndmask_b32 v{SEL+i}, 0, v{D}, {s(S_MK+2*i,2)}" for i in range(4)]
    sel_ops += [f"v_lshrrev_b32 v{V_TMP}, 4, v{V_L16}", f"v_and_b32 v{V_TMP}, 0x30, v{V_TMP}",
                f"v_bfe_u32 v{V_TMP+1}, v{V_L16}, 4, 2", f"v_lshl_add_u32 v{V_TMP}, v{V_TMP+1}, 2, v{V_TMP}",
                f"v_cndmask_b32 v{V_TMP+1}, 0, -1, {s(S_EXR,2)}",
                f"v_and_b32 v{D}, 0xc000, v{V_TMP+1}",
                f"v_xor_b32 v{D}, s{S_MSL}, v{D}",
                f"v_add_u32 v{V_TMP}, v{V_TMP}, v{D}"]
    poll = lambda: A(f"buffer_load_dword v{FV}, v{FA}, {WS}, s{S_FR} offen sc1")
    def tags(Ps, waits, Lbad):
        first = True
        for P, w in zip(Ps, waits):
            if w is not None: A(f"s_waitcnt vmcnt({w})")
            for r in (P, P + 2):
                if first: A(f"v_xor_b32 v{CKR}, s{S_PAR}, v{r}"); first = False
                else: A(f"v_bitop3_b32 v{CKR}, v{CKR}, v{r}, s{S_PAR} bitop3:0xf6")
        A(f"v_and_b32 v{CKR}, 1, v{CKR}")
        A(f"v_cmp_ne_u32 vcc, 0, v{CKR}")
        return lambda: A(f"s_cbranch_vccnz {Lbad}")
    def mm(P, Dd):
        for i in range(2): A(f"{MF} {v(Dd,4)}, {v(SEL,4)}, {v(P+4*i,4)}, {'0' if i == 0 else v(Dd,4)}")
    def fin(Dd, sr):
        A(f"v_add_f32_dpp v{Dd+2}, v{Dd}, v{Dd} row_ror:8 row_mask:0xf bank_mask:0xf")
        A(f"v_add_f32_dpp v{Dd+3}, v{Dd+1}, v{Dd+1} row_ror:8 row_mask:0xf bank_mask:0xf")
        A(f"v_add_f32_dpp v{Dd}, v{Dd+2}, v{Dd+2} row_ror:4 row_mask:0xf bank_mask:0xf")
        A(f"v_add_f32_dpp v{Dd+1}, v{Dd+3}, v{Dd+3} row_ror:4 row_mask:0xf bank_mask:0xf")
        A(f"v_cvt_pk_bf16_f32 v{Dd}, v{Dd}, v{Dd+1}")
        A(f"v_min_u32 v{Dd}, -2, v{Dd}")
        A(f"v_or_b32 v{Dd}, v{Dd}, v{V_TMP+1}")
        if Dd == D: A(f"v_mov_b32 v{FV}, -1")
        A(f"buffer_store_dword v{Dd}, v{V_TMP}, {WS}, s{sr} offen{st}")
    def budget(Lp):
        A(f"s_sub_u32 s{S_BUD}, s{S_BUD}, 1")
        A(f"s_cmp_lg_u32 s{S_BUD}, 0")
        A(f"s_cbranch_scc1 {Lp}")
        A(f"s_branch {L_exit}")
    def flag():
        stamp("fl")
        A(f"s_mov_b64 exec, {s(S_F8,2)}")
        A(f"buffer_store_dword v{FD}, v{V_L16}, {WS}, s{S_FW} offen{st}")
        A(f"s_mov_b64 exec, -1")
    cnt = lambda: A(f"s_add_u32 s84, s84, 1") if cfg.get("count") else None
    L_late = A.newlabel("r_late"); L_two = A.newlabel("r_two"); L_h2 = A.newlabel("r_h2"); L_h2b = A.newlabel("r_h2b")
    La = A.newlabel("r_a"); Lab = A.newlabel("r_ab"); Lb = A.newlabel("r_b"); Lbb = A.newlabel("r_bb"); Lc = A.newlabel("r_c"); Lcb = A.newlabel("r_cb")
    A(f"s_cmp_ge_u32 s{S_WV}, 2")
    A(f"s_cbranch_scc1 {L_late}")
    def prep(skip=0):
        for o in sel_ops[skip:]: A(o)
        A(f"v_bfe_u32 v{FA}, v{V_L16}, 2, 7")
        A(f"v_and_b32 v{FD}, 0x3c, v{FA}")
        A(f"v_add_u32 v{FD}, s{S_FX}, v{FD}")
        A(f"s_mov_b32 exec_lo, 0")
        A(f"v_mov_b32 v{FA}, v{FD}")
        A(f"s_mov_b32 exec_lo, -1")
        A(f"v_mov_b32 v{FD}, s{S_STEP}")
    PC_ = V_QK; PD_ = V_QK + 8
    def copy(dst, src):
        for i in range(0, 8, 2): A(f"v_mov_b64 {v(dst+i,2)}, {v(src+i,2)}")
    nb = cfg.get("nb", 12)
    L1 = A.newlabel("r_w1"); Ld = A.newlabel("r_d"); Ldb = A.newlabel("r_db"); Lb2 = A.newlabel("r_b2"); Lbb2 = A.newlabel("r_bb2")
    A(f"s_cmp_eq_u32 s{S_WV}, 1")
    A(f"s_cbranch_scc1 {L1}")
    for o in sel_ops[:nb]: A(o)
    loads(PC_, S_RED)
    prep(nb)
    A(f"s_waitcnt vmcnt({3+ey})")
    A.label(La)
    br = tags([PA_, PA_ + 4], [None, None], Lab)
    mm(PA_, D); br(); flag(); fin(D, S_MEMW)
    A(f"s_branch {L_h2}")
    A.label(Lab)
    cnt(); A("s_waitcnt vmcnt(0)"); copy(PA_, PC_); loads(PC_, S_RED); budget(La)
    A.label(L1)
    n1 = cfg.get("n1", 16)
    for o in sel_ops[:n1]: A(o)
    for _ in range(cfg.get("d1", 0)): A("s_nop 3")
    loads(PA_, S_RED)
    prep(n1)
    pre1()
    A.label(Ld)
    A("s_waitcnt vmcnt(0)")
    br = tags([PA_, PA_ + 4], [None, None], Ldb)
    mm(PA_, D); br(); flag(); fin(D, S_MEMW)
    A(f"s_branch {L_h2b}")
    A.label(Ldb)
    cnt(); loads(PA_, S_RED); budget(Ld)
    A.label(L_late)
    for o in sel_ops: A(o)
    A(f"s_cmp_eq_u32 s{S_EJ}, 0")
    A(f"s_cbranch_scc1 {L_two}")
    A(f"v_mov_b32 v{FD}, s{S_STEP}")
    A(f"s_waitcnt vmcnt({1+ey})")
    A.label(Lb)
    br = tags([PA_, PA_ + 4], [None, None], Lbb)
    mm(PA_, D); br(); flag(); fin(D, S_MEMW1)
    loads(PA_, S_RED)
    pre1()
    A(f"s_branch {Lb2}")
    A.label(Lbb)
    cnt(); loads(PA_, S_RED1); A("s_waitcnt vmcnt(0)"); budget(Lb)
    A.label(L_two)
    pre1()
    for _ in range(cfg.get("d2w", 0)): A("s_nop 3")
    A(f"s_cmp_eq_u32 s{S_WV}, 2")
    A(f"s_cbranch_scc1 {Lc}")
    for _ in range(cfg.get("d3w", 0)): A("s_nop 3")
    A.label(Lc)
    loads(PA_, S_RED)
    A.label(Lb2)
    A("s_waitcnt vmcnt(0)")
    br = tags([PA_, PA_ + 4], [None, None], Lcb)
    mm(PA_, D); br(); fin(D, S_MEMW)
    stamp(5)
    A(f"s_mov_b32 m0, s{S_M0G}")
    for o in advance_ops(): A(o)
    pre2()
    if kv_wait is not None: kv_wait(A)
    A(f"s_branch {L_bar}")
    A.label(Lcb)
    cnt(); budget(Lc)
    L_chk = A.newlabel("r_chk"); L_rep = A.newlabel("r_rep"); L_g3 = A.newlabel("r_g3"); L_fp = A.newlabel("r_fp"); L_fok = A.newlabel("r_fok")
    def gather(lab, mid=None):
        A(f"buffer_load_dwordx4 v{V_L16}, {WS}, s{S_MEMG} offen sc1 lds")
        A(f"s_cmp_lg_u32 s{S_WV}, 0")
        A(f"buffer_load_dwordx4 v{V_L16}, {WS}, s{S_MEMG} offen offset:1024 sc1 lds")
        if mid: A(mid)
        A(f"s_cbranch_scc1 {lab}")
        A(f"buffer_load_dwordx4 v{V_L16}, {WS}, s{S_MEMG} offen offset:2048 sc1 lds")
        A.label(lab)
    def flag_loop():
        Lp = A.newlabel("r_fp"); Lok = A.newlabel("r_fok")
        A.label(Lp)
        for _ in range(4):
            A(f"v_cmp_ne_u32 vcc, s{S_T3}, v{FV}")
            if not cfg.get("half") or _ % 2 == 0: poll()
            A(f"s_cbranch_vccz {Lok}")
        A("s_waitcnt vmcnt(24)")
        budget(Lp)
        A.label(Lok)
        stamp("fok")
    A.label(L_h2b)
    poll()
    stamp(5)
    A(f"s_mov_b32 m0, s{S_M0G}")
    A(f"s_mov_b32 s{S_T3}, s{S_STEP}")
    for o in advance_ops(): A(o)
    poll()
    pre2(); poll()
    if kv_wait is not None: kv_wait(A)
    flag_loop()
    for i in range(2): A(f"buffer_load_dwordx4 v{V_L16}, {WS}, s{S_MEMG} offen offset:{i*1024} sc1 lds")
    A(f"s_branch {L_bar}")
    A.label(L_h2)
    poll()
    stamp(5)
    A(f"s_mov_b32 m0, s{S_M0G}")
    A(f"s_mov_b32 s{S_T3}, s{S_STEP}")
    stg_load(("q", 0), V_STG)
    poll()
    for o in advance_ops(): A(o)
    poll()
    flag_loop()
    for i in range(3): A(f"buffer_load_dwordx4 v{V_L16}, {WS}, s{S_MEMG} offen offset:{i*1024} sc1 lds")
    pre2()
    if kv_wait is not None: kv_wait(A)
    A("s_waitcnt vmcnt(8)")
    zero(V_QK, 24)
    A(f"s_branch {L_bar0}")
    for La, Lb in ((L_again, L_back),):
        A.label(La)
        A(f"s_cmp_lt_u32 s{S_WV}, 2")
        A(f"s_cbranch_scc1 {Lb}")
        if cfg.get("count"): A(f"s_add_u32 s85, s85, 0x10000")
        A(f"ds_read_b32 v{V_TMP}, v{V_TMP+1}")
        gather(A.newlabel("r_g4"))
        A(f"s_waitcnt vmcnt(12) lgkmcnt(0)")
        A(f"v_cmp_eq_u32 vcc, -1, v{V_TMP}")
        A(f"s_cbranch_vccz {Lb}")
        budget(La)
    A.label(L_redo)
    L_rp = A.newlabel("r_rp"); L_rok = A.newlabel("r_rok")
    A(f"s_cmp_eq_u32 s{S_VER}, 1")
    A(f"s_cbranch_scc1 {L_go}")
    if cfg.get("count"): A(f"s_add_u32 s85, s85, 0x100")
    A("s_waitcnt vmcnt(0) lgkmcnt(0)")
    A("s_nop 15")
    A("s_barrier")
    G = V_QK
    A(f"s_xor_b32 s{S_T0}, s{S_GRAY}, 0xc000")
    A(f"s_xor_b32 s{S_MEMG}, s{S_MEMG}, s{S_T0}")
    A(f"v_add_u32 v{G+13}, s{S_M0G}, v{V_L16}")
    A(f"s_sub_u32 s{S_T3}, s{S_MEMG}, s{S_M0G}")
    A(f"s_add_u32 s{S_T3}, s{S_T3}, {L_MEM}")
    A.label(L_rp)
    A(f"buffer_load_dwordx4 {v(G,4)}, v{V_L16}, {WS}, s{S_MEMG} offen sc1")
    A(f"buffer_load_dwordx4 {v(G+4,4)}, v{V_L16}, {WS}, s{S_MEMG} offen offset:1024 sc1")
    A(f"buffer_load_dwordx4 {v(G+8,4)}, v{V_L16}, {WS}, s{S_T3} offen offset:2048 sc1")
    A(f"s_waitcnt vmcnt(0)")
    A(f"v_max3_u32 v{G+14}, v{G}, v{G+1}, v{G+2}")
    for i in range(3, 11, 2): A(f"v_max3_u32 v{G+14}, v{G+14}, v{G+i}, v{G+i+1}")
    A(f"v_max_u32 v{G+14}, v{G+14}, v{G+11}")
    A(f"v_cmp_eq_u32 vcc, -1, v{G+14}")
    A(f"s_cbranch_vccz {L_rok}")
    A(f"s_sub_u32 s{S_BUD}, s{S_BUD}, 1")
    A(f"s_cmp_lg_u32 s{S_BUD}, 0")
    A(f"s_cbranch_scc1 {L_rp}")
    A(f"s_branch {L_exit}")
    A.label(L_rok)
    A(f"ds_write_b128 v{G+13}, {v(G,4)}")
    A(f"ds_write_b128 v{G+13}, {v(G+4,4)} offset:1024")
    A(f"ds_write_b128 v{V_L16}, {v(G+8,4)} offset:{L_MEM+2048}")
    A("s_waitcnt lgkmcnt(0)")
    pre1(); pre2()
    A(f"s_mov_b32 s{S_VER}, 1")
    A(f"s_mov_b32 s{S_LG}, 0")
    A("s_waitcnt lgkmcnt(0)")
    A("s_barrier")
    A(f"s_branch {L_top}")
    A.label(L_last)

def snapshot(A):
    A(f"v_lshrrev_b32 v12, 2, v{V_L16}")
    A(f"global_load_dword v13, v12, {s(S_DBG,2)} sc1")

def team_ready(A, L_fast, L_slow, L_exit):
    Lp = A.newlabel("tm_p"); La = A.newlabel("tm_a")
    A.label(Lp)
    for i in range(9): A(f"v_readlane_b32 s{84+i}, v13, {DIE_DW[i]}")
    A(f"v_readlane_b32 s95, v13, {DBG_TEAM//4}")
    A(f"v_readlane_b32 s96, v13, {DBG_TEAM//4 + 16}")
    A(f"v_readlane_b32 s97, v13, {DBG_INIT//4}")
    A("s_nop 3")
    A(f"s_add_u32 s93, s84, s85")
    for i in range(2, 9): A(f"s_add_u32 s93, s93, s{84+i}")
    A(f"s_cmp_eq_u32 s{S_B}, 0")
    A(f"s_cselect_b32 s94, s84, s85")
    A(f"s_cselect_b32 s95, s95, s96")
    A(f"s_cmp_lt_u32 s95, 32")
    A(f"s_cbranch_scc1 {La}")
    A(f"s_cmp_lt_u32 s97, 192")
    A(f"s_cbranch_scc1 {La}")
    A(f"s_cmp_ge_u32 s94, 32")
    A(f"s_cbranch_scc1 {L_fast}")
    A(f"s_cmp_ge_u32 s93, 256")
    A(f"s_cbranch_scc1 {L_slow}")
    A.label(La)
    A(f"s_sub_u32 s{S_BUD}, s{S_BUD}, 1")
    A(f"s_cmp_eq_u32 s{S_BUD}, 0")
    A(f"s_cbranch_scc1 {L_exit}")
    snapshot(A)
    A("s_waitcnt vmcnt(0)")
    A(f"s_branch {Lp}")

def rec_role(A, L_exit, stamp=None, force_slow=False, kv_wait=None, publish=None, publish_last=None, cfg=None, at_end=None, before_loop=None, after_load=None):
    A(f"s_lshr_b32 s{S_B}, s{S_SLOTID}, 5")
    A(f"s_and_b32 s{S_H}, s{S_SLOTID}, 31")
    rec_setup(A)
    build_mem0(A)
    rec_bases(A)
    init_slots(A, " sc1")
    def hook(i):
        if i == 0:
            Lw = A.newlabel("tb_w")
            A(f"s_lshl_b32 s{S_T0}, s{S_B}, 6"); A(f"s_add_u32 s{S_T0}, s{S_T0}, {DBG_TEAM}")
            A(f"v_mov_b32 v12, s{S_T0}"); A(f"v_mov_b32 v13, 1")
            A(f"s_cmp_lg_u32 s{S_WV}, 0")
            A(f"s_cbranch_scc1 {Lw}")
            A(f"s_mov_b64 exec, 1")
            A(f"global_atomic_add v12, v13, {s(S_DBG,2)}")
            A(f"s_mov_b64 exec, -1")
            A.label(Lw)
        if i == 27: snapshot(A)
    load_weights(A, (cfg or {}).get('wnt', ''), hook)
    if after_load is not None: after_load(A)
    L_fast = A.newlabel("r_fast"); L_slow = A.newlabel("r_slow")
    team_ready(A, L_slow if force_slow else L_fast, L_slow, L_exit)
    for lab, st in ((L_fast, ""), (L_slow, " sc1")):
        A.label(lab)
        if before_loop is not None: before_loop(A)
        if cfg and cfg.get("count"):
            for r in (84, 85, 71): A(f"s_mov_b32 s{r}, 0")
        rec_loop(A, st, L_exit, stamp=stamp, kv_wait=kv_wait, publish=publish, cfg=cfg)
        A("s_waitcnt vmcnt(0) lgkmcnt(0)")
        if publish_last is not None: publish_last(A)
        if at_end is not None: at_end(A)
        A(f"s_branch {L_exit}")
```

```python
import sys, json
from common import *
import phase_a as PA
import rec as RC
import phase_b as PB
import outproj as OP

NAME = "gated_mix__memory_aug_recurrent_mem_tr__memory_aug_recurrent_mem_tr__prompt_kernel"
WS = s(S_WS, 4)

def merged(cfg=None, force_slow=False, prof=False):
    cfg = cfg or {}
    A = Asm()
    X = "L_exit"
    A.raw(kernel_header(NAME))
    A("s_cmp_ge_u32 s2, 256")
    A(f"s_cbranch_scc1 {X}")
    def tstamp(i, vt=10):
        if not prof: return
        A("s_memrealtime s[0:1]")
        A(f"s_lshl_b32 s2, s{S_SLOTID}, 6"); A(f"s_add_u32 s2, s2, {WS_DBG + 0x100000 + 4*i}")
        A("s_waitcnt lgkmcnt(0)")
        A(f"v_mov_b32 v{vt}, s0")
        A(f"buffer_store_dword v{vt}, off, {WS}, s2")
        A("s_waitcnt vmcnt(0)")
        if i in (1, 2):
            A("s_memtime s[0:1]")
            A("s_waitcnt lgkmcnt(0)")
            A(f"v_mov_b32 v{vt}, s0")
            A(f"buffer_store_dword v{vt}, off, {WS}, s2 offset:40")
            A("s_waitcnt vmcnt(0)")
    load_ptrs(A)
    build_common_srds(A)
    assign_slot(A, X)
    tstamp(0)
    A(f"s_cmp_ge_u32 s{S_SLOTID}, 64")
    A("s_cbranch_scc1 L_worker")
    S_KVOK = 37
    def r_before(A):
        A(f"s_mov_b32 s{S_KVOK}, 0")
        A(f"s_lshl_b32 s{RC.S_RZ}, s{RC.S_BH}, 2"); A(f"s_add_u32 s{RC.S_RZ}, s{RC.S_RZ}, s{RC.S_WV}")
        A(f"s_lshl_b32 s{RC.S_RZ}, s{RC.S_RZ}, 7"); A(f"s_add_u32 s{RC.S_RZ}, s{RC.S_RZ}, {WS_MP}")
        A(f"s_lshl_b32 s{RC.S_RZ2}, s{RC.S_BH}, 7"); A(f"s_add_u32 s{RC.S_RZ2}, s{RC.S_RZ2}, {WS_KVP}")
        tstamp(1, 12)
    def kv_wait(A, first=False):
        Lok = A.newlabel("kv_ok"); Lp = A.newlabel("kv_p"); Lu = A.newlabel("kv_u")
        W = RC.V_WARM
        A(f"s_cmp_gt_i32 s{S_KVOK}, s{RC.S_STEP}")
        A(f"s_cbranch_scc1 {Lok}")
        if not first: A(f"s_branch {Lu}")
        A.label(Lp)
        A(f"s_sub_u32 s{RC.S_BUD}, s{RC.S_BUD}, 1")
        A(f"s_cmp_eq_u32 s{RC.S_BUD}, 0")
        A(f"s_cbranch_scc1 {X}")
        A(f"v_bfe_u32 v{W}, v{RC.V_L16}, 2, 4")
        A(f"buffer_load_dword v{W}, v{W}, {WS}, s{RC.S_RZ2} offen sc1")
        A("s_waitcnt vmcnt(0)")
        A.label(Lu)
        A(f"v_readlane_b32 s{S_KVOK}, v{W}, 0")
        A("s_nop 3")
        A(f"s_cmp_ge_u32 s{S_KVOK}, 64")
        A(f"s_cselect_b32 s{S_KVOK}, 65, s{S_KVOK}")
        A(f"s_sub_u32 s{S_KVOK}, s{S_KVOK}, 1")
        A(f"s_cmp_gt_i32 s{S_KVOK}, s{RC.S_STEP}")
        A(f"s_cbranch_scc0 {Lp}")
        A.label(Lok)
    def r_publish(A, vm, F):
        if cfg.get("nopf"): return
        def st():
            A(f"s_mov_b64 exec, 1")
            vm.issue(f"buffer_store_dword v{RC.V_TMP}, off, {WS}, s{RC.S_RZ} sc1")
            A("s_mov_b64 exec, -1")
        F.v += [lambda: A(f"v_mov_b32 v{RC.V_TMP}, s{RC.S_STEP}"), st]
    def r_last(A):
        A("s_barrier")
        A(f"v_mov_b32 v{RC.V_WARM}, 64")
        A(f"s_mov_b64 exec, 1")
        A(f"buffer_store_dword v{RC.V_WARM}, off, {WS}, s{RC.S_RZ} sc1")
        A("s_mov_b64 exec, -1")
        tstamp(2, 12)
    stamp = None
    if cfg.get("rst"):
        cfg["count"] = 1
        def stamp(i):
            if i == 0:
                for k in range(6): A(f"v_writelane_b32 v16, s{86+2*k}, {k}")
                A(f"v_writelane_b32 v16, s84, 6")
                A(f"v_writelane_b32 v16, s85, 7")
                A(f"v_lshrrev_b32 v17, 2, v{RC.V_L16}")
                A(f"s_lshl_b32 s41, s{S_SLOTID}, 2")
                A(f"s_add_u32 s41, s41, s{RC.S_WV}")
                A(f"s_lshl_b32 s41, s41, 6")
                A(f"s_add_u32 s41, s41, s{RC.S_STEP}")
                A(f"s_lshl_b32 s41, s41, 5")
                A(f"s_add_u32 s41, s41, {WS_DBG}")
                A("s_mov_b64 exec, 0xff")
                A(f"buffer_store_dword v16, v17, {s(S_WS,4)}, s41 offen")
                A("s_mov_b64 exec, -1")
            A(f"{'s_memrealtime' if cfg.get('rt') else 's_memtime'} s[{86+2*i}:{87+2*i}]")
            A("s_waitcnt lgkmcnt(0)")
    RC.rec_role(A, X, stamp=stamp, force_slow=force_slow, kv_wait=kv_wait, publish=r_publish, publish_last=r_last, cfg=cfg, before_loop=r_before, after_load=lambda A: tstamp(3, 14))
    A.label("L_worker")
    A(f"s_sub_u32 s{PA.S_WI}, s{S_SLOTID}, 64")
    PA.worker_setup(A)
    PA.worker_consts(A)
    S_BUD = PB.S_BUD
    if prof:
        A(f"s_lshl_b32 s2, s{S_SLOTID}, 6"); A(f"s_add_u32 s2, s2, {WS_DBG + 0x100000 + 32}")
        A(f"v_mov_b32 v32, s{PA.S_C}"); A(f"buffer_store_dword v32, off, {WS}, s2")
    A(f"s_mov_b32 s{S_BUD}, 0x100000")
    Lz = A.newlabel("w_z")
    A(f"s_lshl_b32 s{PA.S_T0}, s{PA.S_WI}, 9"); A(f"s_lshl_b32 s{PA.S_T1}, s{PA.S_WV}, 7"); A(f"s_add_u32 s{PA.S_T0}, s{PA.S_T0}, s{PA.S_T1}")
    A(f"s_add_u32 s{PA.S_T0}, s{PA.S_T0}, {WS_FLAG}")
    for i in range(4): A(f"v_mov_b32 v{32+i}, 0")
    A("s_mov_b64 exec, 0xff")
    A(f"buffer_store_dwordx4 v[32:35], v{PA.V_L16}, {WS}, s{PA.S_T0} offen sc1")
    A(f"s_lshl_b32 s6, s{PA.S_BH}, 7"); A(f"s_add_u32 s6, s6, {WS_KVP}")
    A(f"s_or_b32 s{PA.S_T0}, s{PA.S_C}, s{PA.S_WV}")
    A(f"s_cmp_eq_u32 s{PA.S_T0}, 0"); A(f"s_cselect_b32 s{PA.S_T0}, s6, 0x20000000")
    A(f"buffer_store_dwordx4 v[32:35], v{PA.V_L16}, {WS}, s{PA.S_T0} offen sc1")
    A("s_mov_b64 exec, -1")
    PB.gate_part(A)
    A("s_waitcnt vmcnt(0)")
    A("s_barrier")
    A(f"s_cmp_lg_u32 s{PA.S_WV}, 0")
    A(f"s_cbranch_scc1 {Lz}")
    A(f"v_mov_b32 v32, {DBG_INIT}"); A("v_mov_b32 v33, 1")
    A("s_mov_b64 exec, 1")
    A(f"global_atomic_add v32, v33, {s(S_DBG,2)}")
    A("s_mov_b64 exec, -1")
    A.label(Lz)
    S_KP = 6; S_W0 = 94; S_KK = 7
    A(f"s_mov_b32 s100, s70"); A(f"s_mov_b32 s101, s71")
    A(f"s_mov_b32 s4, s84"); A(f"s_mov_b32 s5, s85")
    A(f"s_cmp_eq_u32 s{PA.S_C}, 1")
    A("s_cbranch_scc1 L_attn")
    A(f"s_cmp_eq_u32 s{PA.S_C}, 2")
    A("s_cbranch_scc1 L_outproj")
    def a_before(A):
        tstamp(1, PA.V_T)
    A(f"s_cmp_eq_u32 s{PA.S_WV}, 0"); A(f"s_cselect_b32 s{S_W0}, 1, 0"); A(f"s_mov_b32 s{S_W0+1}, 0")
    def a_publish(A):
        A(f"v_mov_b32 v{PA.V_T}, s{PA.S_CNT}")
        A(f"s_mov_b64 exec, {s(S_W0,2)}")
        A(f"buffer_store_dword v{PA.V_T}, off, {WS}, s{S_KP} sc1")
        A("s_mov_b64 exec, -1")
        A(f"s_add_u32 s{PA.S_CNT}, s{PA.S_CNT}, 1")
    PA.phase_a(A, publish=a_publish, before_loop=a_before, cfg=cfg)
    a_publish(A)
    tstamp(2, PA.V_T)
    A(f"s_branch {X}")
    def hold(A, soff, vt, st):
        Lp = A.newlabel("hold"); Lok = A.newlabel("hold_ok")
        A(f"s_cmp_lg_u32 s{PA.S_WV}, 0")
        A(f"s_cbranch_scc1 {Lok}")
        wait_init(A, X, S_BUD, vt, st)
        if soff is not None:
            A.label(Lp)
            A(f"buffer_load_dword v{vt}, off, {WS}, s{soff} sc1")
            A("s_waitcnt vmcnt(0)")
            A(f"v_readfirstlane_b32 s{st}, v{vt}")
            A("s_nop 3")
            A(f"s_cmp_ge_u32 s{st}, {cfg.get('holdn', 5)}")
            A(f"s_cbranch_scc1 {Lok}")
            A("s_sleep 32")
            A(f"s_sub_u32 s{S_BUD}, s{S_BUD}, 1")
            A(f"s_cmp_lg_u32 s{S_BUD}, 0")
            A(f"s_cbranch_scc1 {Lp}")
            A(f"s_branch {X}")
        A.label(Lok)
        A("s_barrier")
    A.label("L_attn")
    hold(A, S_KP, 32, PA.S_T2)
    def b_before(A):
        A(f"s_mov_b32 s{S_KK}, 0")
        tstamp(1, 32)
    def b_kv(A):
        Lp = A.newlabel("b_kv"); Lok = A.newlabel("b_kvok")
        A.label(Lp)
        A(f"s_cmp_gt_u32 s{S_KK}, s{PA.S_SEG}")
        A(f"s_cbranch_scc1 {Lok}")
        A(f"s_sub_u32 s{S_BUD}, s{S_BUD}, 1")
        A(f"s_cmp_eq_u32 s{S_BUD}, 0")
        A(f"s_cbranch_scc1 {X}")
        A(f"buffer_load_dword v32, off, {WS}, s{S_KP} sc1")
        A("s_waitcnt vmcnt(0)")
        A(f"v_readfirstlane_b32 s{S_KK}, v32")
        A("s_sleep 2")
        A(f"s_branch {Lp}")
        A.label(Lok)
    def mem_wait(A):
        Lp = A.newlabel("b_mp"); Lok = A.newlabel("b_mok")
        A(f"s_lshl_b32 s{PA.S_T0}, s{PA.S_BH}, 2"); A(f"s_add_u32 s{PA.S_T0}, s{PA.S_T0}, s{PA.S_WV}")
        A(f"s_lshl_b32 s{PA.S_T0}, s{PA.S_T0}, 7"); A(f"s_add_u32 s{PA.S_T0}, s{PA.S_T0}, {WS_MP}")
        A.label(Lp)
        A(f"buffer_load_dword v{PB.V_PKQ+1}, off, {WS}, s{PA.S_T0} sc1")
        A("s_waitcnt vmcnt(0)")
        A(f"v_readfirstlane_b32 s{PA.S_T1}, v{PB.V_PKQ+1}")
        A("s_nop 3")
        A(f"s_cmp_gt_u32 s{PA.S_T1}, s{PA.S_SEG}")
        A(f"s_cbranch_scc1 {Lok}")
        A("s_sleep 4")
        A(f"s_sub_u32 s{S_BUD}, s{S_BUD}, 1")
        A(f"s_cmp_lg_u32 s{S_BUD}, 0")
        A(f"s_cbranch_scc1 {Lp}")
        A(f"s_branch {X}")
        A.label(Lok)
    def b_publish(A):
        A(f"s_lshl_b32 s{PA.S_T0}, s{PA.S_SEG}, 2"); A(f"s_lshr_b32 s{PA.S_T1}, s{PA.S_BH}, 4"); A(f"s_add_u32 s{PA.S_T0}, s{PA.S_T0}, s{PA.S_T1}")
        A(f"s_lshl_b32 s{PA.S_T0}, s{PA.S_T0}, 6"); A(f"s_add_u32 s{PA.S_T0}, s{PA.S_T0}, {WS_OC}")
        A(f"v_mov_b32 v{PB.V_PKQ}, 1")
        A("s_waitcnt vmcnt(0)")
        A("s_mov_b64 exec, 1")
        A(f"buffer_atomic_add v{PB.V_PKQ}, off, {WS}, s{PA.S_T0}")
        A("s_mov_b64 exec, -1")
    PB.phase_b(A, X, 0, 1, mem_wait=mem_wait, publish=b_publish, kv_wait=b_kv, before_loop=b_before)
    tstamp(3, 32)
    A(f"s_branch {X}")
    A.label("L_outproj")
    T0, T1, T2 = OP.S_T0, OP.S_T1, OP.S_T2
    A(f"s_lshr_b32 s{T0}, s{PA.S_WI}, 5")
    A(f"s_cmp_ge_u32 s{PA.S_BH}, 6"); A(f"s_cselect_b32 s{T1}, 1, 0")
    A(f"s_mul_i32 s{T2}, s{T1}, 6"); A(f"s_sub_u32 s{OP.S_NJ}, s{PA.S_BH}, s{T2}")
    A(f"s_cmp_ge_u32 s{T0}, 4")
    A("s_cbranch_scc1 L_op_two")
    A(f"s_cmp_eq_u32 s{T1}, 0")
    A("s_cbranch_scc1 L_op_grp")
    A(f"s_lshl_b32 s{T0}, s{T0}, 2"); A(f"s_add_u32 s{T0}, s{T0}, s{OP.S_NJ}")
    A(f"s_lshr_b32 s{OP.S_SEG}, s{T0}, 3"); A(f"s_and_b32 s{OP.S_NJ}, s{T0}, 7")
    A(f"s_cmp_lt_u32 s{OP.S_NJ}, 6")
    A("s_cbranch_scc1 L_final")
    A(f"s_branch {X}")
    A.label("L_op_two")
    A(f"s_lshl_b32 s{T0}, s{T0}, 1"); A(f"s_sub_u32 s{T0}, s{T0}, 4"); A(f"s_add_u32 s{T0}, s{T0}, s{T1}")
    A.label("L_op_grp")
    A(f"s_and_b32 s{OP.S_SEG}, s{T0}, 1"); A(f"s_lshr_b32 s{OP.S_KQ}, s{T0}, 1")
    A(f"s_cmp_lt_u32 s{OP.S_KQ}, 2")
    A(f"s_cselect_b32 s{S_W4}, s100, s4"); A(f"s_cselect_b32 s{S_W4+1}, s101, s5")
    hold(A, S_KP, OP.V_T, OP.S_T2)
    OP.op_consts_and_weights(A)
    tstamp(3, OP.V_T)
    OP.op_loop2(A, X, 2, cfg)
    tstamp(4, OP.V_T)
    A(f"s_branch {X}")
    A.label("L_final")
    hold(A, None, OP.V_T, OP.S_T2)
    OP.op_final(A, X, 2)
    tstamp(4, OP.V_T)
    A.label(X)
    A("s_endpgm")
    return A.text()

def write(path, txt, as_list=False):
    hdr = "".join(l for l in open("cdna_kernels/" + NAME[:-7] + ".s.ref") if l.startswith(";") and "launch" not in l.lower() and "Harness parses" not in l)
    hdr += f"; @launch kernel={NAME} grid=(256,1,1) block=(256,1,1) lds=163840\n" if as_list else "; @launch grid=(256,1,1) block=(256,1,1) lds=163840\n"
    out = hdr + '.amdgcn_target "amdgcn-amd-amdhsa--gfx950"\n.text\n' + txt + '.section .rodata,"a"\n' + kernel_desc(NAME)
    open(path, "w").write(out)

if __name__ == "__main__":
    cfg = json.loads(sys.argv[1]) if len(sys.argv) > 1 else {}
    write("merged.s", merged(dict(cfg)), True)
    write("merged_prof.s", merged(dict(cfg), prof=True), True)
    write("merged_slow.s", merged(dict(cfg), force_slow=True), True)
    write("final.s", merged(dict(cfg)), False)
    for k, arg in enumerate(sys.argv[2:]):
        c = dict(cfg); c.update(json.loads(arg))
        write(f"merged_v{k}.s", merged(c, prof=bool(c.get("prof"))), True)
```

```python
from asmlib import *

KA = dict(x=0, A_mem0=8, A_Wq=16, A_Wk=24, A_Wv=32, A_Wo=40, B_mem0=64, B_Wq=72, B_Wk=80, B_Wv=88, B_Wo=96,
          gate=112, out=120, dbg=128, ws=136)
X_BYTES = 2048 * 1152
W_BYTES = 576 * 8192
MEM0_BYTES = 8 * 1152
WS_BYTES = 1 << 28
MB = 1 << 20
WS_KV = 0
WS_KVM = 64 * MB
WS_O = 96 * MB
WS_PART = 128 * MB
WS_MEMI = 132 * MB
WS_GATE = 133 * MB
WS_FLAG = 134 * MB
WS_OP = 136 * MB
WS_DBG = 200 * MB

S_X = 8
S_W1 = 12
S_W2 = 16
S_W3 = 20
S_W4 = 24
S_WS = 28
S_OUT = 32
S_M0 = 36
S_GW = 40
S_DBG = 44

def srd(A, dst, lo, nbytes):
    A(f"s_mov_b32 s{dst}, s{lo}")
    A(f"s_mov_b32 s{dst+1}, s{lo+1}")
    A(f"s_mov_b32 s{dst+2}, {hex(nbytes)}")
    A(f"s_mov_b32 s{dst+3}, 0x20000")

def load_ptrs(A):
    A("s_load_dwordx16 s[60:75], s[0:1], 0")
    A("s_load_dwordx16 s[76:91], s[0:1], 64")
    A("s_load_dwordx4 s[92:95], s[0:1], 128")
    A("s_waitcnt lgkmcnt(0)")

def build_common_srds(A):
    srd(A, S_X, 60, X_BYTES)
    srd(A, S_WS, 94, WS_BYTES)
    srd(A, S_OUT, 90, X_BYTES)
    srd(A, S_GW, 88, 1152)
    A(f"s_mov_b32 s{S_DBG}, s92")
    A(f"s_mov_b32 s{S_DBG+1}, s93")

def build_branch_srds(A, s_b):
    A(f"s_cmp_eq_u32 s{s_b}, 0")
    for dst, la, lb, nb in ((S_M0, 62, 76, MEM0_BYTES), (S_W1, 64, 78, W_BYTES), (S_W2, 66, 80, W_BYTES),
                            (S_W3, 68, 82, W_BYTES), (S_W4, 70, 84, W_BYTES)):
        A(f"s_cselect_b32 s{dst}, s{la}, s{lb}")
        A(f"s_cselect_b32 s{dst+1}, s{la+1}, s{lb+1}")
        A(f"s_mov_b32 s{dst+2}, {hex(nb)}")
        A(f"s_mov_b32 s{dst+3}, 0x20000")

DIE_DW = [0, 16, 32, 33, 34, 48, 49, 50, 51]
DBG_OVF = 35 * 4; DBG_TEAM = 4
S_SLOTID = 3

def read_counts(A, sdst, vt):
    A(f"v_and_b32 v{vt}, 63, v0")
    A(f"v_lshlrev_b32 v{vt}, 2, v{vt}")
    A(f"global_load_dword v{vt+1}, v{vt}, {s(S_DBG,2)} sc1")
    A("s_waitcnt vmcnt(0)")
    for i in range(9): A(f"v_readlane_b32 s{sdst+i}, v{vt+1}, {DIE_DW[i]}")
    A("s_nop 3")
    A(f"s_add_u32 s{sdst+9}, s{sdst}, s{sdst+1}")
    for i in range(2, 9): A(f"s_add_u32 s{sdst+9}, s{sdst+9}, s{sdst+i}")

def assign_slot(A, L_exit, dies=(0, 1)):
    L_w = A.newlabel("tk_w"); L_home = A.newlabel("tk_home"); L_ov = A.newlabel("tk_ov"); L_ovp = A.newlabel("tk_ovp")
    L_done = A.newlabel("tk_done"); L_w2 = A.newlabel("tk_w2")
    A("s_getreg_b32 s46, hwreg(HW_REG_XCC_ID)")
    A("s_and_b32 s46, s46, 15")
    A("s_min_u32 s46, s46, 8")
    rest = [d for d in range(8) if d not in dies]
    order = list(dies) + rest
    table = sum(order.index(p) << (4 * p) for p in range(8))
    A("s_lshl_b32 s47, s46, 2"); A(f"s_lshr_b32 s47, {hex(table)}, s47"); A("s_and_b32 s47, s47, 15")
    A("s_cmp_lt_u32 s46, 8"); A("s_cselect_b32 s46, s47, s46")
    A("s_lshl_b32 s47, s46, 4")
    A("s_add_u32 s48, s46, 30"); A("s_cmp_ge_u32 s46, 2"); A("s_cselect_b32 s47, s48, s47")
    A("s_add_u32 s48, s46, 43"); A("s_cmp_ge_u32 s46, 5"); A("s_cselect_b32 s47, s48, s47")
    A("s_lshl_b32 s47, s47, 2")
    A("v_mov_b32 v1, s47")
    A("v_mov_b32 v2, 1")
    A("v_mov_b32 v4, 0")
    A("v_cmp_eq_u32 vcc, 0, v0")
    A("s_and_saveexec_b64 s[48:49], vcc")
    A(f"s_cbranch_execz {L_w}")
    A(f"global_atomic_add v3, v1, v2, {s(S_DBG,2)} sc0")
    A("s_waitcnt vmcnt(0)")
    A("ds_write_b32 v4, v3")
    A("s_waitcnt lgkmcnt(0)")
    A.label(L_w)
    A("s_mov_b64 exec, s[48:49]")
    A("s_barrier")
    A("ds_read_b32 v3, v4")
    A("s_waitcnt lgkmcnt(0)")
    A("v_readfirstlane_b32 s47, v3")
    A("s_barrier")
    A("s_cmp_ge_u32 s46, 8")
    A(f"s_cbranch_scc1 {L_ov}")
    A("s_cmp_lt_u32 s47, 32")
    A(f"s_cbranch_scc1 {L_home}")
    A.label(L_ov)
    A(f"v_mov_b32 v1, {DBG_OVF}")
    A("v_cmp_eq_u32 vcc, 0, v0")
    A("s_and_saveexec_b64 s[48:49], vcc")
    A(f"s_cbranch_execz {L_w2}")
    A(f"global_atomic_add v3, v1, v2, {s(S_DBG,2)} sc0")
    A("s_waitcnt vmcnt(0)")
    A("ds_write_b32 v4, v3")
    A("s_waitcnt lgkmcnt(0)")
    A.label(L_w2)
    A("s_mov_b64 exec, s[48:49]")
    A("s_barrier")
    A("ds_read_b32 v3, v4")
    A("s_waitcnt lgkmcnt(0)")
    A("v_readfirstlane_b32 s47, v3")
    A("s_barrier")
    A("s_mov_b32 s46, 0x100000")
    A.label(L_ovp)
    A("s_sub_u32 s46, s46, 1")
    A("s_cmp_eq_u32 s46, 0")
    A(f"s_cbranch_scc1 {L_exit}")
    read_counts(A, 50, 1)
    A("s_cmp_lt_u32 s59, 256")
    A(f"s_cbranch_scc1 {L_ovp}")
    A(f"s_mov_b32 s{S_SLOTID}, 0")
    for x in range(8):
        Ln = A.newlabel("tk_n")
        A(f"s_min_u32 s48, s{50+x}, 32")
        A(f"s_sub_u32 s49, 32, s48")
        A(f"s_cmp_lt_u32 s47, s49")
        A(f"s_cbranch_scc0 {Ln}")
        A(f"s_add_u32 s{S_SLOTID}, s48, s47")
        A(f"s_add_u32 s{S_SLOTID}, s{S_SLOTID}, {32*x}")
        A(f"s_branch {L_done}")
        A.label(Ln)
        A(f"s_sub_u32 s47, s47, s49")
    A(f"s_branch {L_exit}")
    A.label(L_home)
    A(f"s_lshl_b32 s{S_SLOTID}, s46, 5")
    A(f"s_add_u32 s{S_SLOTID}, s{S_SLOTID}, s47")
    A.label(L_done)
    A.flush_hazards()

WS_KVP = WS_FLAG + 0x30000
WS_MP = WS_FLAG + 0x28000
WS_OC = WS_FLAG
WS_CNT = WS_FLAG + 0x10000
DBG_INIT = 144

def wait_init(A, L_exit, s_bud, vt, st):
    Lp = A.newlabel("wi"); Lok = A.newlabel("wi_ok")
    A(f"v_mov_b32 v{vt}, {DBG_INIT}")
    A.label(Lp)
    A("s_sleep 127")
    A(f"global_load_dword v{vt+1}, v{vt}, {s(S_DBG,2)} sc1")
    A("s_waitcnt vmcnt(0)")
    A(f"v_readfirstlane_b32 s{st}, v{vt+1}")
    A("s_nop 3")
    A(f"s_cmp_ge_u32 s{st}, 192")
    A(f"s_cbranch_scc1 {Lok}")
    A(f"s_sub_u32 s{s_bud}, s{s_bud}, 1")
    A(f"s_cmp_lg_u32 s{s_bud}, 0")
    A(f"s_cbranch_scc1 {Lp}")
    A(f"s_branch {L_exit}")
    A.label(Lok)

WPROF = [False]
def wstamp(A, i, vt, s_wv=51):
    if not WPROF[0]: return
    A("s_memrealtime s[0:1]")
    A(f"s_lshl_b32 s2, s{S_SLOTID}, 2"); A(f"s_add_u32 s2, s2, s{s_wv}"); A(f"s_lshl_b32 s2, s2, 6"); A(f"s_add_u32 s2, s2, {WS_DBG + 0x300000 + 4*i}")
    A("s_waitcnt lgkmcnt(0)")
    A(f"v_mov_b32 v{vt}, s0")
    A(f"buffer_store_dword v{vt}, off, {s(S_WS,4)}, s2")
```

```python
from common import *

S_KQ = 46; S_NJ = 47; S_SEG = 48; S_B = 49; S_WV = 51
S_T0 = 52; S_T1 = 53; S_T2 = 54; S_T3 = 55
S_OA = 56; S_PB = 57; S_CT = 58; S_WB = 59; S_BUD = 99

V_L16 = 1; V_GO = 2; V_TR = 3; V_RW = 4; V_RR = 5; V_OUT = 6; V_T = 8
V_F = 16
V_ACC = 80
WO = 128

def op_setup(A):
    A("v_lshrrev_b32 v1, 6, v0")
    A(f"v_readfirstlane_b32 s{S_WV}, v1")
    A("v_and_b32 v0, 63, v0")

def op_consts_and_weights(A):
    T = V_T
    A(f"v_lshlrev_b32 v{V_L16}, 4, v0")
    A(f"v_lshrrev_b32 v{T}, 2, v0"); A(f"v_mul_u32_u24 v{V_GO}, 1152, v{T}")
    A(f"v_and_b32 v{T+1}, 3, v0"); A(f"v_lshl_add_u32 v{V_GO}, v{T+1}, 4, v{V_GO}")
    A(f"v_lshrrev_b32 v{T}, 5, v0"); A(f"v_lshlrev_b32 v{V_TR}, 8, v{T}")
    A(f"v_bfe_u32 v{T+2}, v0, 2, 2"); A(f"v_lshl_add_u32 v{V_TR}, v{T+2}, 6, v{V_TR}")
    A(f"v_bfe_u32 v{T+2}, v0, 4, 1"); A(f"v_lshl_add_u32 v{V_TR}, v{T+2}, 5, v{V_TR}")
    A(f"v_lshl_add_u32 v{V_TR}, v{T+1}, 3, v{V_TR}")
    A(f"s_mul_i32 s{S_T1}, s{S_WV}, 36864")
    A(f"v_add_u32 v{V_TR}, s{S_T1}, v{V_TR}")
    A(f"s_mul_i32 s{S_T0}, s{S_WV}, 12288"); A(f"v_add_u32 v{V_RW}, s{S_T0}, v{V_L16}")
    A(f"s_mul_i32 s{S_T0}, s{S_WV}, 3072"); A(f"v_add_u32 v{V_RR}, s{S_T0}, v{V_L16}")
    A(f"v_and_b32 v{T+2}, 31, v0"); A(f"v_mul_u32_u24 v{V_OUT}, 1152, v{T+2}"); A(f"v_lshl_add_u32 v{V_OUT}, v{T}, 3, v{V_OUT}")
    A(f"s_and_b32 s{S_T0}, s{S_KQ}, 1"); A(f"s_lshl_b32 s{S_T0}, s{S_T0}, 2"); A(f"s_add_u32 s{S_T0}, s{S_T0}, s{S_WV}")
    A(f"s_mul_i32 s{S_WB}, s{S_T0}, {4*147456}")
    A(f"s_mul_i32 s{S_T0}, s{S_NJ}, 192"); A(f"s_add_u32 s{S_WB}, s{S_WB}, s{S_T0}")
    pieces = [(f, nt) for f in range(32) for nt in range(3)]
    def dma(i):
        f, nt = pieces[i]
        A(f"s_add_u32 m0, s{S_T1}, {(i%36)*1024}")
        A(f"s_add_u32 s{S_T2}, s{S_WB}, {16*f*1152 + nt*64}")
        A(f"buffer_load_dwordx4 v{V_GO}, {s(S_W4,4)}, s{S_T2} offen lds")
    for i in range(36): dma(i)
    G = 4
    for i0 in range(0, 96, G):
        out = min(36, 96 - i0)
        A(f"s_waitcnt vmcnt({out - G})")
        for i in range(i0, i0 + G):
            A(f"ds_read_b64_tr_b16 {R(WO+4*i,2)}, v{V_TR} offset:{(i%36)*1024}")
            A(f"ds_read_b64_tr_b16 {R(WO+4*i+2,2)}, v{V_TR} offset:{(i%36)*1024+512}")
        A("s_waitcnt lgkmcnt(0)")
        for i in range(i0 + 36, min(i0 + 36 + G, 96)): dma(i)
    A("s_barrier")

def op_loop(A, L_exit, stride, ready=None):
    WS = s(S_WS, 4); MF = "v_mfma_f32_32x32x16_bf16"
    L_loop = A.newlabel("p_loop"); L_next = A.newlabel("p_next"); L_w = A.newlabel("p_w")
    A.label(L_loop)
    if ready is not None: ready(A)
    A(f"s_lshl_b32 s{S_OA}, s{S_SEG}, 4"); A(f"s_lshl_b32 s{S_T0}, s{S_KQ}, 2"); A(f"s_add_u32 s{S_OA}, s{S_OA}, s{S_T0}")
    A(f"s_add_u32 s{S_OA}, s{S_OA}, s{S_WV}"); A(f"s_lshl_b32 s{S_OA}, s{S_OA}, 15"); A(f"s_add_u32 s{S_OA}, s{S_OA}, {WS_O}")
    def ld(f):
        if f % 4 == 0 and f: A(f"s_add_u32 s{S_OA}, s{S_OA}, 4096")
        A(f"buffer_load_dwordx4 {v(V_F+4*(f%16),4)}, v{V_L16}, {WS}, s{S_OA} offen offset:{(f&3)*1024} sc1")
    for f in range(16): ld(f)
    A(f"s_mul_i32 s{S_CT}, s{S_SEG}, 6"); A(f"s_add_u32 s{S_CT}, s{S_CT}, s{S_NJ}")
    A(f"s_mul_i32 s{S_PB}, s{S_CT}, {4*12288}"); A(f"s_add_u32 s{S_PB}, s{S_PB}, {WS_OP}")
    for f in range(32):
        A(f"s_waitcnt vmcnt({min(15, 31-f) if f == 0 or f > 16 else 14})")
        for nt in range(3):
            acc = v(V_ACC + 16 * nt, 16)
            A(f"{MF} {acc}, {R(WO+4*(3*f+nt),4)}, {v(V_F+4*(f%16),4)}, {'0' if f == 0 else acc}")
            if nt == 0 and 1 <= f <= 16: ld(f + 15)
    for j in range(12): A(f"ds_write_b128 v{V_RW}, {v(V_ACC+4*j,4)} offset:{j*1024}")
    A("s_waitcnt lgkmcnt(0)")
    A("s_barrier")
    for src in range(4):
        for i in range(3): A(f"ds_read_b128 {v(V_F+12*src+4*i,4)}, v{V_RR} offset:{src*12288 + i*1024}")
    A("s_waitcnt lgkmcnt(6)")
    for r in range(12): A(f"v_add_f32 v{V_F+r}, v{V_F+r}, v{V_F+12+r}")
    A("s_waitcnt lgkmcnt(0)")
    for r in range(12): A(f"v_add_f32 v{V_F+24+r}, v{V_F+24+r}, v{V_F+36+r}")
    for r in range(12): A(f"v_add_f32 v{V_F+r}, v{V_F+r}, v{V_F+24+r}")
    A(f"s_mul_i32 s{S_T0}, s{S_KQ}, 12288"); A(f"s_add_u32 s{S_T0}, s{S_T0}, s{S_PB}")
    for i in range(3): A(f"buffer_store_dwordx4 {v(V_F+4*i,4)}, v{V_RR}, {WS}, s{S_T0} offen offset:{i*1024} sc1")
    A("s_waitcnt vmcnt(0)")
    A("s_barrier")
    A(f"s_lshl_b32 s{S_T0}, s{S_CT}, 6"); A(f"s_add_u32 s{S_T0}, s{S_T0}, {WS_CNT}")
    A(f"v_mov_b32 v{V_T}, 1"); A(f"v_mov_b32 v{V_T+1}, 0xc000")
    A(f"s_cmp_lg_u32 s{S_WV}, 0")
    A(f"s_cbranch_scc1 {L_w}")
    A("s_mov_b64 exec, 1")
    A(f"buffer_atomic_add v{V_T}, off, {WS}, s{S_T0} sc0")
    A("s_waitcnt vmcnt(0)")
    A(f"ds_write_b32 v{V_T+1}, v{V_T}")
    A("s_waitcnt lgkmcnt(0)")
    A("s_mov_b64 exec, -1")
    A.label(L_w)
    A("s_barrier")
    A(f"ds_read_b32 v{V_T}, v{V_T+1}")
    A("s_waitcnt lgkmcnt(0)")
    A(f"v_readfirstlane_b32 s{S_T0}, v{V_T}")
    A("s_nop 3")
    A(f"s_cmp_lg_u32 s{S_T0}, 3")
    A(f"s_cbranch_scc1 {L_next}")
    A(f"s_mov_b32 s{S_T0}, s{S_PB}")
    for src in range(4):
        for i in range(3): A(f"buffer_load_dwordx4 {v(V_F+12*src+4*i,4)}, v{V_RR}, {WS}, s{S_T0} offen offset:{i*1024} sc1")
        A(f"s_add_u32 s{S_T0}, s{S_T0}, 12288")
    A(f"s_mul_i32 s{S_T0}, s{S_SEG}, 36864"); A(f"s_mul_i32 s{S_T1}, s{S_NJ}, 192"); A(f"s_add_u32 s{S_T0}, s{S_T0}, s{S_T1}")
    A(f"s_mul_i32 s{S_T1}, s{S_WV}, 48"); A(f"s_add_u32 s{S_T0}, s{S_T0}, s{S_T1}")
    A("s_waitcnt vmcnt(0)")
    for r in range(12): A(f"v_add_f32 v{V_F+r}, v{V_F+r}, v{V_F+12+r}")
    for r in range(12): A(f"v_add_f32 v{V_F+24+r}, v{V_F+24+r}, v{V_F+36+r}")
    for r in range(12): A(f"v_add_f32 v{V_F+r}, v{V_F+r}, v{V_F+24+r}")
    for j in range(6): A(f"v_cvt_pk_bf16_f32 v{V_F+12+j}, v{V_F+2*j}, v{V_F+2*j+1}")
    for i in range(3): A(f"buffer_store_dwordx2 {v(V_F+12+2*i,2)}, v{V_OUT}, {s(S_OUT,4)}, s{S_T0} offen offset:{i*16}")
    A.label(L_next)
    A(f"s_add_u32 s{S_SEG}, s{S_SEG}, {stride}")
    A(f"s_cmp_lt_u32 s{S_SEG}, 64")
    A.flush_hazards()
    A(f"s_cbranch_scc1 {L_loop}")
    A("s_waitcnt vmcnt(0)")

S_STR = 66; S_NX = 60; S_PEND = 61; S_RDY = 62; S_OC = 63
OOR = 0x20000000

def op_loop2(A, L_exit, stride, cfg=None):
    cfg = cfg or {}
    JOIN = cfg.get('join', 48)
    WS = s(S_WS, 4); MF = "v_mfma_f32_32x32x16_bf16"
    L_loop = A.newlabel("p_loop"); L_have = A.newlabel("p_have"); Lp = A.newlabel("p_rp"); Lok = A.newlabel("p_rok"); Lnp = A.newlabel("p_np"); Lgo = A.newlabel("p_go"); Lfine = A.newlabel("p_fine")
    V_ONE = V_T + 2; V_PL = V_T + 3; V_PA = V_T + 4; V_TA = V_T + 5; V_TD = V_T + 6
    S_TCH = 64; S_SPEC = 65
    def touch(sr):
        if cfg.get("touch", 0): A(f"buffer_load_dword v{V_TD}, v{V_TA}, {WS}, s{sr} offen sc1")
    def ost(i):
        if not cfg.get("ost"): return
        A(f"s_memrealtime s[{70+2*i}:{71+2*i}]")
        A("s_waitcnt lgkmcnt(0)")
    def odump():
        if not cfg.get("ost"): return
        for k in range(5): A(f"v_writelane_b32 v{V_T+7}, s{70+2*k}, {k}")
        A(f"v_writelane_b32 v{V_T+7}, s{S_RDY}, 5")
        A(f"v_lshrrev_b32 v{V_T}, 2, v{V_L16}")
        A(f"s_lshl_b32 s2, s{S_SLOTID}, 2"); A(f"s_add_u32 s2, s2, s{S_WV}"); A(f"s_lshl_b32 s2, s2, 7"); A(f"s_add_u32 s2, s2, s{S_SEG}")
        A(f"s_lshl_b32 s2, s2, 5"); A(f"s_add_u32 s2, s2, {WS_DBG + 0x200000}")
        A("s_mov_b64 exec, 0xff")
        A(f"buffer_store_dword v{V_T+7}, v{V_T}, {WS}, s2 offen")
        A("s_mov_b64 exec, -1")
    def seg_addr(dst, seg):
        A(f"s_lshl_b32 s{dst}, s{seg}, 4"); A(f"s_lshl_b32 s{S_T0}, s{S_KQ}, 2"); A(f"s_add_u32 s{dst}, s{dst}, s{S_T0}")
        A(f"s_add_u32 s{dst}, s{dst}, s{S_WV}"); A(f"s_lshl_b32 s{dst}, s{dst}, 15"); A(f"s_add_u32 s{dst}, s{dst}, {WS_O}")
    def signal():
        A("s_mov_b64 exec, 1")
        A(f"buffer_store_dword v{V_ONE}, off, {WS}, s{S_PEND} sc1")
        A("s_mov_b64 exec, -1")
        A(f"s_mov_b32 s{S_PEND}, {hex(OOR)}")
    def ld(f, sr):
        if f % 4 == 0 and f: A(f"s_add_u32 s{sr}, s{sr}, 4096")
        A(f"buffer_load_dwordx4 {v(V_F+4*(f%16),4)}, v{V_L16}, {WS}, s{sr} offen offset:{(f&3)*1024} sc1")
    A(f"v_mov_b32 v{V_ONE}, 1")
    A(f"v_and_b32 v{V_PA}, 3, v0"); A(f"v_lshlrev_b32 v{V_PA}, 2, v{V_PA}")
    A(f"v_lshlrev_b32 v{V_TA}, 9, v0"); A(f"v_add_u32 v{V_TA}, 508, v{V_TA}")
    A(f"s_mov_b32 s{S_SPEC}, 0")
    A(f"s_mov_b32 s{S_PEND}, {hex(OOR)}")
    A(f"s_mov_b32 s{S_RDY}, 0")
    A(f"s_lshl_b32 s{S_OC}, s{S_SEG}, 2"); A(f"s_add_u32 s{S_OC}, s{S_OC}, s{S_KQ}")
    A(f"s_lshl_b32 s{S_OC}, s{S_OC}, 2"); A(f"s_add_u32 s{S_OC}, s{S_OC}, s{S_WV}")
    A(f"s_lshl_b32 s{S_OC}, s{S_OC}, 6"); A(f"s_add_u32 s{S_OC}, s{S_OC}, {WS_OC}")
    Lq = A.newlabel("p_q")
    A(f"s_cmp_lt_u32 s{S_SEG}, {JOIN}")
    A(f"s_cbranch_scc1 {L_loop}")
    A(f"s_sub_u32 s{S_T2}, s{S_OC}, 2048")
    A.label(Lq)
    A("s_sleep 16")
    A(f"s_sub_u32 s{S_BUD}, s{S_BUD}, 1")
    A(f"s_cmp_eq_u32 s{S_BUD}, 0")
    A(f"s_cbranch_scc1 {L_exit}")
    A(f"buffer_load_dword v{V_PL}, v{V_PA}, {WS}, s{S_T2} offen sc1")
    A("s_waitcnt vmcnt(0)")
    A(f"v_cmp_ne_u32 vcc, 1, v{V_PL}")
    A(f"s_cbranch_vccnz {Lq}")
    A.label(L_loop)
    ost(0)
    A(f"s_cmp_lg_u32 s{S_RDY}, 0")
    A(f"s_cbranch_scc1 {L_have}")
    A("s_waitcnt vmcnt(0)")
    signal()
    seg_addr(S_NX, S_SEG)
    A(f"s_cmp_ge_u32 s{S_SEG}, {62 if cfg.get('sp_p') else 100}"); A(f"s_cselect_b32 s{S_SPEC}, 1, 0")
    A.label(Lp)
    A(f"buffer_load_dword v{V_PL}, v{V_PA}, {WS}, s{S_OC} offen sc1")
    A(f"s_cmp_eq_u32 s{S_SPEC}, 0")
    A(f"s_cbranch_scc1 {Lnp}")
    A(f"buffer_load_dword v{V_TD}, v{V_TA}, {WS}, s{S_NX} offen sc1")
    A("s_waitcnt vmcnt(0)")
    A(f"v_cmp_eq_u32 vcc, -1, v{V_TD}")
    A(f"s_cbranch_vccz {Lgo}")
    A.label(Lnp)
    A("s_waitcnt vmcnt(0)")
    A(f"v_cmp_ne_u32 vcc, 1, v{V_PL}")
    A(f"s_cbranch_vccz {Lok}")
    A(f"s_sleep {cfg.get('psl', 3)}")
    A(f"s_sub_u32 s{S_BUD}, s{S_BUD}, 1")
    A(f"s_cmp_lg_u32 s{S_BUD}, 0")
    A(f"s_cbranch_scc1 {Lp}")
    A(f"s_branch {L_exit}")
    A.label(Lok)
    A(f"s_mov_b32 s{S_SPEC}, 0")
    A.label(Lgo)
    wstamp(A, 4, V_T + 7)
    for f in range(16): ld(f, S_NX)
    A.label(L_have)
    ost(1)
    A(f"s_mov_b32 s{S_OA}, s{S_NX}")
    A(f"s_cmp_ge_u32 s{S_SEG}, {JOIN}"); A(f"s_cselect_b32 s{S_STR}, 4, 2")
    A(f"s_lshl_b32 s{S_T0}, s{S_STR}, 10"); A(f"s_add_u32 s{S_OC}, s{S_OC}, s{S_T0}")
    A(f"s_mul_i32 s{S_CT}, s{S_SEG}, 6"); A(f"s_add_u32 s{S_CT}, s{S_CT}, s{S_NJ}")
    A(f"s_mul_i32 s{S_PB}, s{S_CT}, {4*12288}"); A(f"s_add_u32 s{S_PB}, s{S_PB}, {WS_OP}")
    A(f"s_mul_i32 s{S_T0}, s{S_KQ}, 12288"); A(f"s_add_u32 s{S_PB}, s{S_PB}, s{S_T0}")
    A(f"s_add_u32 s{S_SEG}, s{S_SEG}, s{S_STR}")
    for f in range(32):
        if f == 0: n = 15
        elif f <= 15: n = 15
        elif f == 16: n = 14
        elif f == 17: n = 14
        else: n = (31 - f) + (f - 17)
        A(f"s_waitcnt vmcnt({n})")
        if f == 16: ost(2)
        for nt in range(3):
            acc = v(V_ACC + 16 * nt, 16)
            A(f"{MF} {acc}, {R(WO+4*(3*f+nt),4)}, {v(V_F+4*(f%16),4)}, {'0' if f == 0 else acc}")
            if f == 0 and nt == 0: A(f"buffer_load_dword v{V_PL}, v{V_PA}, {WS}, s{S_OC} offen sc1")
            if nt == 0 and 1 <= f <= 16: ld(f + 15, S_OA)
            if f == 16 and nt == 1:
                A(f"v_cmp_ne_u32 vcc, 1, v{V_PL}")
                seg_addr(S_NX, S_SEG)
                A(f"s_cmp_eq_u64 vcc, 0"); A(f"s_cselect_b32 s{S_RDY}, 1, 0")
                A(f"s_cmp_lt_u32 s{S_SEG}, 64"); A(f"s_cselect_b32 s{S_RDY}, s{S_RDY}, 0")
                A(f"s_cmp_lg_u32 s{S_RDY}, 0"); A(f"s_cselect_b32 s{S_NX}, s{S_NX}, {hex(OOR)}")
            if f == 17 and nt == 0: signal()
            if nt == 1 and f >= 17: ld(f - 17, S_NX)
    ld(15, S_NX)
    A(f"s_cmp_eq_u32 s{S_SPEC}, 0")
    A(f"s_cbranch_scc1 {Lfine}")
    keep = list(A.hist)
    A(f"v_cmp_u_f32 vcc, v{V_ACC}, v{V_ACC}")
    A(f"s_cbranch_vccz {Lfine}")
    A(f"s_sub_u32 s{S_SEG}, s{S_SEG}, s{S_STR}")
    A(f"s_lshl_b32 s{S_T0}, s{S_STR}, 10"); A(f"s_sub_u32 s{S_OC}, s{S_OC}, s{S_T0}")
    A(f"s_mov_b32 s{S_SPEC}, 0")
    A("s_waitcnt vmcnt(0)")
    seg_addr(S_NX, S_SEG)
    A(f"s_branch {Lp}")
    A.label(Lfine)
    A.hist = keep
    wstamp(A, 5, V_T + 7)
    ost(3)
    for j in range(12): A(f"ds_write_b128 v{V_RW}, {v(V_ACC+4*j,4)} offset:{j*1024}")
    A("s_waitcnt lgkmcnt(0)")
    A("s_barrier")
    for src in range(4):
        for i in range(3): A(f"ds_read_b128 {v(V_ACC+12*src+4*i,4)}, v{V_RR} offset:{src*12288 + i*1024}")
    A("s_waitcnt lgkmcnt(6)")
    for r in range(0, 12, 2): A(f"v_pk_add_f32 {v(V_ACC+r,2)}, {v(V_ACC+r,2)}, {v(V_ACC+12+r,2)}")
    A("s_waitcnt lgkmcnt(0)")
    A("s_barrier")
    for r in range(0, 12, 2): A(f"v_pk_add_f32 {v(V_ACC+24+r,2)}, {v(V_ACC+24+r,2)}, {v(V_ACC+36+r,2)}")
    for r in range(0, 12, 2): A(f"v_pk_add_f32 {v(V_ACC+r,2)}, {v(V_ACC+r,2)}, {v(V_ACC+24+r,2)}")
    for i in range(3): A(f"buffer_store_dwordx4 {v(V_ACC+4*i,4)}, v{V_RR}, {WS}, s{S_PB} offen offset:{i*1024} sc1")
    A(f"s_lshl_b32 s{S_PEND}, s{S_CT}, 8"); A(f"s_lshl_b32 s{S_T0}, s{S_WV}, 6"); A(f"s_add_u32 s{S_PEND}, s{S_PEND}, s{S_T0}")
    A(f"s_lshl_b32 s{S_T0}, s{S_KQ}, 2"); A(f"s_add_u32 s{S_PEND}, s{S_PEND}, s{S_T0}")
    A(f"s_add_u32 s{S_PEND}, s{S_PEND}, {WS_CNT}")
    ost(4); odump()
    A(f"s_cmp_lt_u32 s{S_SEG}, 64")
    A.flush_hazards()
    A(f"s_cbranch_scc1 {L_loop}")
    wstamp(A, 6, V_T + 7)
    A("s_waitcnt vmcnt(0)")
    wstamp(A, 7, V_T + 7)
    signal()
    A("s_waitcnt vmcnt(0)")

def op_final(A, L_exit, stride, cfg=None):
    cfg = cfg or {}
    WS = s(S_WS, 4); T = V_T
    A(f"v_lshlrev_b32 v{V_L16}, 4, v0")
    A(f"s_mul_i32 s{S_T0}, s{S_WV}, 3072"); A(f"v_add_u32 v{V_RR}, s{S_T0}, v{V_L16}")
    A(f"v_lshrrev_b32 v{T}, 5, v0")
    A(f"v_and_b32 v{T+2}, 31, v0"); A(f"v_mul_u32_u24 v{V_OUT}, 1152, v{T+2}"); A(f"v_lshl_add_u32 v{V_OUT}, v{T}, 3, v{V_OUT}")
    A(f"v_and_b32 v{T+3}, 3, v0"); A(f"v_lshlrev_b32 v{T+3}, 2, v{T+3}")
    L_loop = A.newlabel("f_loop"); Lp = A.newlabel("f_p"); Lok = A.newlabel("f_ok")
    A.label(L_loop)
    A(f"s_mul_i32 s{S_CT}, s{S_SEG}, 6"); A(f"s_add_u32 s{S_CT}, s{S_CT}, s{S_NJ}")
    A(f"s_lshl_b32 s{S_OC}, s{S_CT}, 8"); A(f"s_lshl_b32 s{S_T0}, s{S_WV}, 6"); A(f"s_add_u32 s{S_OC}, s{S_OC}, s{S_T0}")
    A(f"s_add_u32 s{S_OC}, s{S_OC}, {WS_CNT}")
    A(f"s_mul_i32 s{S_PB}, s{S_CT}, {4*12288}"); A(f"s_add_u32 s{S_PB}, s{S_PB}, {WS_OP}")
    A(f"s_mul_i32 s{S_T2}, s{S_SEG}, 36864"); A(f"s_mul_i32 s{S_T1}, s{S_NJ}, 192"); A(f"s_add_u32 s{S_T2}, s{S_T2}, s{S_T1}")
    A(f"s_mul_i32 s{S_T1}, s{S_WV}, 48"); A(f"s_add_u32 s{S_T2}, s{S_T2}, s{S_T1}")
    def ploads():
        A(f"s_mov_b32 s{S_T0}, s{S_PB}")
        for src in range(4):
            for i in range(3): A(f"buffer_load_dwordx4 {v(V_F+12*src+4*i,4)}, v{V_RR}, {WS}, s{S_T0} offen offset:{i*1024} sc1")
            A(f"s_add_u32 s{S_T0}, s{S_T0}, 12288")
    def psum():
        for r in range(12): A(f"v_add_f32 v{V_F+r}, v{V_F+r}, v{V_F+12+r}")
        for r in range(12): A(f"v_add_f32 v{V_F+24+r}, v{V_F+24+r}, v{V_F+36+r}")
        for r in range(12): A(f"v_add_f32 v{V_F+r}, v{V_F+r}, v{V_F+24+r}")
    Lnp = A.newlabel("f_np"); Lst = A.newlabel("f_st")
    A.label(Lp)
    A(f"buffer_load_dword v{T}, v{T+3}, {WS}, s{S_OC} offen sc1")
    A(f"s_cmp_lt_u32 s{S_SEG}, {62 if cfg.get('sp_f') else 100}")
    A(f"s_cbranch_scc1 {Lnp}")
    ploads()
    A("s_waitcnt vmcnt(0)")
    psum()
    A(f"v_add_f32 v{T+1}, v{V_F}, v{V_F+1}")
    for r in range(2, 12): A(f"v_add_f32 v{T+1}, v{T+1}, v{V_F+r}")
    A(f"v_cmp_u_f32 vcc, v{T+1}, v{T+1}")
    A(f"s_cbranch_vccz {Lst}")
    A.label(Lnp)
    A("s_waitcnt vmcnt(0)")
    A(f"v_cmp_ne_u32 vcc, 1, v{T}")
    A(f"s_cbranch_vccz {Lok}")
    A(f"s_sleep {cfg.get('psl', 2)}")
    A(f"s_sub_u32 s{S_BUD}, s{S_BUD}, 1")
    A(f"s_cmp_lg_u32 s{S_BUD}, 0")
    A(f"s_cbranch_scc1 {Lp}")
    A(f"s_branch {L_exit}")
    A.label(Lok)
    wstamp(A, 8, T + 2)
    ploads()
    A("s_waitcnt vmcnt(0)")
    psum()
    A.label(Lst)
    wstamp(A, 9, T + 2)
    for j in range(6): A(f"v_cvt_pk_bf16_f32 v{V_F+12+j}, v{V_F+2*j}, v{V_F+2*j+1}")
    for i in range(3): A(f"buffer_store_dwordx2 {v(V_F+12+2*i,2)}, v{V_OUT}, {s(S_OUT,4)}, s{S_T2} offen offset:{i*16}")
    A(f"s_add_u32 s{S_SEG}, s{S_SEG}, {stride}")
    A(f"s_cmp_lt_u32 s{S_SEG}, 64")
    A.flush_hazards()
    A(f"s_cbranch_scc1 {L_loop}")
    A("s_waitcnt vmcnt(0)")
```

```python
from common import *
import phase_a as PA
from phase_a import S_WI, S_BH, S_C, S_B, S_H, S_WV, S_T0, S_T1, S_T2, S_T3, S_SLOT, S_SEG, S_N, S_LSLOT, S_XOFF, S_KVOFF, S_CNT, XT
from phase_a import V_GOFF, V_TR, V_XG, V_XB, V_XA, V_L16, V_T, V_XF

S_BUD = 99
S_MASK = 60
S_SC = 100; S_NEG = 101
S_BATCH = 92; S_O = 93; S_KM = 94; S_G = 95
L_Q = 3 * XT

WQ = 256
V_QA = 32
V_PKQ = 48
V_QF = 56
V_KF = 88
V_VF = 120
V_MF = 152
V_VM = 184
V_SX = 192
V_SM = 208
V_O = 224
V_KMA = 4 + 0
V_AK = 13; V_AV = 14; V_GT = 15

def gate_part(A):
    Ls = A.newlabel("g_skip")
    A(f"s_cmp_lg_u32 s{S_C}, 1")
    A(f"s_cbranch_scc1 {Ls}")
    X = 32; G = 72; T = 112
    A(f"v_lshrrev_b32 v{T}, 3, v0")
    A(f"v_mul_u32_u24 v{T}, 1152, v{T}")
    A(f"v_and_b32 v{T+1}, 7, v0")
    A(f"v_lshlrev_b32 v{T+1}, 4, v{T+1}")
    A(f"v_add_u32 v{T}, v{T}, v{T+1}")
    A(f"s_lshl_b32 s{S_T0}, s{S_BH}, 2"); A(f"s_add_u32 s{S_T0}, s{S_T0}, s{S_WV}")
    A(f"s_mul_i32 s{S_T1}, s{S_T0}, {8*1152}")
    for i in range(9):
        A(f"buffer_load_dwordx4 {v(X+4*i,4)}, v{T}, {s(S_X,4)}, s{S_T1} offen offset:{128*i}")
        A(f"buffer_load_dwordx4 {v(G+4*i,4)}, v{T+1}, {s(S_GW,4)}, 0 offen offset:{128*i}")
    A(f"v_mov_b32 v{T+2}, 0"); A(f"v_mov_b32 v{T+3}, 0")
    A("s_waitcnt vmcnt(0)")
    for i in range(36):
        A(f"v_lshlrev_b32 v{T+4}, 16, v{X+i}"); A(f"v_lshlrev_b32 v{T+5}, 16, v{G+i}")
        A(f"v_fmac_f32 v{T+2}, v{T+4}, v{T+5}")
        A(f"v_and_b32 v{T+4}, 0xffff0000, v{X+i}"); A(f"v_and_b32 v{T+5}, 0xffff0000, v{G+i}")
        A(f"v_fmac_f32 v{T+3}, v{T+4}, v{T+5}")
    A(f"v_add_f32 v{T+2}, v{T+2}, v{T+3}")
    for pat in ("quad_perm:[1,0,3,2]", "quad_perm:[2,3,0,1]", "row_half_mirror"):
        A(f"v_add_f32_dpp v{T+3}, v{T+2}, v{T+2} {pat} row_mask:0xf bank_mask:0xf")
        A(f"v_mov_b32 v{T+2}, v{T+3}")
    A(f"v_mul_f32 v{T+2}, 0xbfb8aa3b, v{T+2}")
    A(f"v_exp_f32 v{T+2}, v{T+2}")
    A(f"v_add_f32 v{T+2}, 1.0, v{T+2}")
    A(f"v_rcp_f32 v{T+2}, v{T+2}")
    A(f"v_lshrrev_b32 v{T}, 3, v0"); A(f"v_lshlrev_b32 v{T}, 2, v{T}")
    A(f"s_lshl_b32 s{S_T0}, s{S_T0}, 5"); A(f"s_add_u32 s{S_T0}, s{S_T0}, {WS_GATE}")
    A(f"s_mov_b32 exec_lo, 0x01010101"); A(f"s_mov_b32 exec_hi, 0x01010101")
    A(f"buffer_store_dword v{T+2}, v{T}, {s(S_WS,4)}, s{S_T0} offen sc1")
    A(f"s_mov_b64 exec, -1")
    A("s_waitcnt vmcnt(0)")
    A.label(Ls)
    A.flush_hazards()

def phase_b(A, L_exit, first_batch_reg, stride, mem_wait=None, publish=None, kv_wait=None, before_loop=None):
    WS = s(S_WS, 4)
    MF = "v_mfma_f32_32x32x16_bf16"; MF8 = "v_mfma_f32_32x32x8_bf16"
    A(f"s_lshl_b32 s{S_T0}, s{S_H}, 8")
    A(f"s_lshl_b32 s{S_T2}, s{S_WV}, 6")
    A(f"s_add_u32 s{S_T0}, s{S_T0}, s{S_T2}")
    A(f"s_mul_i32 s{S_T1}, s{S_WV}, {XT}")
    PA.load_w32(A, [S_W1], [WQ], V_GOFF, V_TR)
    A("s_barrier")
    A(f"s_mov_b32 s{S_SC}, 0x3e0293ee")
    A(f"s_mov_b32 s{S_NEG}, 0xd028965f")
    A(f"v_and_b32 v{V_QA}, 31, v0"); A(f"v_lshrrev_b32 v{V_QA+1}, 5, v0"); A(f"v_lshlrev_b32 v{V_QA+2}, 2, v{V_QA+1}")
    A(f"v_sub_u32 v{V_QA+2}, v{V_QA}, v{V_QA+2}")
    for r in range(16):
        A(f"v_cmp_le_i32 {s(S_MASK+2*r,2)}, {8*(r>>2) + (r&3)}, v{V_QA+2}")
    A(f"v_and_b32 v{V_QA+2}, 7, v0"); A(f"v_lshlrev_b32 v{V_AK}, 4, v{V_QA+2}")
    A(f"v_lshl_add_u32 v{V_AK}, v{V_QA+1}, 7, v{V_AK}")
    A(f"v_and_b32 v{V_QA+2}, 15, v0"); A(f"v_lshlrev_b32 v{V_AV}, 3, v{V_QA+2}")
    A(f"v_lshl_add_u32 v{V_AV}, v{V_QA+1}, 8, v{V_AV}")
    A(f"v_bfe_u32 v{V_QA+2}, v0, 4, 1"); A(f"v_lshl_add_u32 v{V_AV}, v{V_QA+2}, 2, v{V_AV}")
    V_GA = V_GOFF
    A(f"v_lshlrev_b32 v{V_GA}, 2, v{V_QA}")
    V_QW = V_TR
    A(f"s_lshl_b32 s{S_T0}, s{S_WV}, 11"); A(f"s_add_u32 s{S_T0}, s{S_T0}, {L_Q}")
    A(f"v_add_u32 v{V_QW}, s{S_T0}, v{V_L16}")
    A(f"s_mov_b32 s{S_BATCH}, {first_batch_reg}")
    A(f"s_mul_i32 s{S_XOFF}, s{S_BATCH}, {4*XT}")
    A(f"s_lshl_b32 s{S_LSLOT}, s{S_WV}, 10")
    for t in range(2):
        for cb in range(9): PA.x_dma(A, cb)
        A(f"s_add_u32 s{S_XOFF}, s{S_XOFF}, {XT}")
        A(f"s_add_u32 s{S_LSLOT}, s{S_LSLOT}, {XT}")
    A(f"s_mov_b32 s{S_SLOT}, 0")
    if before_loop is not None: before_loop(A)
    def q_gemm(kv):
        for i in range(4):
            A("s_waitcnt vmcnt(9)")
            A("s_barrier")
            for q in range(4): A(f"v_add_u32 v{V_XA+q}, s{S_SLOT}, v{V_XB+q}")
            def rd(u): A(f"ds_read_b128 {v(V_XF+4*(u%4),4)}, {v(V_XA+(u&3))} offset:{(u>>2)*4096}")
            for u in range(3): rd(u)
            fill = []
            if kv:
                A(f"s_add_u32 s{S_T3}, s{S_KVOFF}, {4096*i}")
                for f in range(4):
                    fill.append(lambda f=f: A(f"buffer_load_dwordx4 {v(V_KF+16*i+4*f,4)}, v{V_L16}, {WS}, s{S_T3} offen offset:{f*1024} sc1"))
                    fill += [None] * 3
                if i == 0: fill.append(lambda: A(f"buffer_load_dword v{V_GT}, v{V_GA}, {WS}, s{S_G} offen sc1"))
            for cb in range(9): fill += [lambda cb=cb: PA.x_dma(A, cb), None]
            for u in range(36):
                if u + 3 < 36: rd(u + 3)
                A(f"s_waitcnt lgkmcnt({min(3, 35-u)})")
                A(f"{MF} {v(V_QA,16)}, {R(WQ+4*u,4)}, {v(V_XF+4*(u%4),4)}, {'0' if u == 0 else v(V_QA,16)}")
                if fill:
                    f = fill.pop(0)
                    if f is not None: f()
            assert not any(fill)
            A(f"s_add_u32 s{S_XOFF}, s{S_XOFF}, {XT if i != 1 else XT + (stride-1)*4*XT}")
            A(f"s_add_u32 s{S_LSLOT}, s{S_LSLOT}, {XT}")
            A(f"s_cmp_ge_u32 s{S_LSLOT}, {3*XT}")
            A(f"s_cselect_b32 s{S_T2}, {3*XT}, 0")
            A(f"s_sub_u32 s{S_LSLOT}, s{S_LSLOT}, s{S_T2}")
            A(f"s_add_u32 s{S_SLOT}, s{S_SLOT}, {XT}")
            A(f"s_cmp_ge_u32 s{S_SLOT}, {3*XT}")
            A(f"s_cselect_b32 s{S_SLOT}, 0, s{S_SLOT}")
            for j in range(8): A(f"v_cvt_pk_bf16_f32 v{V_PKQ+j}, v{V_QA+2*j}, v{V_QA+2*j+1}")
            A(f"ds_write_b128 v{V_QW}, {v(V_PKQ,4)} offset:{i*8192}")
            A(f"ds_write_b128 v{V_QW}, {v(V_PKQ+4,4)} offset:{i*8192+1024}")
        A("s_waitcnt lgkmcnt(0)")
        A("s_barrier")
    q_gemm(False)
    L_loop = A.newlabel("b_loop"); L_lastb = A.newlabel("b_lastb"); L_att = A.newlabel("b_att")
    A.label(L_loop)
    A(f"s_lshl_b32 s{S_SEG}, s{S_BATCH}, 2"); A(f"s_add_u32 s{S_SEG}, s{S_SEG}, s{S_WV}")
    A(f"s_lshl_b32 s{S_T0}, s{S_BH}, 6"); A(f"s_add_u32 s{S_T0}, s{S_T0}, s{S_SEG}")
    A(f"s_lshl_b32 s{S_KVOFF}, s{S_T0}, 14")
    A(f"s_lshl_b32 s{S_KM}, s{S_T0}, 13"); A(f"s_add_u32 s{S_KM}, s{S_KM}, {WS_KVM}")
    A(f"s_lshl_b32 s{S_O}, s{S_SEG}, 6"); A(f"s_add_u32 s{S_O}, s{S_O}, s{S_BH}"); A(f"s_lshl_b32 s{S_O}, s{S_O}, 13")
    A(f"s_add_u32 s{S_O}, s{S_O}, {WS_O}")
    A(f"s_lshl_b32 s{S_G}, s{S_SEG}, 7"); A(f"s_add_u32 s{S_G}, s{S_G}, {WS_GATE}")
    A(f"s_lshl_b32 s{S_T0}, s{S_WV}, 13"); A(f"s_add_u32 s{S_T0}, s{S_T0}, {L_Q}")
    A(f"v_add_u32 v{V_PKQ}, s{S_T0}, v{V_L16}")
    for f in range(8): A(f"ds_read_b128 {v(V_QF+4*f,4)}, v{V_PKQ} offset:{f*1024}")
    if kv_wait is not None: kv_wait(A)
    A("s_waitcnt lgkmcnt(0)")
    A(f"s_cmp_ge_u32 s{S_BATCH}, {16 - stride}")
    A(f"s_cbranch_scc1 {L_lastb}")
    q_gemm(True)
    A("s_waitcnt vmcnt(9)")
    A(f"s_branch {L_att}")
    A.label(L_lastb)
    for i in range(4):
        A(f"s_add_u32 s{S_T3}, s{S_KVOFF}, {4096*i}")
        for f in range(4): A(f"buffer_load_dwordx4 {v(V_KF+16*i+4*f,4)}, v{V_L16}, {WS}, s{S_T3} offen offset:{f*1024} sc1")
    A(f"buffer_load_dword v{V_GT}, v{V_GA}, {WS}, s{S_G} offen sc1")
    A("s_waitcnt vmcnt(0)")
    A.label(L_att)
    for f in range(8):
        A(f"{MF} {v(V_SX,16)}, {v(V_KF+4*f,4)}, {v(V_QF+4*f,4)}, {'0' if f == 0 else v(V_SX,16)}")
    def km_loads():
        for u in range(8): A(f"buffer_load_dwordx4 {v(V_MF+4*u,4)}, v{V_AK}, {WS}, s{S_KM} offen offset:{u*256} sc1")
        A(f"s_add_u32 s{S_T0}, s{S_KM}, 4096")
        for e in range(4):
            A(f"buffer_load_dword v{V_VM+2*e}, v{V_AV}, {WS}, s{S_T0} offen offset:{e*512} sc1")
            A(f"buffer_load_dword v{V_VM+2*e+1}, v{V_AV}, {WS}, s{S_T0} offen offset:{e*512+128} sc1")
    A(f"v_mov_b32 v{V_PKQ}, s{S_NEG}")
    for r in range(16): A(f"v_cndmask_b32 v{V_SX+r}, v{V_PKQ}, v{V_SX+r}, {s(S_MASK+2*r,2)}")
    M = V_QA; M2 = V_QA + 1; LS = V_QA + 2; L2 = V_QA + 3
    A(f"v_max3_f32 v{M}, v{V_SX}, v{V_SX+1}, v{V_SX+2}")
    for r in range(3, 15, 2): A(f"v_max3_f32 v{M}, v{M}, v{V_SX+r}, v{V_SX+r+1}")
    A(f"v_max_f32 v{M}, v{M}, v{V_SX+15}")
    mem_wait(A, km_loads, list(range(V_MF, V_VM + 8)))
    for u in range(8):
        A(f"s_waitcnt vmcnt({15-u})")
        A(f"{MF} {v(V_SM,16)}, {v(V_MF+4*u,4)}, {v(V_QF+4*u,4)}, {'0' if u == 0 else v(V_SM,16)}")
    wstamp(A, 1, V_PKQ + 2)
    A(f"v_max3_f32 v{M}, v{M}, v{V_SM}, v{V_SM+1}")
    A(f"v_max3_f32 v{M}, v{M}, v{V_SM+2}, v{V_SM+3}")
    A(f"v_mov_b32 v{M2}, v{M}")
    A(f"v_permlane32_swap_b32 v{M}, v{M2}")
    A(f"v_max_f32 v{M}, v{M}, v{M2}")
    A(f"v_mul_f32 v{M}, s{S_SC}, v{M}")
    Sv = [V_SX + r for r in range(16)] + [V_SM + r for r in range(4)]
    for x in Sv: A(f"v_fma_f32 v{x}, v{x}, s{S_SC}, -v{M}")
    for x in Sv: A(f"v_exp_f32 v{x}, v{x}")
    P = V_QA + 4
    for j in range(10): A(f"v_cvt_pk_bf16_f32 v{P+j}, v{Sv[2*j]}, v{Sv[2*j+1]}")
    A("s_waitcnt vmcnt(0)")
    def pv(e, o):
        A(f"{MF8} {v(o,16)}, {v(V_VM+2*e,2)}, {v(P+8,2)}, 0")
    def pv2(e, o):
        A(f"{MF} {v(o,16)}, {v(V_VF+8*e,4)}, {v(P,4)}, {v(o,16)}")
        A(f"{MF} {v(o,16)}, {v(V_VF+8*e+4,4)}, {v(P+4,4)}, {v(o,16)}")
    OT = [V_O, V_O + 16, V_KF, V_KF + 16]
    for e in range(4): pv(e, OT[e])
    A(f"v_add_f32 v{LS}, v{Sv[0]}, v{Sv[1]}"); A(f"v_add_f32 v{L2}, v{Sv[2]}, v{Sv[3]}")
    for j in range(4, 20, 2):
        A(f"v_add_f32 v{LS}, v{LS}, v{Sv[j]}"); A(f"v_add_f32 v{L2}, v{L2}, v{Sv[j+1]}")
    for e in range(4): pv2(e, OT[e])
    A(f"v_add_f32 v{LS}, v{LS}, v{L2}")
    A(f"v_mov_b32 v{L2}, v{LS}")
    A(f"v_permlane32_swap_b32 v{LS}, v{L2}")
    A(f"v_add_f32 v{LS}, v{LS}, v{L2}")
    A(f"v_rcp_f32 v{LS}, v{LS}")
    A(f"v_sub_f32 v{L2}, 1.0, v{V_GT}")
    A(f"s_cmp_eq_u32 s{S_B}, 0")
    A(f"s_cselect_b64 vcc, -1, 0")
    A(f"v_cndmask_b32 v{L2}, v{L2}, v{V_GT}, vcc")
    A(f"v_mul_f32 v{LS}, v{LS}, v{L2}")
    A(f"s_add_u32 s{S_T0}, s{S_O}, 4096")
    for e in range(4):
        o = OT[e]
        for r in range(16): A(f"v_mul_f32 v{o+r}, v{o+r}, v{LS}")
        for j in range(8): A(f"v_cvt_pk_bf16_f32 v{o+j}, v{o+2*j}, v{o+2*j+1}")
        sr = S_O if e < 2 else S_T0
        A(f"buffer_store_dwordx4 {v(o,4)}, v{V_L16}, {WS}, s{sr} offen offset:{(e&1)*2048} sc1")
        A(f"buffer_store_dwordx4 {v(o+4,4)}, v{V_L16}, {WS}, s{sr} offen offset:{(e&1)*2048+1024} sc1")
    if publish is not None: publish(A)
    A(f"s_add_u32 s{S_BATCH}, s{S_BATCH}, {stride}")
    A(f"s_cmp_lt_u32 s{S_BATCH}, 16")
    A.flush_hazards()
    A(f"s_cbranch_scc1 {L_loop}")
    A("s_waitcnt vmcnt(0)")
```

```python
from common import *

S_VER = 48
S_B = 49; S_H = 50; S_WV = 51
S_T0 = 52; S_T1 = 53; S_T2 = 54; S_T3 = 55
S_STEP = 56; S_BUD = 57
S_KV = 58
S_XM = 59
S_VM = 60
S_PQ = 61
S_P1 = 62
S_RED = 63
S_RED1 = 46
S_MEMW = 66
S_MEMW1 = 47
S_RZ = 64; S_RZ2 = 98
S_MEMG = 65
S_MSL = 67
S_GRAY = 68
S_W256 = 69
S_M0G = 70
S_TMW = 99
S_PAR = 36
S_EXW = 38
S_LG = 35
S_EL = 32
S_EJ = 33
S_FX = 43; S_FW = 40; S_FR = 42; S_F8 = 72
S_CKM = 34
S_MK = 76
S_EXA = 4
S_EXR = 6
S_SC = 100; S_BH = 101
S_ONE = 74

L_TM = 0; L_S = 1024; L_O = 5120; L_MEM = 7168; L_W = 16384; WREG = 36864

V_IDX = 0; V_P1 = 1; V_L16 = 2; V_TW = 3; V_ID = 4; V_SW = 6; V_OW = 7; V_PS = 8
V_WARM = 9
V_TMP = 10
V_AR = 12
V_QK = 24
V_VA = 40
V_KX = 48
V_VX = 56
V_STG = 64
TILE0 = 80

LDS_UNITS = [("q", 0), ("k", 2), ("q", 4), ("k", 6), ("q", 8), ("o", 8), ("o", 0), ("o", 5), ("o", 7)]
ALL_UNITS = [(m, t) for m in "qkvo" for t in range(9)]
REG_UNITS = [u for u in ALL_UNITS if u not in LDS_UNITS]
assert len(REG_UNITS) == 27
REG_OF = {u: TILE0 + 16 * i for i, u in enumerate(REG_UNITS)}
LSLOT = {u: i for i, u in enumerate(LDS_UNITS)}

def bits(A, dst, L, terms, tmp, first=True):
    for pos, n, sh in terms:
        A(f"v_bfe_u32 v{tmp}, v{L}, {pos}, {n}")
        if first:
            A(f"v_lshlrev_b32 v{dst}, {sh}, v{tmp}"); first = False
        else:
            A(f"v_lshl_add_u32 v{dst}, v{tmp}, {sh}, v{dst}")

def sbits(A, dst, src, terms, tmp, base=None):
    first = base is None
    if base is not None: A(f"s_mov_b32 s{dst}, {base}")
    for pos, n, sh in terms:
        A(f"s_bfe_u32 s{tmp}, s{src}, {hex((n << 16) | pos)}")
        A(f"s_lshl_b32 s{tmp}, s{tmp}, {sh}")
        if first: A(f"s_mov_b32 s{dst}, s{tmp}"); first = False
        else: A(f"s_add_u32 s{dst}, s{dst}, s{tmp}")

def rec_setup(A):
    A("v_lshrrev_b32 v1, 6, v0")
    A(f"v_readfirstlane_b32 s{S_WV}, v1")
    A("v_and_b32 v11, 63, v0")
    build_branch_srds(A, S_B)
    L = 11; T = 12
    A(f"s_lshl_b32 s{S_BH}, s{S_B}, 5")
    A(f"s_add_u32 s{S_BH}, s{S_BH}, s{S_H}")
    A(f"s_mov_b32 s{S_EXA}, 0x33333333"); A(f"s_mov_b32 s{S_EXA+1}, 0x33333333")
    A(f"s_mov_b32 s{S_EXR}, 0xf0f0f0f0"); A(f"s_mov_b32 s{S_EXR+1}, 0xf0f0f0f0")
    for d, m in enumerate((0x00110011, 0x00220022, 0x11001100, 0x22002200)):
        A(f"s_mov_b32 s{S_MK+2*d}, {hex(m)}"); A(f"s_mov_b32 s{S_MK+2*d+1}, {hex(m)}")
    A(f"s_mov_b32 s{S_SC}, 0x3e0293ee")
    A(f"s_mov_b32 s{S_BUD}, 0x100000")
    A(f"s_mov_b32 s{S_ONE}, 0x3f803f80"); A(f"s_mov_b32 s{S_ONE+1}, 0x3f803f80")
    A(f"s_lshl_b32 s{S_W256}, s{S_WV}, 8")
    A(f"v_lshlrev_b32 v{V_L16}, 4, v{L}")
    A(f"v_bfe_u32 v{T}, v{L}, 1, 1")
    A(f"v_mul_u32_u24 v{V_IDX}, 0xaaaa, v{T}")
    A(f"v_add_u32 v{V_IDX}, 0x4444, v{V_IDX}")
    A(f"s_mul_i32 s{S_T1}, s{S_WV}, {WREG}"); A(f"s_add_u32 s{S_T1}, s{S_T1}, {L_W}")
    A(f"v_add_u32 v{V_TW}, s{S_T1}, v{V_L16}")
    A(f"v_and_b32 v{T}, 1, v{L}"); A(f"v_lshlrev_b32 v{T}, 4, v{T}")
    A(f"v_mov_b32 v{T+1}, 0x3f80"); A(f"v_lshlrev_b32 v{T}, v{T}, v{T+1}")
    A(f"v_bfe_u32 v{T+1}, v{L}, 1, 3"); A(f"v_lshrrev_b32 v{T+2}, 4, v{L}"); A(f"v_lshlrev_b32 v{T+2}, 1, v{T+2}")
    A(f"v_sub_u32 v{T+1}, v{T+1}, v{T+2}")
    for d in range(2):
        A(f"v_cmp_eq_u32 vcc, {d}, v{T+1}")
        A(f"v_cndmask_b32 v{V_ID+d}, 0, v{T}, vcc")
    A(f"s_lshl_b32 s{S_T2}, s{S_WV}, 10"); A(f"v_add_u32 v{V_SW}, s{S_T2}, v{V_L16}")
    sbits(A, S_T2, S_WV, [(1, 1, 10), (0, 1, 5)], S_T3); A(f"v_add_u32 v{V_OW}, s{S_T2}, v{V_L16}")
    sbits(A, S_TMW, S_WV, [(1, 1, 5), (0, 1, 3)], S_T3)
    bits(A, V_PS, L, [(3, 3, 11), (0, 3, 3)], T)
    bits(A, V_P1, L, [(4, 2, 11), (0, 4, 2)], T)

def rec_bases(A):
    A(f"s_lshl_b32 s{S_KV}, s{S_BH}, 20")
    A(f"s_lshl_b32 s{S_T0}, s{S_WV}, 11")
    A(f"s_add_u32 s{S_KV}, s{S_KV}, s{S_T0}")
    A(f"s_lshl_b32 s{S_T1}, s{S_BH}, 19")
    A(f"s_add_u32 s{S_T1}, s{S_T1}, {WS_KVM}")
    A(f"s_lshl_b32 s{S_T0}, s{S_WV}, 9")
    A(f"s_add_u32 s{S_XM}, s{S_T1}, s{S_T0}")
    A(f"s_add_u32 s{S_VM}, s{S_T1}, 4096")
    A(f"s_add_u32 s{S_VM}, s{S_VM}, s{S_T0}")
    A(f"s_lshl_b32 s{S_T0}, s{S_B}, 20"); A(f"s_add_u32 s{S_T0}, s{S_T0}, {WS_PART}")
    A(f"s_lshl_b32 s{S_T1}, s{S_H}, 6"); A(f"s_add_u32 s{S_T1}, s{S_T1}, s{S_T0}")
    A(f"s_lshl_b32 s{S_T2}, s{S_WV}, 14"); A(f"s_add_u32 s{S_PQ}, s{S_T1}, s{S_T2}")
    A(f"s_lshl_b32 s{S_T2}, s{S_WV}, 13"); A(f"s_add_u32 s{S_P1}, s{S_T1}, s{S_T2}"); A(f"s_add_u32 s{S_P1}, s{S_P1}, {128*2048}")
    A(f"s_lshl_b32 s{S_T1}, s{S_H}, 11"); A(f"s_add_u32 s{S_T1}, s{S_T1}, s{S_T0}")
    A(f"s_lshl_b32 s{S_T2}, s{S_WV}, 16"); A(f"s_add_u32 s{S_RED}, s{S_T1}, s{S_T2}")
    A(f"s_add_u32 s{S_RED1}, s{S_T1}, {128*2048}")
    A(f"s_cmp_lt_u32 s{S_H}, 16"); A(f"s_cselect_b32 s{S_EJ}, 1, 0")
    A(f"s_cmp_eq_u32 s{S_WV}, 3"); A(f"s_cselect_b32 s{S_EJ}, s{S_EJ}, 0"); A(f"s_cselect_b32 s{S_EL}, s{S_RED1}, s{S_RED}")
    A(f"s_cmp_eq_u32 s{S_WV}, 0"); A(f"s_cselect_b32 s{S_EJ}, 1, s{S_EJ}"); A(f"s_cselect_b32 s{S_FX}, 3072, 0")
    A(f"s_lshl_b32 s{S_T0}, s{S_B}, 16"); A(f"s_add_u32 s{S_T0}, s{S_T0}, {WS_MEMI}")
    A(f"s_lshl_b32 s{S_T2}, s{S_WV}, 11"); A(f"s_add_u32 s{S_T3}, s{S_T2}, 1024")
    A(f"s_cmp_eq_u32 s{S_WV}, 0"); A(f"s_cselect_b32 s{S_T1}, 0, s{S_T3}")
    A(f"s_cselect_b32 s{S_CKM}, {47*16}, {31*16 if False else 's' + str(S_T1)}") if False else None
    A(f"s_add_u32 s{S_MEMG}, s{S_T0}, s{S_T1}")
    A(f"s_add_u32 s{S_M0G}, s{S_T1}, {L_MEM}")
    A(f"s_mov_b32 s{S_CKM}, {31*16}"); A(f"s_cmp_eq_u32 s{S_WV}, 0"); A(f"s_cselect_b32 s{S_CKM}, {47*16}, s{S_CKM}")
    sbits(A, S_MEMW, S_H, [(4, 1, 10), (3, 1, 9), (0, 1, 8), (1, 2, 6)], S_T1)
    A(f"s_add_u32 s{S_MEMW}, s{S_MEMW}, s{S_T3}"); A(f"s_add_u32 s{S_MEMW}, s{S_MEMW}, s{S_T0}")
    A(f"s_lshl_b32 s{S_MEMW1}, s{S_H}, 6"); A(f"s_add_u32 s{S_MEMW1}, s{S_MEMW1}, s{S_T0}")
    A(f"s_lshl_b32 s{S_T2}, s{S_H}, 2"); A(f"s_add_u32 s{S_FW}, s{S_T0}, s{S_T2}"); A(f"s_add_u32 s{S_FW}, s{S_FW}, 12288")
    A(f"s_and_b32 s{S_T2}, s{S_H}, 7"); A(f"s_lshl_b32 s{S_T2}, s{S_T2}, 7"); A(f"s_add_u32 s{S_FR}, s{S_T0}, s{S_T2}")
    A(f"s_add_u32 s{S_FR}, s{S_FR}, 12288")
    A(f"s_lshl_b32 s{S_T2}, s{S_WV}, 10"); A(f"s_add_u32 s{S_FR}, s{S_FR}, s{S_T2}"); A(f"s_add_u32 s{S_FW}, s{S_FW}, s{S_T2}")
    A(f"s_mov_b32 s{S_F8}, 0x01010101"); A(f"s_mov_b32 s{S_F8+1}, 0x01010101")
    A(f"s_mov_b32 s{S_MSL}, 0x4000")
    A(f"s_mov_b32 s{S_PAR}, 0")
    A(f"s_mov_b32 s{S_EXW}, 0xcccccccc"); A(f"s_mov_b32 s{S_EXW+1}, 0xcccccccc")
    A(f"s_mov_b32 s{S_GRAY}, 0x8000")
    A(f"s_mov_b32 s{S_STEP}, 0")
    A(f"s_mov_b32 s{S_VER}, 1")
    A(f"s_mov_b32 s{S_LG}, 0")

def advance_ops():
    return [f"s_add_u32 s{S_STEP}, s{S_STEP}, 1",
            f"s_add_u32 s{S_KV}, s{S_KV}, 16384",
            f"s_add_u32 s{S_XM}, s{S_XM}, 8192",
            f"s_add_u32 s{S_VM}, s{S_VM}, 8192",
            f"s_xor_b32 s{S_PAR}, s{S_PAR}, 1",
            f"s_xor_b32 s{S_MSL}, s{S_MSL}, s{S_GRAY}",
            f"s_xor_b32 s{S_GRAY}, s{S_GRAY}, 0xc000",
            f"s_mov_b32 s{S_VER}, 0",
            f"s_lshr_b32 s{S_LG}, s{S_WV}, 1"]

def load_weights(A, nt=" nt", hook=None):
    L = 11; T = 12
    P = dict(q1=48, q0=50, o=52, s=54)
    TQ = 56; TV = 57; TS = 59; TA = 16
    for par in range(2):
        A(f"v_lshrrev_b32 v{T}, 4, v{L}"); A(f"v_lshlrev_b32 v{T}, 1, v{T}"); A(f"v_xor_b32 v{T}, {8*par}, v{T}")
        A(f"v_and_b32 v{T+1}, 15, v{L}"); A(f"v_xor_b32 v{T+1}, v{T}, v{T+1}")
        bits(A, P["q1"] + par, L, [(4, 1, 17), (5, 1, 13)], T)
        bits(A, P["q0"] + par, L, [(4, 2, 13)], T)
        bits(A, P["o"] + par, L, [(4, 1, 0), (5, 1, 5)], T)
        A(f"v_mul_u32_u24 v{P['o']+par}, 1152, v{P['o']+par}")
        A(f"v_lshrrev_b32 v{T}, 3, v{T+1}"); A(f"v_mul_u32_u24 v{P['s']+par}, {64*1152 - 128}, v{T}")
        A(f"v_add_u32 v{P['s']+par}, v{P['s']+par}, v{P['o']+par}")
        for k in P: A(f"v_lshl_add_u32 v{P[k]+par}, v{T+1}, 4, v{P[k]+par}")
    SQ1 = 84; SQ0 = 85; SO = 86; SL = 87
    A(f"s_lshl_b32 s{S_T0}, s{S_H}, 8")
    sbits(A, SQ1, S_WV, [(1, 1, 18), (0, 1, 14)], S_T1); A(f"s_add_u32 s{SQ1}, s{SQ1}, s{S_T0}")
    sbits(A, SQ0, S_WV, [(1, 1, 18), (0, 1, 15)], S_T1); A(f"s_add_u32 s{SQ0}, s{SQ0}, s{S_T0}")
    sbits(A, SO, S_WV, [(1, 1, 3), (0, 1, 1)], S_T1); A(f"s_mul_i32 s{SO}, s{SO}, 1152")
    A(f"s_mul_i32 s{S_T0}, s{S_H}, 147456"); A(f"s_add_u32 s{SO}, s{SO}, s{S_T0}")
    A(f"s_mul_i32 s{SL}, s{S_WV}, {WREG}"); A(f"s_add_u32 s{SL}, s{SL}, {L_W}")
    A(f"v_bfe_u32 v{T}, v{L}, 2, 3"); A(f"v_lshlrev_b32 v{T}, 1, v{T}")
    bits(A, T + 1, L, [(2, 4, 8), (0, 1, 3)], T + 2)
    A(f"v_bfe_u32 v{T+2}, v{L}, 1, 1")
    A(f"s_lshl_b32 s{S_T0}, s{S_WV}, 2"); A(f"s_lshl_b32 s{S_T1}, s{S_WV}, 1")
    def rbase(dst, sreg, add, sh):
        A(f"v_lshlrev_b32 v{T+3}, {sh}, v{T+2}"); A(f"v_add_u32 v{T+3}, s{sreg}, v{T+3}"); A(f"v_add_u32 v{T+3}, {add}, v{T+3}")
        A(f"v_xor_b32 v{T+3}, v{T+3}, v{T}"); A(f"v_lshl_add_u32 v{dst}, v{T+3}, 4, v{T+1}")
    rbase(TQ, S_T0, 0, 1)
    for tau in range(2): rbase(TV + tau, S_T0, 2 * tau, 0); rbase(TS + tau, S_T1, 8 * tau, 0)
    srds = dict(q=S_W1, k=S_W2, v=S_W3, o=S_W4)
    def dma_unit(u, slot):
        m, t = u
        for gb in range(4):
            A(f"s_add_u32 m0, s{SL}, {slot*4096 + gb*1024}")
            if m != "o" and t >= 1:
                A(f"s_add_u32 s{S_T2}, s{SQ1}, {(64*(t-1) + 8*(gb>>1) + 4*(gb&1))*8192}"); vo = P["q1"]
            elif m != "o":
                A(f"s_add_u32 s{S_T2}, s{SQ0}, {(512 + 8*gb)*8192}"); vo = P["q0"]
            elif t < 8:
                A(f"s_add_u32 s{S_T2}, s{SO}, {(64*(t&1) + 4*(gb>>1) + 16*(gb&1))*1152 + (t>>1)*256}"); vo = P["o"]
            else:
                A(f"s_add_u32 s{S_T2}, s{SO}, {(4*(gb>>1) + 16*(gb&1))*1152 + 1024}"); vo = P["s"]
            A(f"buffer_load_dwordx4 v{vo + (gb&1)}, {s(srds[m],4)}, s{S_T2} offen{' nt' if m in nt else ''} lds")
    order = REG_UNITS + LDS_UNITS
    for i in range(9): dma_unit(order[i], i)
    issued = 9
    STG = [V_STG, 24]
    for i in range(37):
        if i < 36: A(f"s_waitcnt vmcnt({4*(issued - i - 1)})")
        if i == 0: finish_mem0(A)
        A("s_waitcnt lgkmcnt(0)")
        A("s_barrier")
        if hook is not None: hook(i)
        if i >= 1:
            if i - 1 < 27: dma_unit(order[i + 8], (i - 1) % 9); issued += 1
            else:
                for q in range(4): A(f"ds_write_b128 v{V_TW}, {v(STG[(i-1)&1]+4*q,4)} offset:{((i-1)%9)*4096 + q*1024}")
        if i == 36: break
        u = order[i]
        d = REG_OF[u] if i < 27 else STG[i & 1]
        for tau in range(2):
            for rr in range(4):
                base = TQ if u[0] in "qk" else (TS if u == ("o", 8) else TV) + tau
                if tau == 0 or u[0] not in "qk": A(f"v_add_u32 v{TA+rr}, {L_W + rr*WREG}, v{base}")
            for rr in range(4):
                A(f"ds_read_b64_tr_b16 {R(d+8*tau+2*rr,2)}, v{TA+rr} offset:{(i%9)*4096 + (16*tau if u[0] in 'qk' else 0)}")
    A("s_waitcnt lgkmcnt(0)")

def build_mem0(A):
    L = 11; T = 20
    bits(A, T, L, [(4, 2, 1), (2, 1, 0)], T + 1)
    A(f"v_mul_u32_u24 v{T}, 1152, v{T}")
    A(f"v_mov_b32 v{T+2}, v{T}")
    bits(A, T, L, [(0, 2, 2), (3, 1, 1)], T + 1, first=False)
    bits(A, T + 2, L, [(0, 2, 3), (3, 1, 2)], T + 1, first=False)
    sbits(A, S_T0, S_WV, [(1, 1, 6), (0, 1, 4)], S_T2)
    A(f"s_lshl_b32 s{S_T1}, s{S_WV}, 5")
    A(f"buffer_load_ushort v24, v{T+2}, {s(S_M0,4)}, s{S_T1} offen offset:1024")
    A(f"buffer_load_ushort v25, v{T+2}, {s(S_M0,4)}, s{S_T1} offen offset:1026")
    for t in range(8):
        A(f"buffer_load_ushort v{26+2*t}, v{T}, {s(S_M0,4)}, s{S_T0} offen offset:{128*t}")
        A(f"buffer_load_ushort v{27+2*t}, v{T}, {s(S_M0,4)}, s{S_T0} offen offset:{128*t+32}")
    A(f"v_lshlrev_b32 v{T+1}, 2, v{L}"); A(f"v_add_u32 v{T+1}, s{S_W256}, v{T+1}")

def finish_mem0(A):
    T = 20
    for t in range(9):
        A(f"v_lshl_or_b32 v{24+2*t}, v{25+2*t}, 16, v{24+2*t}")
        A(f"v_min_u32 v{24+2*t}, -2, v{24+2*t}")
        A(f"ds_write_b32 v{T+1}, v{24+2*t} offset:{L_MEM + 1024*t}")

def init_slots(A, st):
    Ls = A.newlabel("r_noinit")
    for i in range(4): A(f"v_mov_b32 v{V_STG+i}, -1")
    def part(sr, sm):
        for i in range(2):
            A(f"buffer_store_dwordx4 {v(V_STG,4)}, v{V_L16}, {s(S_WS,4)}, s{sr} offen offset:{i*1024}{st}")
        A(f"s_mov_b64 exec, 0xf")
        for m in (0, 0x4000, 0x8000, 0xc000):
            A(f"s_add_u32 s{S_T0}, s{sm}, {hex(m)}")
            A(f"buffer_store_dwordx4 {v(V_STG,4)}, v{V_L16}, {s(S_WS,4)}, s{S_T0} offen{st}")
        A(f"s_mov_b64 exec, -1")
    part(S_RED, S_MEMW)
    A(f"s_mov_b64 exec, 0xff")
    A(f"buffer_store_dwordx4 {v(V_STG,4)}, v{V_L16}, {s(S_WS,4)}, s{S_FR} offen{st}")
    A(f"s_mov_b64 exec, -1")
    A(f"s_lshl_b32 s{S_T1}, s{S_WV}, 5"); A(f"s_add_u32 s{S_T1}, s{S_T1}, s{S_H}")
    A(f"s_cmp_ge_u32 s{S_T1}, 16")
    A(f"s_cbranch_scc1 {Ls}")
    part(S_RED1, S_MEMW1)
    A.label(Ls)
    A.flush_hazards()

class Fill:
    def __init__(self): self.s = []; self.m = []; self.v = []
    def pull(self, ns=1, nm=1, nv=1):
        if nm and not self.m: ns += 1
        for q, n in ((self.s, ns), (self.m, nm), (self.v, nv)):
            for _ in range(n):
                if q: q.pop(0)()
    def drain(self):
        for q in (self.s, self.m, self.v):
            while q: q.pop(0)()

def rec_loop(A, st, L_exit, stamp=None, kv_wait=None, publish=None, cfg=None):
    cfg = cfg or {}
    lg = Trk(A, "lgkmcnt", 15); vm = Trk(A, "vmcnt", 63)
    _st = stamp
    smap = cfg.get("smap", {"0": 0, "1": 1, "2": 2, "3": 3, "4": 4, "5": 5})
    def stamp(name):
        if _st is not None and str(name) in smap: _st(smap[str(name)])
    L_top = A.newlabel("r_top"); L_last = A.newlabel("r_last"); L_redo = A.newlabel("r_redo"); L_go = A.newlabel("r_go")
    L_again = A.newlabel("r_again"); L_back = A.newlabel("r_back")
    SM = "v_smfmac_f32_16x16x64_bf16"; MF = "v_mfma_f32_16x16x32_bf16"; MF16 = "v_mfma_f32_16x16x16_bf16"
    QP = "quad_perm:[2,3,0,1] row_mask:0xf bank_mask:0xf"
    WS = s(S_WS, 4)
    KVL = "sc1 nt" if cfg.get("nt", 0) else "sc1"
    F = Fill()
    op = lambda t: (lambda: A(t))
    pend = {}
    def tile_ops(u, tau, dst):
        sl = LSLOT[u]; tag = f"{u[0]}{u[1]}_{tau}"; pend[tag] = 2
        def one(q):
            pend[tag] -= 1
            lg.issue(f"ds_read_b128 {v(dst+8*tau+4*q,4)}, v{V_TW} offset:{sl*4096 + tau*2048 + q*1024}", tag)
        return [(lambda q=q: one(q)) for q in range(2)]
    def stg_ops(u, dst): return tile_ops(u, 0, dst) + tile_ops(u, 1, dst)
    def stg_load(u, dst):
        for f in stg_ops(u, dst): f()
    def stg_wait(u, tau):
        tag = f"{u[0]}{u[1]}_{tau}"
        assert pend[tag] == 0, (tag, pend)
        lg.wait(tag)
    def zero(first, n):
        for i in range(0, n, 2): A(f"v_mov_b64 {v(first+i,2)}, 0")
    def pre1():
        stg_load(("q", 0), V_STG)
        zero(V_QK, 24)
    def pre2():
        A(f"v_and_b32 v{V_TMP}, 0x300, v{V_L16}")
        A(f"v_add_u32 v{V_VX+4}, v{V_TMP}, v{V_L16}")
        A(f"v_and_b32 v{V_TMP}, 0x80, v{V_L16}")
        A(f"v_add_u32 v{V_KX+4}, v{V_TMP}, v{V_VX+4}")
        A(f"v_min_u32 v{V_TMP}, s{S_CKM}, v{V_L16}")
        A(f"v_bfe_u32 v{V_TMP+1}, v{V_TMP}, 5, 4")
        A(f"v_add_lshl_u32 v{V_TMP}, v{V_TMP}, v{V_TMP+1}, 2")
        A(f"v_add_u32 v{V_TMP+1}, s{S_M0G}, v{V_TMP}")

    if kv_wait is not None: kv_wait(A, True)
    pre1(); pre2()
    if cfg.get("prio"): A(f"s_setprio {cfg['prio']}")
    A.raw(".p2align 6")
    for _ in range(cfg.get("pad", 7)): A("s_nop 0")
    L_bar0 = A.newlabel("r_bar0"); L_bar = A.newlabel("r_bar")
    A.label(L_bar0)
    A("s_waitcnt vmcnt(0)")
    A.label(L_bar)
    lg.force_all()
    stamp("chk")
    A("s_barrier")
    A.label(L_top)
    lg.done = lg.n
    vm.n += 16; vm.done = 0
    stamp(0)
    NE = cfg.get("ne", 6)
    order2 = list(range(NE, 9))
    def a_read(i):
        blk = i if i < 9 else order2[i - 9]
        lg.issue(f"ds_read_b128 {v(V_AR+4*(i%3),4)}, v{V_L16} offset:{L_MEM + 1024*blk}", f"a{i}")
    NA = 9 + len(order2)
    a_read(0); a_read(1)
    L_ng = A.newlabel("r_ng"); L_again1 = A.newlabel("r_again1"); L_back1 = A.newlabel("r_back1")
    A(f"s_cmp_eq_u32 s{S_LG}, 0")
    A(f"s_cbranch_scc1 {L_ng}")
    A(f"buffer_load_dwordx4 v{V_L16}, {WS}, s{S_MEMG} offen sc1 lds")
    A(f"buffer_load_dwordx4 v{V_L16}, {WS}, s{S_MEMG} offen offset:1024 sc1 lds")
    A.label(L_ng)
    vm.tags["gat1"] = vm.n
    vm.n += 2
    vm.tags["gat"] = vm.n
    lg.wait("a0")
    def tile(u, tau, stg=V_STG):
        return v(stg + 8 * tau, 8) if u in LSLOT else R(REG_OF[u] + 8 * tau, 8)
    nxt = {("q", 0): ("k", 2), ("k", 2): ("q", 4), ("q", 4): ("k", 6), ("k", 6): ("q", 8), ("q", 8): ("o", 8)}
    b1 = cfg.get('b1', 8); ck0 = cfg.get('ck0', 18); gi = [0]; aq = []
    F.s += [op(f"s_add_u32 s{S_T0}, s{S_KV}, 8192"), op(f"s_add_u32 s{S_T2}, s{S_KV}, 16384")]
    F.v += [op(f"v_and_b32 v{V_TMP}, 0x1f0, v{V_L16}"), op(f"v_lshlrev_b32 v{V_TMP}, 2, v{V_TMP}"),
            op(f"v_and_b32 v{V_WARM}, 0x200, v{V_L16}"), op(f"v_lshl_add_u32 v{V_WARM}, v{V_WARM}, 4, v{V_TMP}")]
    for t in range(9):
        af = v(V_AR + 4 * (t % 3), 4)
        ms = ["k", "q"] if (("q", t) in LSLOT and t != 0) else ["q", "k"]
        if t < NE: ms = (ms + ["v"]) if t == 0 else (["v"] + ms)
        seq = [(m, tau) for m in ms for tau in range(2)]
        last = len(seq) - 1
        for n, (m, tau) in enumerate(seq):
            if (m, t) in LSLOT: stg_wait((m, t), tau)
            acc = V_VA + 4 * tau if m == "v" else V_QK + 8 * tau + (0 if m == "q" else 4)
            A(f"{SM} {v(acc,4)}, {af}, {tile((m,t),tau)}, v{V_IDX}")
            if (m, t) in nxt: F.m += tile_ops(nxt[(m, t)], tau, V_STG)
            g = gi[0]; gi[0] += 1
            if n == 0 and t + 2 < NA: aq.append(t + 2)
            if n == last and t + 1 < NA:
                assert t + 1 not in aq
                lg.wait(f"a{t+1}")
            def can(i): return i < 3 or (i < 5 and g >= b1 + 1) or g >= ck0 + 5
            if g == ck0:
                vm.wait("gat")
                lg.issue(f"ds_read_b32 v{V_TMP}, v{V_TMP+1}", "ck")
            elif g == ck0 + 3:
                lg.wait("ck"); F.pull(0, 1, 0)
                A(f"v_cmp_eq_u32 vcc, -1, v{V_TMP}")
            elif g == ck0 + 5:
                A(f"s_cbranch_vccnz {L_again}")
                A.label(L_back)
                A("s_barrier")
                a_read(aq.pop(0))
                F.s += [op(f"s_xor_b32 s{S_T1}, s{S_GRAY}, 0xc000"), op(f"s_xor_b32 s{S_MEMG}, s{S_MEMG}, s{S_T1}")]
                F.v += [op(f"v_add_u32 v{V_TMP+1}, s{S_TMW}, v{V_L16}")]
                if publish is not None: publish(A, vm, F)
            elif g == b1:
                Lsk = A.newlabel("r_sk")
                A(f"s_cmp_lg_u32 s{S_WV}, 1")
                A(f"s_cbranch_scc1 {Lsk}")
                A(f"s_waitcnt vmcnt({vm.n - vm.tags['gat']})")
                A.label(Lsk)
            elif g == b1 + 1:
                A("s_barrier")
                a_read(aq.pop(0))
            elif aq and can(aq[0]):
                F.pull(0 if n == last else 1, 0, 0); a_read(aq.pop(0)); F.pull(0, 0, 1)
            elif n == last:
                F.pull(0, 1, 1)
            else:
                F.pull()
            vq = {(0, 0): lambda: vm.issue(f"buffer_load_dwordx4 {v(V_KX,4)}, v{V_KX+4}, {WS}, s{S_KV} offen {KVL}"),
                  (0, 4): lambda: vm.issue(f"buffer_load_dwordx4 {v(V_KX+4,4)}, v{V_KX+4}, {WS}, s{S_KV} offen offset:128 {KVL}", "kx"),
                  (1, 2): lambda: vm.issue(f"buffer_load_dwordx4 {v(V_VX,4)}, v{V_VX+4}, {WS}, s{S_T0} offen {KVL}"),
                  (2, 0): lambda: vm.issue(f"buffer_load_dwordx4 {v(V_VX+4,4)}, v{V_VX+4}, {WS}, s{S_T0} offen offset:256 {KVL}", "vx")}
            if (t, n) in vq: F.m.insert(0, vq[(t, n)])
            def warm():
                vm.issue(f"buffer_load_dword v{V_WARM}, v{V_WARM}, {WS}, s{S_T2} offen sc1", "warm")
            if g == cfg.get('wg', 16): F.m += [warm]
            if t == 5 and n == 1 and kv_wait is not None:
                assert not F.v
                F.v += [op(f"v_bfe_u32 v{V_TMP}, v{V_L16}, 2, 4")]
            if t == 5 and n == 2 and kv_wait is not None:
                F.m += [lambda: vm.issue(f"buffer_load_dword v{V_WARM}, v{V_TMP}, {WS}, s{S_RZ2} offen sc1")]
            if t == 6 and n == 0:
                F.v += [op(f"v_lshrrev_b32 v{V_TMP}, 1, v{V_L16}"), op(f"v_bfi_b32 v{V_TMP}, 31, v{V_L16}, v{V_TMP}")]
    assert not F.s and not F.v
    stamp(1)
    vs = {"i": 0}
    def vsm(n=1, nv=1):
        for _ in range(n):
            i = vs["i"]
            if i >= 2 * len(order2): return
            t, tau = i >> 1, i & 1
            if tau == 0: lg.wait(f"a{9+t}")
            A(f"{SM} {v(V_VA+4*tau,4)}, {v(V_AR+4*((9+t)%3),4)}, {tile(('v',order2[t]),tau)}, v{V_IDX}")
            if tau == 0 and 9 + t + 2 < NA:
                a_read(9 + t + 2); F.pull(0, 0, nv)
            else: F.pull(0, 1, nv)
            vs["i"] += 1
    q0 = V_QK; k0 = V_QK + 4; q1 = V_QK + 8; k1 = V_QK + 12
    def fold3(acc, dst):
        return [f"v_add_f32 v{acc}, v{acc}, v{acc+2}", f"v_add_f32 v{acc+1}, v{acc+1}, v{acc+3}",
                f"v_cvt_pk_bf16_f32 v{dst}, v{acc}, v{acc+1}"]
    for o in fold3(k0, k0 + 3) + fold3(k1, k1 + 3) + fold3(q0, k0 + 2): A(o)
    A(f"v_cmp_u_f32 vcc, v{q0}, v{q0+1}")
    for o in fold3(q1, k1 + 2)[:2]: A(o)
    A(f"{MF16} {v(q0,4)}, {v(k0+2,2)}, {v(V_ID,2)}, 0")
    A(fold3(q1, k1 + 2)[2])
    A(f"s_cbranch_vccnz {L_redo}")
    A.label(L_go)
    stamp("x0")
    A(f"{MF16} {v(q1,4)}, {v(k1+2,2)}, {v(V_ID,2)}, 0")
    vsm(1, 0)
    X = k0
    A(f"v_cvt_pk_bf16_f32 v{X}, v{q0}, v{q0+1}")
    A(f"v_cvt_pk_bf16_f32 v{X+1}, v{q0+2}, v{q0+3}")
    vm.wait("kx")
    A(f"v_cvt_pk_bf16_f32 v{X+2}, v{q1}, v{q1+1}")
    A(f"v_cvt_pk_bf16_f32 v{X+3}, v{q1+2}, v{q1+3}")
    S0 = q0; S1 = q1; S2 = k1
    VM0 = V_VA; PUB = V_VA + 6
    def pub_k():
        A(f"s_mov_b64 exec, {s(S_EXW,2)}")
        if not cfg.get("nopub"): vm.issue(f"buffer_store_dwordx4 {v(X,4)}, v{V_TMP}, {WS}, s{S_XM} offen sc1")
        A(f"s_mov_b64 exec, -1")
    def pub_v():
        if not cfg.get("nopub"): vm.issue(f"buffer_store_dwordx2 {v(PUB,2)}, v{V_TMP+1}, {WS}, s{S_VM} offen sc1")
    stamp("x1")
    A(f"{MF} {v(S0,4)}, {v(V_KX,4)}, {v(X,4)}, 0")
    A(f"{MF} {v(S1,4)}, {v(V_KX+4,4)}, {v(X,4)}, 0")
    A(f"{MF} {v(S2,4)}, {v(X,4)}, {v(X,4)}, 0")
    A(f"s_mov_b64 vcc, {s(S_EXA,2)}")
    if cfg.get("ek", 1): pub_k()
    else: vsm(1, 0)
    for r in range(4):
        A(f"v_cndmask_b32_dpp v{S0+r}, v{S1+r}, v{S0+r}, vcc quad_perm:[0,1,0,1] row_mask:0xf bank_mask:0xf")
    lg.issue(f"ds_write_b128 v{V_SW}, {v(S0,4)} offset:{L_S}")
    A(f"s_mov_b64 exec, {s(S_EXA,2)}")
    lg.issue(f"ds_write_b64 v{V_TMP+1}, {v(S2+2,2)} offset:{L_TM}", "sw")
    A(f"s_mov_b64 exec, -1")
    stamp("x2")
    vsm(cfg.get("v1", 8))
    if cfg.get("ev", 0):
        A(f"v_lshrrev_b32 v{V_TMP}, 1, v{V_L16}")
        for o in fold3(V_VA + 4, PUB + 1) + fold3(V_VA, PUB): A(o)
        vm.issue(f"buffer_store_dwordx2 {v(PUB,2)}, v{V_TMP}, {WS}, s{S_VM} offen sc1")
    lg.wait("sw")
    stamp("x3")
    A("s_barrier")
    stamp(2)
    RB = [q0, q1, k1, V_KX + 4]; RM = V_KX
    assert vs["i"] == 2 * len(order2)
    vf = [f"v_lshrrev_b32 v{V_TMP+1}, 1, v{V_L16}"] + fold3(V_VA + 4, PUB + 1) + fold3(V_VA, PUB)
    il = cfg.get("il", 0)
    for w in range(4):
        lg.issue(f"ds_read_b128 {v(RB[w],4)}, v{V_L16} offset:{L_S + w*1024}", f"s{w}")
        if il: A(vf.pop(0))
    lg.issue(f"ds_read_b128 {v(RM,4)}, v{V_L16} offset:{L_TM}", "sm")
    for o in vf: A(o)
    pub_v()
    A(f"s_cmp_eq_u32 s{S_STEP}, 63")
    A(f"s_cbranch_scc1 {L_last}")
    F.drain()
    lg.wait("s1")
    PKA = lambda a, b: A(f"v_pk_add_f32 {v(a,2)}, {v(a,2)}, {v(b,2)}")
    PKA(RB[0], RB[1]); PKA(RB[0] + 2, RB[1] + 2)
    lg.wait("s3")
    PKA(RB[2], RB[3]); PKA(RB[2] + 2, RB[3] + 2)
    lg.wait("sm")
    PKA(RM, RM + 2)
    PKA(RB[0], RB[2]); PKA(RB[0] + 2, RB[2] + 2)
    for r in range(2): A(f"v_add_f32_dpp v{RM+2+r}, v{RM+r}, v{RM+r} {QP}")
    Sv = [q0, q0 + 1, q0 + 2, q0 + 3, RM + 2, RM + 3]
    M = k0; M2 = k0 + 1
    PX = q1; PM = k1; ONE = V_KX + 4
    A(f"v_max3_f32 v{M}, v{Sv[0]}, v{Sv[1]}, v{Sv[2]}")
    A(f"v_max3_f32 v{M2}, v{Sv[3]}, v{Sv[4]}, v{Sv[5]}")
    A(f"v_max_f32 v{M}, v{M}, v{M2}")
    A(f"v_mov_b64 {v(ONE,2)}, {s(S_ONE,2)}")
    A(f"v_mov_b64 {v(ONE+2,2)}, {s(S_ONE,2)}")
    A(f"v_max_f32_dpp v{M2}, v{M}, v{M} {QP}")
    A(f"v_mov_b32 v{M}, v{M2}")
    A(f"v_mov_b32 v{PM+1}, 0")
    A(f"v_mov_b32 v{VM0}, v{PUB+1}")
    A(f"v_permlane16_swap_b32 v{M}, v{M2}")
    A(f"v_max_f32 v{M}, v{M}, v{M2}")
    A(f"v_mov_b32 v{M2}, v{M}")
    A(f"v_mov_b32 v{VM0+1}, v{PUB+1}")
    stamp("y0")
    A(f"v_permlane32_swap_b32 v{M}, v{M2}")
    A(f"v_max_f32 v{M}, v{M}, v{M2}")
    A(f"v_mul_f32 v{M}, s{S_SC}, v{M}")
    for x in Sv: A(f"v_fma_f32 v{x}, v{x}, s{S_SC}, -v{M}")
    for x in Sv[4:] + Sv[:4]: A(f"v_exp_f32 v{x}, v{x}")
    A(f"v_cvt_pk_bf16_f32 v{PM}, v{Sv[4]}, v{Sv[5]}")
    A(f"v_cvt_pk_bf16_f32 v{PX}, v{Sv[0]}, v{Sv[1]}")
    A(f"v_cvt_pk_bf16_f32 v{PX+1}, v{Sv[2]}, v{Sv[3]}")
    O0 = V_AR; O1 = V_AR + 4; LS = q0
    stamp("y1")
    A(f"{MF16} {v(LS,4)}, {v(ONE,2)}, {v(PM,2)}, 0")
    A(f"v_mov_b32_dpp v{PX+2}, v{PX} {QP}")
    A(f"v_mov_b32_dpp v{PX+3}, v{PX+1} {QP}")
    A(f"{MF16} {v(O0,4)}, {v(PUB,2)}, {v(PM,2)}, 0")
    vm.wait("vx")
    A(f"{MF} {v(LS,4)}, {v(ONE,4)}, {v(PX,4)}, {v(LS,4)}")
    A(f"{MF16} {v(O1,4)}, {v(VM0,2)}, {v(PM,2)}, 0")
    A(f"{MF} {v(O0,4)}, {v(V_VX,4)}, {v(PX,4)}, {v(O0,4)}")
    A(f"v_rcp_f32 v{LS}, v{LS}")
    A(f"{MF} {v(O1,4)}, {v(V_VX+4,4)}, {v(PX,4)}, {v(O1,4)}")
    zero(V_VA, 8)
    A(f"v_mov_b64 {v(k0,2)}, 0"); A(f"v_mov_b64 {v(k0+2,2)}, 0")
    stamp("y2")
    if cfg.get("pk", 1):
        for i in range(0, 8, 2): A(f"v_pk_mul_f32 {v(O0+i,2)}, {v(O0+i,2)}, {v(LS,2)} op_sel_hi:[1,0]")
        for i in range(4): A(f"v_cvt_pk_bf16_f32 v{O0+i}, v{O0+2*i}, v{O0+2*i+1}")
    else:
        for i in range(4): A(f"v_mul_f32 v{O0+i}, v{O0+i}, v{LS}")
        for i in range(2): A(f"v_cvt_pk_bf16_f32 v{O0+i}, v{O0+2*i}, v{O0+2*i+1}")
        for i in range(4, 8): A(f"v_mul_f32 v{O0+i}, v{O0+i}, v{LS}")
        for i in range(2, 4): A(f"v_cvt_pk_bf16_f32 v{O0+i}, v{O0+2*i}, v{O0+2*i+1}")
    A(f"s_mov_b64 exec, {s(S_EXA,2)}")
    lg.issue(f"ds_write_b128 v{V_OW}, {v(O0,4)} offset:{L_O}", "ow")
    A(f"s_mov_b64 exec, -1")
    STG2 = V_KX
    W = V_QK
    stamp("y3")
    stg_load(("o", 0), STG2)
    lg.wait("ow")
    A("s_barrier")
    stamp(3)
    OA = V_AR + 4
    lg.issue(f"ds_read_b128 {v(OA,4)}, v{V_L16} offset:{L_O}", "oa0")
    lg.issue(f"ds_read_b128 {v(OA+4,4)}, v{V_L16} offset:{L_O+1024}", "oa1")
    zero(W, 4); zero(W + 8, 8)
    where = {("o", 8): V_STG, ("o", 0): STG2, ("o", 5): STG2, ("o", 7): V_STG}
    PK = V_AR
    def fold_ops(n):
        acc = W + 4 * (n % 6)
        dst = V_TMP if n == 0 else PK + 2 * (((n - 1) >> 1) & 1) + ((n - 1) & 1)
        r = [op(o) for o in fold3(acc, dst)]
        if n == 0 or n & 1: r.append(op(f"v_and_or_b32 v{dst}, v{dst}, -2, s{S_PAR}"))
        return r
    def zero_ops(n):
        acc = W + 4 * (n % 6)
        return [op(f"v_mov_b64 {v(acc,2)}, 0"), op(f"v_mov_b64 {v(acc+2,2)}, 0")]
    def wsm(n, u, tau, kh, nv=2):
        if u in LSLOT: stg_wait(u, tau)
        lg.wait(f"oa{kh}")
        b = v(where[u] + 8 * tau, 8) if u in LSLOT else R(REG_OF[u] + 8 * tau, 8)
        A(f"{SM} {v(W+4*(n%6),4)}, {v(OA+4*kh,4)}, {b}, v{V_IDX}")
        F.pull(1, 1, nv)
    PR = [S_PQ, S_T0, S_T1, S_T2]
    pstore = lambda p: (lambda: vm.issue(f"buffer_store_dwordx2 {v(PK+2*(p&1),2)}, v{V_PS}, {WS}, s{PR[p]} offen{st}"))
    F.s += [op(f"s_add_u32 s{PR[p]}, s{S_PQ}, {p*65536}") for p in (1, 2, 3)]
    seq = [(0, ("o", 8), 0, 0), (0, ("o", 8), 1, 1)]
    for p in range(4):
        for tau in range(2): seq += [(1 + 2*p + tau, ("o", 2*p), tau, 0), (1 + 2*p + tau, ("o", 2*p + 1), tau, 1)]
    nvs = {1: 1, 2: 1, 3: 2}
    PA_ = V_KX; PB_ = V_VX
    epos = cfg.get("epos", 16)
    for k, (n, u, tau, kh) in enumerate(seq, 1):
        if k == 2: F.m += tile_ops(("o", 7), 0, V_STG)
        if k == 4: F.m += tile_ops(("o", 5), 0, STG2); F.v += fold_ops(0)
        if k == 6:
            assert not F.v and not F.m
            F.m += [lambda: vm.issue(f"buffer_store_dword v{V_TMP}, v{V_P1}, {WS}, s{S_P1} offen{st}")] + tile_ops(("o", 5), 1, STG2)
            F.v += fold_ops(1)
        if k == 8: F.v += fold_ops(2)
        if k == 9:
            assert not F.v and not F.m
            F.m += [pstore(0)] + tile_ops(("o", 7), 1, V_STG)
            F.v += zero_ops(0)
        if k == 10: F.v += fold_ops(3)
        if k == 12: F.v += fold_ops(4) + zero_ops(1)
        if k == 14:
            assert not F.v and not F.m
            F.m += [pstore(1)]
            F.v += zero_ops(2)[:1] + fold_ops(5)[:3] + zero_ops(2)[1:]
        if k == 16: F.v += fold_ops(5)[3:] + fold_ops(6)
        if k == 18:
            assert not F.v and not F.m
            if not cfg.get("l2", 0): F.m += [pstore(2)]
            F.s += [op(f"s_cmp_eq_u32 s{S_EJ}, 0")]
            F.v += fold_ops(7)
        wsm(n, u, tau, kh, nvs.get(k, 3 if k in (8, 12, 14) else 2))
    F.drain()
    def loads(P, sr):
        for i in range(2):
            A(f"buffer_load_dwordx4 {v(P+4*i,4)}, v{V_L16}, {WS}, s{sr} offen offset:{i*1024} sc1")
    Lne = A.newlabel("r_ne")
    nh = len(A.hist)
    A(f"s_cbranch_scc1 {Lne}")
    keep = list(A.hist)
    loads(PA_, S_EL)
    A.hist = keep
    A.label(Lne)
    if cfg.get("l2", 0): pstore(2)()
    ey = 1 if cfg.get("l2", 0) else 0
    for o in fold_ops(8): o()
    pstore(3)()
    stamp(4)
    lg.done = lg.n
    SEL = V_AR + 4; D = V_AR + 8; D2 = V_VA; CKR = V_AR; FA = V_AR + 1; FV = V_VX; FD = V_AR + 3
    sel_ops = [f"v_bfe_u32 v{D}, v{V_L16}, 6, 1", f"v_lshlrev_b32 v{D}, 4, v{D}", f"v_mov_b32 v{D+1}, 0x3f80",
               f"v_lshlrev_b32 v{D}, v{D}, v{D+1}"]
    sel_ops += [f"v_cndmask_b32 v{SEL+i}, 0, v{D}, {s(S_MK+2*i,2)}" for i in range(4)]
    sel_ops += [f"v_lshrrev_b32 v{V_TMP}, 4, v{V_L16}", f"v_and_b32 v{V_TMP}, 0x30, v{V_TMP}",
                f"v_bfe_u32 v{V_TMP+1}, v{V_L16}, 4, 2", f"v_lshl_add_u32 v{V_TMP}, v{V_TMP+1}, 2, v{V_TMP}",
                f"v_cndmask_b32 v{V_TMP+1}, 0, -1, {s(S_EXR,2)}",
                f"v_and_b32 v{D}, 0xc000, v{V_TMP+1}",
                f"v_xor_b32 v{D}, s{S_MSL}, v{D}",
                f"v_add_u32 v{V_TMP}, v{V_TMP}, v{D}"]
    poll = lambda: A(f"buffer_load_dword v{FV}, v{FA}, {WS}, s{S_FR} offen sc1")
    def tags(Ps, waits, Lbad):
        first = True
        for P, w in zip(Ps, waits):
            if w is not None: A(f"s_waitcnt vmcnt({w})")
            for r in (P, P + 2):
                if first: A(f"v_xor_b32 v{CKR}, s{S_PAR}, v{r}"); first = False
                else: A(f"v_bitop3_b32 v{CKR}, v{CKR}, v{r}, s{S_PAR} bitop3:0xf6")
        A(f"v_and_b32 v{CKR}, 1, v{CKR}")
        A(f"v_cmp_ne_u32 vcc, 0, v{CKR}")
        return lambda: A(f"s_cbranch_vccnz {Lbad}")
    def mm(P, Dd):
        for i in range(2): A(f"{MF} {v(Dd,4)}, {v(SEL,4)}, {v(P+4*i,4)}, {'0' if i == 0 else v(Dd,4)}")
    def fin(Dd, sr):
        A(f"v_add_f32_dpp v{Dd+2}, v{Dd}, v{Dd} row_ror:8 row_mask:0xf bank_mask:0xf")
        A(f"v_add_f32_dpp v{Dd+3}, v{Dd+1}, v{Dd+1} row_ror:8 row_mask:0xf bank_mask:0xf")
        A(f"v_add_f32_dpp v{Dd}, v{Dd+2}, v{Dd+2} row_ror:4 row_mask:0xf bank_mask:0xf")
        A(f"v_add_f32_dpp v{Dd+1}, v{Dd+3}, v{Dd+3} row_ror:4 row_mask:0xf bank_mask:0xf")
        A(f"v_cvt_pk_bf16_f32 v{Dd}, v{Dd}, v{Dd+1}")
        A(f"v_min_u32 v{Dd}, -2, v{Dd}")
        A(f"v_or_b32 v{Dd}, v{Dd}, v{V_TMP+1}")
        if Dd == D: A(f"v_mov_b32 v{FV}, -1")
        A(f"buffer_store_dword v{Dd}, v{V_TMP}, {WS}, s{sr} offen{st}")
    def budget(Lp):
        A(f"s_sub_u32 s{S_BUD}, s{S_BUD}, 1")
        A(f"s_cmp_lg_u32 s{S_BUD}, 0")
        A(f"s_cbranch_scc1 {Lp}")
        A(f"s_branch {L_exit}")
    def flag():
        stamp("fl")
        A(f"s_mov_b64 exec, {s(S_F8,2)}")
        A(f"buffer_store_dword v{FD}, v{V_L16}, {WS}, s{S_FW} offen{st}")
        A(f"s_mov_b64 exec, -1")
    cnt = lambda: A(f"s_add_u32 s84, s84, 1") if cfg.get("count") else None
    L_late = A.newlabel("r_late"); L_two = A.newlabel("r_two"); L_h2 = A.newlabel("r_h2"); L_h2b = A.newlabel("r_h2b")
    La = A.newlabel("r_a"); Lab = A.newlabel("r_ab"); Lb = A.newlabel("r_b"); Lbb = A.newlabel("r_bb"); Lc = A.newlabel("r_c"); Lcb = A.newlabel("r_cb")
    A(f"s_cmp_ge_u32 s{S_WV}, 2")
    A(f"s_cbranch_scc1 {L_late}")
    def prep(skip=0):
        for o in sel_ops[skip:]: A(o)
        A(f"v_bfe_u32 v{FA}, v{V_L16}, 2, 7")
        A(f"v_and_b32 v{FD}, 0x3c, v{FA}")
        A(f"v_add_u32 v{FD}, s{S_FX}, v{FD}")
        A(f"s_mov_b32 exec_lo, 0")
        A(f"v_mov_b32 v{FA}, v{FD}")
        A(f"s_mov_b32 exec_lo, -1")
        A(f"v_mov_b32 v{FD}, s{S_STEP}")
    PC_ = V_QK; PD_ = V_QK + 8
    def copy(dst, src):
        for i in range(0, 8, 2): A(f"v_mov_b64 {v(dst+i,2)}, {v(src+i,2)}")
    nb = cfg.get("nb", 12)
    L1 = A.newlabel("r_w1"); Ld = A.newlabel("r_d"); Ldb = A.newlabel("r_db"); Lb2 = A.newlabel("r_b2"); Lbb2 = A.newlabel("r_bb2")
    A(f"s_cmp_eq_u32 s{S_WV}, 1")
    A(f"s_cbranch_scc1 {L1}")
    for o in sel_ops[:nb]: A(o)
    loads(PC_, S_RED)
    prep(nb)
    A(f"s_waitcnt vmcnt({3+ey})")
    A.label(La)
    br = tags([PA_, PA_ + 4], [None, None], Lab)
    mm(PA_, D); br(); flag(); fin(D, S_MEMW)
    A(f"s_branch {L_h2}")
    A.label(Lab)
    cnt(); A("s_waitcnt vmcnt(0)"); copy(PA_, PC_); loads(PC_, S_RED); budget(La)
    A.label(L1)
    n1 = cfg.get("n1", 16)
    for o in sel_ops[:n1]: A(o)
    for _ in range(cfg.get("d1", 0)): A("s_nop 3")
    loads(PA_, S_RED)
    prep(n1)
    pre1()
    A.label(Ld)
    A("s_waitcnt vmcnt(0)")
    br = tags([PA_, PA_ + 4], [None, None], Ldb)
    mm(PA_, D); br(); flag(); fin(D, S_MEMW)
    A(f"s_branch {L_h2b}")
    A.label(Ldb)
    cnt(); loads(PA_, S_RED); budget(Ld)
    A.label(L_late)
    for o in sel_ops: A(o)
    A(f"s_cmp_eq_u32 s{S_EJ}, 0")
    A(f"s_cbranch_scc1 {L_two}")
    A(f"v_mov_b32 v{FD}, s{S_STEP}")
    A(f"s_waitcnt vmcnt({1+ey})")
    A.label(Lb)
    br = tags([PA_, PA_ + 4], [None, None], Lbb)
    mm(PA_, D); br(); flag(); fin(D, S_MEMW1)
    loads(PA_, S_RED)
    pre1()
    A(f"s_branch {Lb2}")
    A.label(Lbb)
    cnt(); loads(PA_, S_RED1); A("s_waitcnt vmcnt(0)"); budget(Lb)
    A.label(L_two)
    pre1()
    for _ in range(cfg.get("d2w", 0)): A("s_nop 3")
    A(f"s_cmp_eq_u32 s{S_WV}, 2")
    A(f"s_cbranch_scc1 {Lc}")
    for _ in range(cfg.get("d3w", 0)): A("s_nop 3")
    A.label(Lc)
    loads(PA_, S_RED)
    A.label(Lb2)
    A("s_waitcnt vmcnt(0)")
    br = tags([PA_, PA_ + 4], [None, None], Lcb)
    mm(PA_, D); br(); fin(D, S_MEMW)
    stamp(5)
    A(f"s_mov_b32 m0, s{S_M0G}")
    for o in advance_ops(): A(o)
    pre2()
    if kv_wait is not None: kv_wait(A)
    A(f"s_branch {L_bar}")
    A.label(Lcb)
    cnt(); budget(Lc)
    L_chk = A.newlabel("r_chk"); L_rep = A.newlabel("r_rep"); L_g3 = A.newlabel("r_g3"); L_fp = A.newlabel("r_fp"); L_fok = A.newlabel("r_fok")
    def gather(lab, mid=None):
        A(f"buffer_load_dwordx4 v{V_L16}, {WS}, s{S_MEMG} offen sc1 lds")
        A(f"s_cmp_lg_u32 s{S_WV}, 0")
        A(f"buffer_load_dwordx4 v{V_L16}, {WS}, s{S_MEMG} offen offset:1024 sc1 lds")
        if mid: A(mid)
        A(f"s_cbranch_scc1 {lab}")
        A(f"buffer_load_dwordx4 v{V_L16}, {WS}, s{S_MEMG} offen offset:2048 sc1 lds")
        A.label(lab)
    def flag_loop():
        Lp = A.newlabel("r_fp"); Lok = A.newlabel("r_fok")
        A.label(Lp)
        for _ in range(4):
            A(f"v_cmp_ne_u32 vcc, s{S_T3}, v{FV}")
            if not cfg.get("half") or _ % 2 == 0: poll()
            A(f"s_cbranch_vccz {Lok}")
        A("s_waitcnt vmcnt(24)")
        budget(Lp)
        A.label(Lok)
        stamp("fok")
    A.label(L_h2b)
    poll()
    stamp(5)
    A(f"s_mov_b32 m0, s{S_M0G}")
    A(f"s_mov_b32 s{S_T3}, s{S_STEP}")
    for o in advance_ops(): A(o)
    poll()
    pre2(); poll()
    if kv_wait is not None: kv_wait(A)
    flag_loop()
    for i in range(2): A(f"buffer_load_dwordx4 v{V_L16}, {WS}, s{S_MEMG} offen offset:{i*1024} sc1 lds")
    A(f"s_branch {L_bar}")
    A.label(L_h2)
    poll()
    stamp(5)
    A(f"s_mov_b32 m0, s{S_M0G}")
    A(f"s_mov_b32 s{S_T3}, s{S_STEP}")
    stg_load(("q", 0), V_STG)
    poll()
    for o in advance_ops(): A(o)
    poll()
    flag_loop()
    for i in range(3): A(f"buffer_load_dwordx4 v{V_L16}, {WS}, s{S_MEMG} offen offset:{i*1024} sc1 lds")
    pre2()
    if kv_wait is not None: kv_wait(A)
    A("s_waitcnt vmcnt(8)")
    zero(V_QK, 24)
    A(f"s_branch {L_bar0}")
    for La, Lb in ((L_again, L_back),):
        A.label(La)
        A(f"s_cmp_lt_u32 s{S_WV}, 2")
        A(f"s_cbranch_scc1 {Lb}")
        if cfg.get("count"): A(f"s_add_u32 s85, s85, 0x10000")
        A(f"ds_read_b32 v{V_TMP}, v{V_TMP+1}")
        gather(A.newlabel("r_g4"))
        A(f"s_waitcnt vmcnt(12) lgkmcnt(0)")
        A(f"v_cmp_eq_u32 vcc, -1, v{V_TMP}")
        A(f"s_cbranch_vccz {Lb}")
        budget(La)
    A.label(L_redo)
    L_rp = A.newlabel("r_rp"); L_rok = A.newlabel("r_rok")
    A(f"s_cmp_eq_u32 s{S_VER}, 1")
    A(f"s_cbranch_scc1 {L_go}")
    if cfg.get("count"): A(f"s_add_u32 s85, s85, 0x100")
    A("s_waitcnt vmcnt(0) lgkmcnt(0)")
    A("s_nop 15")
    A("s_barrier")
    G = V_QK
    A(f"s_xor_b32 s{S_T0}, s{S_GRAY}, 0xc000")
    A(f"s_xor_b32 s{S_MEMG}, s{S_MEMG}, s{S_T0}")
    A(f"v_add_u32 v{G+13}, s{S_M0G}, v{V_L16}")
    A(f"s_sub_u32 s{S_T3}, s{S_MEMG}, s{S_M0G}")
    A(f"s_add_u32 s{S_T3}, s{S_T3}, {L_MEM}")
    A.label(L_rp)
    A(f"buffer_load_dwordx4 {v(G,4)}, v{V_L16}, {WS}, s{S_MEMG} offen sc1")
    A(f"buffer_load_dwordx4 {v(G+4,4)}, v{V_L16}, {WS}, s{S_MEMG} offen offset:1024 sc1")
    A(f"buffer_load_dwordx4 {v(G+8,4)}, v{V_L16}, {WS}, s{S_T3} offen offset:2048 sc1")
    A(f"s_waitcnt vmcnt(0)")
    A(f"v_max3_u32 v{G+14}, v{G}, v{G+1}, v{G+2}")
    for i in range(3, 11, 2): A(f"v_max3_u32 v{G+14}, v{G+14}, v{G+i}, v{G+i+1}")
    A(f"v_max_u32 v{G+14}, v{G+14}, v{G+11}")
    A(f"v_cmp_eq_u32 vcc, -1, v{G+14}")
    A(f"s_cbranch_vccz {L_rok}")
    A(f"s_sub_u32 s{S_BUD}, s{S_BUD}, 1")
    A(f"s_cmp_lg_u32 s{S_BUD}, 0")
    A(f"s_cbranch_scc1 {L_rp}")
    A(f"s_branch {L_exit}")
    A.label(L_rok)
    A(f"ds_write_b128 v{G+13}, {v(G,4)}")
    A(f"ds_write_b128 v{G+13}, {v(G+4,4)} offset:1024")
    A(f"ds_write_b128 v{V_L16}, {v(G+8,4)} offset:{L_MEM+2048}")
    A("s_waitcnt lgkmcnt(0)")
    pre1(); pre2()
    A(f"s_mov_b32 s{S_VER}, 1")
    A(f"s_mov_b32 s{S_LG}, 0")
    A("s_waitcnt lgkmcnt(0)")
    A("s_barrier")
    A(f"s_branch {L_top}")
    A.label(L_last)

def snapshot(A):
    A(f"v_lshrrev_b32 v12, 2, v{V_L16}")
    A(f"global_load_dword v13, v12, {s(S_DBG,2)} sc1")

def team_ready(A, L_fast, L_slow, L_exit):
    Lp = A.newlabel("tm_p"); La = A.newlabel("tm_a")
    A.label(Lp)
    for i in range(9): A(f"v_readlane_b32 s{84+i}, v13, {DIE_DW[i]}")
    A(f"v_readlane_b32 s95, v13, {DBG_TEAM//4}")
    A(f"v_readlane_b32 s96, v13, {DBG_TEAM//4 + 16}")
    A(f"v_readlane_b32 s97, v13, {DBG_INIT//4}")
    A("s_nop 3")
    A(f"s_add_u32 s93, s84, s85")
    for i in range(2, 9): A(f"s_add_u32 s93, s93, s{84+i}")
    A(f"s_cmp_eq_u32 s{S_B}, 0")
    A(f"s_cselect_b32 s94, s84, s85")
    A(f"s_cselect_b32 s95, s95, s96")
    A(f"s_cmp_lt_u32 s95, 32")
    A(f"s_cbranch_scc1 {La}")
    A(f"s_cmp_lt_u32 s97, 192")
    A(f"s_cbranch_scc1 {La}")
    A(f"s_cmp_ge_u32 s94, 32")
    A(f"s_cbranch_scc1 {L_fast}")
    A(f"s_cmp_ge_u32 s93, 256")
    A(f"s_cbranch_scc1 {L_slow}")
    A.label(La)
    A(f"v_mov_b32 v{V_WARM}, 0")
    A(f"s_sub_u32 s{S_BUD}, s{S_BUD}, 1")
    A(f"s_cmp_eq_u32 s{S_BUD}, 0")
    A(f"s_cbranch_scc1 {L_exit}")
    snapshot(A)
    A("s_waitcnt vmcnt(0)")
    A(f"s_branch {Lp}")

def rec_role(A, L_exit, stamp=None, force_slow=False, kv_wait=None, publish=None, publish_last=None, cfg=None, at_end=None, before_loop=None, after_load=None, early=None):
    A(f"s_lshr_b32 s{S_B}, s{S_SLOTID}, 5")
    A(f"s_and_b32 s{S_H}, s{S_SLOTID}, 31")
    rec_setup(A)
    build_mem0(A)
    rec_bases(A)
    init_slots(A, " sc1")
    def hook(i):
        if i == 0:
            Lw = A.newlabel("tb_w")
            A(f"s_lshl_b32 s{S_T0}, s{S_B}, 6"); A(f"s_add_u32 s{S_T0}, s{S_T0}, {DBG_TEAM}")
            A(f"v_mov_b32 v12, s{S_T0}"); A(f"v_mov_b32 v13, 1")
            A(f"s_cmp_lg_u32 s{S_WV}, 0")
            A(f"s_cbranch_scc1 {Lw}")
            A(f"s_mov_b64 exec, 1")
            A(f"global_atomic_add v12, v13, {s(S_DBG,2)}")
            A(f"s_mov_b64 exec, -1")
            A.label(Lw)
        if i == 18: snapshot(A)
        if i == 31 and early is not None: early(A)
    load_weights(A, (cfg or {}).get('wnt', ''), hook)
    if after_load is not None: after_load(A)
    L_fast = A.newlabel("r_fast"); L_slow = A.newlabel("r_slow")
    team_ready(A, L_slow if force_slow else L_fast, L_slow, L_exit)
    for lab, st in ((L_fast, ""), (L_slow, " sc1")):
        A.label(lab)
        if before_loop is not None: before_loop(A)
        if cfg and cfg.get("count"):
            for r in (84, 85, 71): A(f"s_mov_b32 s{r}, 0")
        rec_loop(A, st, L_exit, stamp=stamp, kv_wait=kv_wait, publish=publish, cfg=cfg)
        A("s_waitcnt vmcnt(0) lgkmcnt(0)")
        if publish_last is not None: publish_last(A)
        if at_end is not None: at_end(A)
        A(f"s_branch {L_exit}")
```

```python
import sys, json
from common import *
import phase_a as PA
import rec as RC
import phase_b as PB
import outproj as OP

NAME = "gated_mix__memory_aug_recurrent_mem_tr__memory_aug_recurrent_mem_tr__prompt_kernel"
WS = s(S_WS, 4)

def merged(cfg=None, force_slow=False, prof=False):
    cfg = cfg or {}
    A = Asm()
    WPROF[0] = bool(cfg.get("wp"))
    X = "L_exit"
    A.raw(kernel_header(NAME))
    A("s_cmp_ge_u32 s2, 256")
    A(f"s_cbranch_scc1 {X}")
    def tstamp(i, vt=10):
        if not prof: return
        A("s_memrealtime s[0:1]")
        A(f"s_lshl_b32 s2, s{S_SLOTID}, 6"); A(f"s_add_u32 s2, s2, {WS_DBG + 0x100000 + 4*i}")
        A("s_waitcnt lgkmcnt(0)")
        A(f"v_mov_b32 v{vt}, s0")
        A(f"buffer_store_dword v{vt}, off, {WS}, s2")
        A("s_waitcnt vmcnt(0)")
        if i in (1, 2):
            A("s_memtime s[0:1]")
            A("s_waitcnt lgkmcnt(0)")
            A(f"v_mov_b32 v{vt}, s0")
            A(f"buffer_store_dword v{vt}, off, {WS}, s2 offset:40")
            A("s_waitcnt vmcnt(0)")
    load_ptrs(A)
    build_common_srds(A)
    assign_slot(A, X, tuple(cfg.get('dies', (0, 1))))
    tstamp(0)
    A(f"s_cmp_ge_u32 s{S_SLOTID}, 64")
    A("s_cbranch_scc1 L_worker")
    S_KVOK = 37
    def r_before(A):
        A(f"s_mov_b32 s{S_KVOK}, 0")
        A(f"s_lshl_b32 s{RC.S_RZ}, s{RC.S_BH}, 2"); A(f"s_add_u32 s{RC.S_RZ}, s{RC.S_RZ}, s{RC.S_WV}")
        A(f"s_lshl_b32 s{RC.S_RZ}, s{RC.S_RZ}, 7"); A(f"s_add_u32 s{RC.S_RZ}, s{RC.S_RZ}, {WS_MP}")
        tstamp(1, 12)
    def r_early(A):
        A(f"s_lshl_b32 s{RC.S_RZ2}, s{RC.S_BH}, 7"); A(f"s_add_u32 s{RC.S_RZ2}, s{RC.S_RZ2}, {WS_KVP}")
        A(f"buffer_load_dword v{RC.V_WARM}, off, {WS}, s{RC.S_RZ2} sc1")
    def kv_wait(A, first=False):
        Lok = A.newlabel("kv_ok"); Lp = A.newlabel("kv_p"); Lu = A.newlabel("kv_u")
        W = RC.V_WARM
        A(f"s_cmp_gt_i32 s{S_KVOK}, s{RC.S_STEP}")
        A(f"s_cbranch_scc1 {Lok}")
        A(f"s_branch {Lu}")
        A.label(Lp)
        A(f"s_sub_u32 s{RC.S_BUD}, s{RC.S_BUD}, 1")
        A(f"s_cmp_eq_u32 s{RC.S_BUD}, 0")
        A(f"s_cbranch_scc1 {X}")
        A(f"v_bfe_u32 v{W}, v{RC.V_L16}, 2, 4")
        A(f"buffer_load_dword v{W}, v{W}, {WS}, s{RC.S_RZ2} offen sc1")
        A("s_waitcnt vmcnt(0)")
        A.label(Lu)
        A(f"v_readlane_b32 s{S_KVOK}, v{W}, 0")
        A("s_nop 3")
        A(f"s_cmp_ge_u32 s{S_KVOK}, 64")
        A(f"s_cselect_b32 s{S_KVOK}, 65, s{S_KVOK}")
        A(f"s_sub_u32 s{S_KVOK}, s{S_KVOK}, 1")
        A(f"s_cmp_gt_i32 s{S_KVOK}, s{RC.S_STEP}")
        A(f"s_cbranch_scc0 {Lp}")
        A.label(Lok)
    def r_publish(A, vm, F):
        if cfg.get("nopf"): return
        def st():
            A(f"s_mov_b64 exec, 1")
            vm.issue(f"buffer_store_dword v{RC.V_TMP}, off, {WS}, s{RC.S_RZ} sc1")
            A("s_mov_b64 exec, -1")
        F.v += [lambda: A(f"v_mov_b32 v{RC.V_TMP}, s{RC.S_STEP}"), st]
    def r_last(A):
        A("s_barrier")
        A(f"v_mov_b32 v{RC.V_WARM}, 64")
        A(f"s_mov_b64 exec, 1")
        A(f"buffer_store_dword v{RC.V_WARM}, off, {WS}, s{RC.S_RZ} sc1")
        A("s_mov_b64 exec, -1")
        tstamp(2, 12)
    stamp = None
    if cfg.get("rst"):
        cfg["count"] = 1
        def stamp(i):
            if i == 0:
                for k in range(6): A(f"v_writelane_b32 v16, s{86+2*k}, {k}")
                A(f"v_writelane_b32 v16, s84, 6")
                A(f"v_writelane_b32 v16, s85, 7")
                A(f"v_lshrrev_b32 v17, 2, v{RC.V_L16}")
                A(f"s_lshl_b32 s41, s{S_SLOTID}, 2")
                A(f"s_add_u32 s41, s41, s{RC.S_WV}")
                A(f"s_lshl_b32 s41, s41, 6")
                A(f"s_add_u32 s41, s41, s{RC.S_STEP}")
                A(f"s_lshl_b32 s41, s41, 5")
                A(f"s_add_u32 s41, s41, {WS_DBG}")
                A("s_mov_b64 exec, 0xff")
                A(f"buffer_store_dword v16, v17, {s(S_WS,4)}, s41 offen")
                A("s_mov_b64 exec, -1")
            A(f"{'s_memrealtime' if cfg.get('rt') else 's_memtime'} s[{86+2*i}:{87+2*i}]")
            A("s_waitcnt lgkmcnt(0)")
    RC.rec_role(A, X, stamp=stamp, force_slow=force_slow, kv_wait=kv_wait, publish=r_publish, publish_last=r_last, cfg=cfg, before_loop=r_before, after_load=lambda A: tstamp(3, 14), early=r_early)
    A.label("L_worker")
    A(f"s_sub_u32 s{PA.S_WI}, s{S_SLOTID}, 64")
    PA.worker_setup(A)
    PA.worker_consts(A)
    S_BUD = PB.S_BUD
    if prof:
        A(f"s_lshl_b32 s2, s{S_SLOTID}, 6"); A(f"s_add_u32 s2, s2, {WS_DBG + 0x100000 + 32}")
        A(f"v_mov_b32 v32, s{PA.S_C}"); A(f"buffer_store_dword v32, off, {WS}, s2")
    A(f"s_mov_b32 s{S_BUD}, 0x100000")
    Lz = A.newlabel("w_z")
    A(f"s_lshl_b32 s{PA.S_T0}, s{PA.S_WI}, 10"); A(f"s_lshl_b32 s{PA.S_T1}, s{PA.S_WV}, 8"); A(f"s_add_u32 s{PA.S_T0}, s{PA.S_T0}, s{PA.S_T1}")
    A(f"s_add_u32 s{PA.S_T0}, s{PA.S_T0}, {WS_FLAG}")
    for i in range(4): A(f"v_mov_b32 v{32+i}, 0")
    A("s_mov_b64 exec, 0xffff")
    A(f"buffer_store_dwordx4 v[32:35], v{PA.V_L16}, {WS}, s{PA.S_T0} offen sc1")
    A("s_mov_b64 exec, 0xff")
    A(f"s_lshl_b32 s6, s{PA.S_BH}, 7"); A(f"s_add_u32 s6, s6, {WS_KVP}")
    A(f"s_or_b32 s{PA.S_T0}, s{PA.S_C}, s{PA.S_WV}")
    A(f"s_cmp_eq_u32 s{PA.S_T0}, 0"); A(f"s_cselect_b32 s{PA.S_T0}, s6, 0x20000000")
    A(f"buffer_store_dwordx4 v[32:35], v{PA.V_L16}, {WS}, s{PA.S_T0} offen sc1")
    A("s_mov_b64 exec, -1")
    Lns = A.newlabel("w_ns")
    A(f"s_cmp_lg_u32 s{PA.S_C}, 1")
    A(f"s_cbranch_scc1 {Lns}")
    for i in range(4): A(f"v_mov_b32 v{36+i}, -1")
    A(f"s_lshl_b32 s{PA.S_T0}, s{PA.S_BH}, 19"); A(f"s_lshl_b32 s{PA.S_T1}, s{PA.S_WV}, 11"); A(f"s_add_u32 s{PA.S_T0}, s{PA.S_T0}, s{PA.S_T1}")
    A(f"s_add_u32 s{PA.S_T0}, s{PA.S_T0}, {WS_KVM + 63*8192}")
    A(f"s_lshl_b32 s{PA.S_T2}, s{PA.S_BH}, 13"); A(f"s_add_u32 s{PA.S_T2}, s{PA.S_T2}, s{PA.S_T1}"); A(f"s_add_u32 s{PA.S_T2}, s{PA.S_T2}, {WS_O + 63*64*8192}")
    A(f"s_lshl_b32 s{PA.S_T3}, s{PA.S_BH}, 2"); A(f"s_add_u32 s{PA.S_T3}, s{PA.S_T3}, s{PA.S_WV}"); A(f"s_mul_i32 s{PA.S_T3}, s{PA.S_T3}, 1152")
    A(f"s_add_u32 s{PA.S_T3}, s{PA.S_T3}, {WS_OP + 63*6*4*12288}")
    for i in range(2): A(f"buffer_store_dwordx4 v[36:39], v{PA.V_L16}, {WS}, s{PA.S_T0} offen offset:{i*1024} sc1")
    for k in range(2):
        for i in range(2): A(f"buffer_store_dwordx4 v[36:39], v{PA.V_L16}, {WS}, s{PA.S_T2} offen offset:{i*1024} sc1")
        A(f"buffer_store_dwordx4 v[36:39], v{PA.V_L16}, {WS}, s{PA.S_T3} offen sc1")
        A("s_mov_b64 exec, 0xff")
        A(f"buffer_store_dwordx4 v[36:39], v{PA.V_L16}, {WS}, s{PA.S_T3} offen offset:1024 sc1")
        A("s_mov_b64 exec, -1")
        A(f"s_sub_u32 s{PA.S_T2}, s{PA.S_T2}, {64*8192}"); A(f"s_sub_u32 s{PA.S_T3}, s{PA.S_T3}, {6*4*12288}")
    A.label(Lns)
    PB.gate_part(A)
    A("s_waitcnt vmcnt(0)")
    A("s_barrier")
    A(f"s_cmp_lg_u32 s{PA.S_WV}, 0")
    A(f"s_cbranch_scc1 {Lz}")
    A(f"v_mov_b32 v32, {DBG_INIT}"); A("v_mov_b32 v33, 1")
    A("s_mov_b64 exec, 1")
    A(f"global_atomic_add v32, v33, {s(S_DBG,2)}")
    A("s_mov_b64 exec, -1")
    A.label(Lz)
    S_KP = 6; S_W0 = 94; S_KK = 7
    A(f"s_mov_b32 s100, s70"); A(f"s_mov_b32 s101, s71")
    A(f"s_mov_b32 s4, s84"); A(f"s_mov_b32 s5, s85")
    A(f"s_cmp_eq_u32 s{PA.S_C}, 1")
    A("s_cbranch_scc1 L_attn")
    A(f"s_cmp_eq_u32 s{PA.S_C}, 2")
    A("s_cbranch_scc1 L_outproj")
    def a_before(A):
        tstamp(1, PA.V_T)
    A(f"s_cmp_eq_u32 s{PA.S_WV}, 0"); A(f"s_cselect_b32 s{S_W0}, 1, 0"); A(f"s_mov_b32 s{S_W0+1}, 0")
    def a_publish(A):
        A(f"v_mov_b32 v{PA.V_T}, s{PA.S_CNT}")
        A(f"s_mov_b64 exec, {s(S_W0,2)}")
        A(f"buffer_store_dword v{PA.V_T}, off, {WS}, s{S_KP} sc1")
        A("s_mov_b64 exec, -1")
        A(f"s_add_u32 s{PA.S_CNT}, s{PA.S_CNT}, 1")
    PA.phase_a(A, publish=a_publish, before_loop=a_before, cfg=cfg)
    a_publish(A)
    tstamp(2, PA.V_T)
    A(f"s_cmp_ge_u32 s{PA.S_BH}, 48")
    A(f"s_cbranch_scc1 {X}")
    A(f"s_mul_hi_u32 s{OP.S_T0}, s{PA.S_BH}, {hex((1<<32)//6+1)}")
    A(f"s_mul_i32 s{OP.S_T1}, s{OP.S_T0}, 6"); A(f"s_sub_u32 s{OP.S_NJ}, s{PA.S_BH}, s{OP.S_T1}")
    A(f"s_and_b32 s{OP.S_SEG}, s{OP.S_T0}, 1"); A(f"s_add_u32 s{OP.S_SEG}, s{OP.S_SEG}, {cfg.get('join', 48) + 2}"); A(f"s_lshr_b32 s{OP.S_KQ}, s{OP.S_T0}, 1")
    A("s_branch L_op_go")
    def hold(A, soff, vt, st):
        Lp = A.newlabel("hold"); Lok = A.newlabel("hold_ok")
        A(f"s_cmp_lg_u32 s{PA.S_WV}, 0")
        A(f"s_cbranch_scc1 {Lok}")
        wait_init(A, X, S_BUD, vt, st)
        if soff is not None:
            A.label(Lp)
            A(f"buffer_load_dword v{vt}, off, {WS}, s{soff} sc1")
            A("s_waitcnt vmcnt(0)")
            A(f"v_readfirstlane_b32 s{st}, v{vt}")
            A("s_nop 3")
            A(f"s_cmp_ge_u32 s{st}, {cfg.get('holdn', 5)}")
            A(f"s_cbranch_scc1 {Lok}")
            A("s_sleep 32")
            A(f"s_sub_u32 s{S_BUD}, s{S_BUD}, 1")
            A(f"s_cmp_lg_u32 s{S_BUD}, 0")
            A(f"s_cbranch_scc1 {Lp}")
            A(f"s_branch {X}")
        A.label(Lok)
        A("s_barrier")
    A.label("L_attn")
    hold(A, S_KP, 32, PA.S_T2)
    def b_before(A):
        A(f"s_mov_b32 s{S_KK}, 0")
        tstamp(1, 32)
    def b_kv(A):
        Lp = A.newlabel("b_kv"); Lok = A.newlabel("b_kvok")
        A.label(Lp)
        A(f"s_cmp_gt_u32 s{S_KK}, s{PA.S_SEG}")
        A(f"s_cbranch_scc1 {Lok}")
        A(f"s_sub_u32 s{S_BUD}, s{S_BUD}, 1")
        A(f"s_cmp_eq_u32 s{S_BUD}, 0")
        A(f"s_cbranch_scc1 {X}")
        A(f"buffer_load_dword v32, off, {WS}, s{S_KP} sc1")
        A("s_waitcnt vmcnt(0)")
        A(f"v_readfirstlane_b32 s{S_KK}, v32")
        A("s_sleep 2")
        A(f"s_branch {Lp}")
        A.label(Lok)
    def mem_wait(A, loads, regs):
        Lp = A.newlabel("b_mp"); Lok = A.newlabel("b_mok"); Ld = A.newlabel("b_md"); Ldone = A.newlabel("b_mdone")
        PV = PB.V_PKQ + 1
        A(f"s_lshl_b32 s{PA.S_T0}, s{PA.S_BH}, 2"); A(f"s_add_u32 s{PA.S_T0}, s{PA.S_T0}, s{PA.S_WV}")
        A(f"s_lshl_b32 s{PA.S_T0}, s{PA.S_T0}, 7"); A(f"s_add_u32 s{PA.S_T2}, s{PA.S_T0}, {WS_MP}")
        A(f"s_min_u32 s{PA.S_T3}, s{PA.S_SEG}, {62 if cfg.get('sp_b') else 63}")
        A.label(Lp)
        A(f"buffer_load_dword v{PV}, off, {WS}, s{PA.S_T2} sc1")
        A("s_waitcnt vmcnt(0)")
        A(f"v_readfirstlane_b32 s{PA.S_T1}, v{PV}")
        A("s_nop 3")
        A(f"s_cmp_gt_u32 s{PA.S_T1}, s{PA.S_T3}")
        A(f"s_cbranch_scc1 {Lok}")
        A(f"s_sleep {cfg.get('bsl', 1)}")
        A(f"s_sub_u32 s{S_BUD}, s{S_BUD}, 1")
        A(f"s_cmp_lg_u32 s{S_BUD}, 0")
        A(f"s_cbranch_scc1 {Lp}")
        A(f"s_branch {X}")
        A.label(Lok)
        A(f"s_cmp_lt_u32 s{PA.S_SEG}, {63 if cfg.get('sp_b') else 100}")
        A(f"s_cbranch_scc1 {Ldone}")
        A.label(Ld)
        A(f"s_sub_u32 s{S_BUD}, s{S_BUD}, 1")
        A(f"s_cmp_eq_u32 s{S_BUD}, 0")
        A(f"s_cbranch_scc1 {X}")
        A(f"buffer_load_dword v{PV}, off, {WS}, s{PA.S_T2} sc1")
        loads()
        A("s_waitcnt vmcnt(16)")
        A(f"v_readfirstlane_b32 s{PA.S_T1}, v{PV}")
        A("s_nop 3")
        A(f"s_cmp_gt_u32 s{PA.S_T1}, 63")
        A(f"s_cbranch_scc1 {Ldone}")
        A("s_waitcnt vmcnt(0)")
        A(f"v_max3_u32 v{PV}, v{regs[0]}, v{regs[1]}, v{regs[2]}")
        for i in range(3, len(regs) - 1, 2): A(f"v_max3_u32 v{PV}, v{PV}, v{regs[i]}, v{regs[i+1]}")
        A(f"v_max_u32 v{PV}, v{PV}, v{regs[-1]}")
        A(f"v_cmp_eq_u32 vcc, -1, v{PV}")
        A(f"s_cbranch_vccnz {Ld}")
        Lskip = A.newlabel("b_msk")
        A(f"s_branch {Lskip}")
        A.label(Ldone)
        wstamp(A, 0, PB.V_PKQ + 2)
        loads()
        A.label(Lskip)
    def b_publish(A):
        A(f"s_lshl_b32 s{PA.S_T0}, s{PA.S_SEG}, 4"); A(f"s_lshr_b32 s{PA.S_T1}, s{PA.S_BH}, 2"); A(f"s_add_u32 s{PA.S_T0}, s{PA.S_T0}, s{PA.S_T1}")
        A(f"s_lshl_b32 s{PA.S_T0}, s{PA.S_T0}, 4"); A(f"s_and_b32 s{PA.S_T1}, s{PA.S_BH}, 3"); A(f"s_add_u32 s{PA.S_T0}, s{PA.S_T0}, s{PA.S_T1}")
        A(f"s_lshl_b32 s{PA.S_T0}, s{PA.S_T0}, 2"); A(f"s_add_u32 s{PA.S_T0}, s{PA.S_T0}, {WS_OC}")
        A(f"v_mov_b32 v{PB.V_PKQ}, 1")
        wstamp(A, 2, PB.V_PKQ + 2)
        A("s_waitcnt vmcnt(0)")
        wstamp(A, 3, PB.V_PKQ + 2)
        A("s_mov_b64 exec, 1")
        A(f"buffer_store_dword v{PB.V_PKQ}, off, {WS}, s{PA.S_T0} sc1")
        A("s_mov_b64 exec, -1")
    PB.phase_b(A, X, 0, 1, mem_wait=mem_wait, publish=b_publish, kv_wait=b_kv, before_loop=b_before)
    tstamp(3, 32)
    A(f"s_branch {X}")
    A.label("L_outproj")
    T0, T1, T2 = OP.S_T0, OP.S_T1, OP.S_T2
    A(f"s_lshr_b32 s{T0}, s{PA.S_WI}, 5")
    A(f"s_cmp_ge_u32 s{PA.S_BH}, 6"); A(f"s_cselect_b32 s{T1}, 1, 0")
    A(f"s_mul_i32 s{T2}, s{T1}, 6"); A(f"s_sub_u32 s{OP.S_NJ}, s{PA.S_BH}, s{T2}")
    A(f"s_cmp_ge_u32 s{T0}, 4")
    A("s_cbranch_scc1 L_op_two")
    A(f"s_cmp_eq_u32 s{T1}, 0")
    A("s_cbranch_scc1 L_op_grp")
    A(f"s_lshl_b32 s{T0}, s{T0}, 2"); A(f"s_add_u32 s{T0}, s{T0}, s{OP.S_NJ}")
    A(f"s_lshr_b32 s{OP.S_SEG}, s{T0}, 3"); A(f"s_and_b32 s{OP.S_NJ}, s{T0}, 7")
    A(f"s_cmp_lt_u32 s{OP.S_NJ}, 6")
    A("s_cbranch_scc1 L_final")
    A(f"s_branch {X}")
    A.label("L_op_two")
    A(f"s_lshl_b32 s{T0}, s{T0}, 1"); A(f"s_sub_u32 s{T0}, s{T0}, 4"); A(f"s_add_u32 s{T0}, s{T0}, s{T1}")
    A.label("L_op_grp")
    A(f"s_and_b32 s{OP.S_SEG}, s{T0}, 1"); A(f"s_lshr_b32 s{OP.S_KQ}, s{T0}, 1")
    A.label("L_op_go")
    A(f"s_cmp_lt_u32 s{OP.S_KQ}, 2")
    A(f"s_cselect_b32 s{S_W4}, s100, s4"); A(f"s_cselect_b32 s{S_W4+1}, s101, s5")
    hold(A, S_KP, OP.V_T, OP.S_T2)
    OP.op_consts_and_weights(A)
    tstamp(3, OP.V_T)
    OP.op_loop2(A, X, 2, cfg)
    tstamp(4, OP.V_T)
    A(f"s_branch {X}")
    A.label("L_final")
    hold(A, None, OP.V_T, OP.S_T2)
    OP.op_final(A, X, 2, cfg)
    tstamp(4, OP.V_T)
    A.label(X)
    A("s_endpgm")
    return A.text()

def write(path, txt, as_list=False):
    hdr = "".join(l for l in open("cdna_kernels/" + NAME[:-7] + ".s.ref") if l.startswith(";") and "launch" not in l.lower() and "Harness parses" not in l)
    hdr += f"; @launch kernel={NAME} grid=(256,1,1) block=(256,1,1) lds=163840\n" if as_list else "; @launch grid=(256,1,1) block=(256,1,1) lds=163840\n"
    out = hdr + '.amdgcn_target "amdgcn-amd-amdhsa--gfx950"\n.text\n' + txt + '.section .rodata,"a"\n' + kernel_desc(NAME)
    open(path, "w").write(out)

if __name__ == "__main__":
    cfg = json.loads(sys.argv[1]) if len(sys.argv) > 1 else {}
    write("merged.s", merged(dict(cfg)), True)
    write("merged_prof.s", merged(dict(cfg), prof=True), True)
    write("merged_slow.s", merged(dict(cfg), force_slow=True), True)
    write("final.s", merged(dict(cfg)), False)
    for k, arg in enumerate(sys.argv[2:]):
        c = dict(cfg); c.update(json.loads(arg))
        write(f"merged_v{k}.s", merged(c, prof=bool(c.get("prof"))), True)
```

```python
from asmlib import *

KA = dict(x=0, A_mem0=8, A_Wq=16, A_Wk=24, A_Wv=32, A_Wo=40, B_mem0=64, B_Wq=72, B_Wk=80, B_Wv=88, B_Wo=96,
          gate=112, out=120, dbg=128, ws=136)
X_BYTES = 2048 * 1152
W_BYTES = 576 * 8192
MEM0_BYTES = 8 * 1152
WS_BYTES = 1 << 28
MB = 1 << 20
WS_KV = 0
WS_KVM = 64 * MB
WS_O = 96 * MB
WS_PART = 128 * MB
WS_MEMI = 132 * MB
WS_GATE = 133 * MB
WS_FLAG = 134 * MB
WS_OP = 136 * MB
WS_DBG = 200 * MB

S_X = 8
S_W1 = 12
S_W2 = 16
S_W3 = 20
S_W4 = 24
S_WS = 28
S_OUT = 32
S_M0 = 36
S_GW = 40
S_DBG = 44

def srd(A, dst, lo, nbytes):
    A(f"s_mov_b32 s{dst}, s{lo}")
    A(f"s_mov_b32 s{dst+1}, s{lo+1}")
    A(f"s_mov_b32 s{dst+2}, {hex(nbytes)}")
    A(f"s_mov_b32 s{dst+3}, 0x20000")

def load_ptrs(A):
    A("s_load_dwordx16 s[60:75], s[0:1], 0")
    A("s_load_dwordx16 s[76:91], s[0:1], 64")
    A("s_load_dwordx4 s[92:95], s[0:1], 128")
    A("s_waitcnt lgkmcnt(0)")

def build_common_srds(A):
    srd(A, S_X, 60, X_BYTES)
    srd(A, S_WS, 94, WS_BYTES)
    srd(A, S_OUT, 90, X_BYTES)
    srd(A, S_GW, 88, 1152)
    A(f"s_mov_b32 s{S_DBG}, s92")
    A(f"s_mov_b32 s{S_DBG+1}, s93")

def build_branch_srds(A, s_b):
    A(f"s_cmp_eq_u32 s{s_b}, 0")
    for dst, la, lb, nb in ((S_M0, 62, 76, MEM0_BYTES), (S_W1, 64, 78, W_BYTES), (S_W2, 66, 80, W_BYTES),
                            (S_W3, 68, 82, W_BYTES), (S_W4, 70, 84, W_BYTES)):
        A(f"s_cselect_b32 s{dst}, s{la}, s{lb}")
        A(f"s_cselect_b32 s{dst+1}, s{la+1}, s{lb+1}")
        A(f"s_mov_b32 s{dst+2}, {hex(nb)}")
        A(f"s_mov_b32 s{dst+3}, 0x20000")

DIE_DW = [0, 16, 32, 33, 34, 48, 49, 50, 51]
DBG_OVF = 35 * 4; DBG_TEAM = 4
S_SLOTID = 3

def read_counts(A, sdst, vt):
    A(f"v_and_b32 v{vt}, 63, v0")
    A(f"v_lshlrev_b32 v{vt}, 2, v{vt}")
    A(f"global_load_dword v{vt+1}, v{vt}, {s(S_DBG,2)} sc1")
    A("s_waitcnt vmcnt(0)")
    for i in range(9): A(f"v_readlane_b32 s{sdst+i}, v{vt+1}, {DIE_DW[i]}")
    A("s_nop 3")
    A(f"s_add_u32 s{sdst+9}, s{sdst}, s{sdst+1}")
    for i in range(2, 9): A(f"s_add_u32 s{sdst+9}, s{sdst+9}, s{sdst+i}")

def assign_slot(A, L_exit, dies=(0, 1), fake=None):
    L_w = A.newlabel("tk_w"); L_home = A.newlabel("tk_home"); L_ov = A.newlabel("tk_ov"); L_ovp = A.newlabel("tk_ovp")
    L_done = A.newlabel("tk_done"); L_w2 = A.newlabel("tk_w2")
    A("s_getreg_b32 s46, hwreg(HW_REG_XCC_ID)")
    A("s_and_b32 s46, s46, 15")
    A("s_min_u32 s46, s46, 8")
    if fake == "ovf":
        A("s_and_b32 s47, s2, 3"); A("s_cmp_eq_u32 s47, 0"); A("s_cselect_b32 s46, 8, s46")
    rest = [d for d in range(8) if d not in dies]
    order = list(dies) + rest
    table = sum(order.index(p) << (4 * p) for p in range(8))
    A("s_lshl_b32 s47, s46, 2"); A(f"s_lshr_b32 s47, {hex(table)}, s47"); A("s_and_b32 s47, s47, 15")
    A("s_cmp_lt_u32 s46, 8"); A("s_cselect_b32 s46, s47, s46")
    A("s_lshl_b32 s47, s46, 4")
    A("s_add_u32 s48, s46, 30"); A("s_cmp_ge_u32 s46, 2"); A("s_cselect_b32 s47, s48, s47")
    A("s_add_u32 s48, s46, 43"); A("s_cmp_ge_u32 s46, 5"); A("s_cselect_b32 s47, s48, s47")
    A("s_lshl_b32 s47, s47, 2")
    A("v_mov_b32 v1, s47")
    A("v_mov_b32 v2, 1")
    A("v_mov_b32 v4, 0")
    A("v_cmp_eq_u32 vcc, 0, v0")
    A("s_and_saveexec_b64 s[48:49], vcc")
    A(f"s_cbranch_execz {L_w}")
    A(f"global_atomic_add v3, v1, v2, {s(S_DBG,2)} sc0")
    A("s_waitcnt vmcnt(0)")
    A("ds_write_b32 v4, v3")
    A("s_waitcnt lgkmcnt(0)")
    A.label(L_w)
    A("s_mov_b64 exec, s[48:49]")
    A("s_barrier")
    A("ds_read_b32 v3, v4")
    A("s_waitcnt lgkmcnt(0)")
    A("v_readfirstlane_b32 s47, v3")
    A("s_barrier")
    A("s_cmp_ge_u32 s46, 8")
    A(f"s_cbranch_scc1 {L_ov}")
    A("s_cmp_lt_u32 s47, 32")
    A(f"s_cbranch_scc1 {L_home}")
    A.label(L_ov)
    A(f"v_mov_b32 v1, {DBG_OVF}")
    A("v_cmp_eq_u32 vcc, 0, v0")
    A("s_and_saveexec_b64 s[48:49], vcc")
    A(f"s_cbranch_execz {L_w2}")
    A(f"global_atomic_add v3, v1, v2, {s(S_DBG,2)} sc0")
    A("s_waitcnt vmcnt(0)")
    A("ds_write_b32 v4, v3")
    A("s_waitcnt lgkmcnt(0)")
    A.label(L_w2)
    A("s_mov_b64 exec, s[48:49]")
    A("s_barrier")
    A("ds_read_b32 v3, v4")
    A("s_waitcnt lgkmcnt(0)")
    A("v_readfirstlane_b32 s47, v3")
    A("s_barrier")
    A("s_mov_b32 s46, 0x100000")
    A.label(L_ovp)
    A("s_sub_u32 s46, s46, 1")
    A("s_cmp_eq_u32 s46, 0")
    A(f"s_cbranch_scc1 {L_exit}")
    read_counts(A, 50, 1)
    A("s_cmp_lt_u32 s59, 256")
    A(f"s_cbranch_scc1 {L_ovp}")
    A(f"s_mov_b32 s{S_SLOTID}, 0")
    for x in range(8):
        Ln = A.newlabel("tk_n")
        A(f"s_min_u32 s48, s{50+x}, 32")
        A(f"s_sub_u32 s49, 32, s48")
        A(f"s_cmp_lt_u32 s47, s49")
        A(f"s_cbranch_scc0 {Ln}")
        A(f"s_add_u32 s{S_SLOTID}, s48, s47")
        A(f"s_add_u32 s{S_SLOTID}, s{S_SLOTID}, {32*x}")
        A(f"s_branch {L_done}")
        A.label(Ln)
        A(f"s_sub_u32 s47, s47, s49")
    A(f"s_branch {L_exit}")
    A.label(L_home)
    A(f"s_lshl_b32 s{S_SLOTID}, s46, 5")
    A(f"s_add_u32 s{S_SLOTID}, s{S_SLOTID}, s47")
    A.label(L_done)
    A.flush_hazards()

WS_KVP = WS_FLAG + 0x30000
WS_MP = WS_FLAG + 0x28000
WS_OC = WS_FLAG
WS_CNT = WS_FLAG + 0x10000
DBG_INIT = 144

def wait_init(A, L_exit, s_bud, vt, st):
    Lp = A.newlabel("wi"); Lok = A.newlabel("wi_ok")
    A.label(Lp)
    A("s_sleep 127")
    A(f"s_load_dword s{st}, {s(S_DBG,2)}, {DBG_INIT} glc")
    A("s_waitcnt lgkmcnt(0)")
    A(f"s_cmp_ge_u32 s{st}, 192")
    A(f"s_cbranch_scc1 {Lok}")
    A(f"s_sub_u32 s{s_bud}, s{s_bud}, 1")
    A(f"s_cmp_lg_u32 s{s_bud}, 0")
    A(f"s_cbranch_scc1 {Lp}")
    A(f"s_branch {L_exit}")
    A.label(Lok)

WPROF = [False]
def wstamp(A, i, vt, s_wv=51):
    if not WPROF[0]: return
    A("s_memrealtime s[0:1]")
    A(f"s_lshl_b32 s2, s{S_SLOTID}, 2"); A(f"s_add_u32 s2, s2, s{s_wv}"); A(f"s_lshl_b32 s2, s2, 6"); A(f"s_add_u32 s2, s2, {WS_DBG + 0x300000 + 4*i}")
    A("s_waitcnt lgkmcnt(0)")
    A(f"v_mov_b32 v{vt}, s0")
    A(f"buffer_store_dword v{vt}, off, {s(S_WS,4)}, s2")
```

```python
from common import *

S_KQ = 46; S_NJ = 47; S_SEG = 48; S_B = 49; S_WV = 51
S_T0 = 52; S_T1 = 53; S_T2 = 54; S_T3 = 55
S_OA = 56; S_PB = 57; S_CT = 58; S_WB = 59; S_BUD = 99

V_L16 = 1; V_GO = 2; V_TR = 3; V_RW = 4; V_RR = 5; V_OUT = 6; V_T = 8
V_F = 16
V_ACC = 80
WO = 128

def op_setup(A):
    A("v_lshrrev_b32 v1, 6, v0")
    A(f"v_readfirstlane_b32 s{S_WV}, v1")
    A("v_and_b32 v0, 63, v0")

def op_consts_and_weights(A):
    T = V_T
    A(f"v_lshlrev_b32 v{V_L16}, 4, v0")
    A(f"v_lshrrev_b32 v{T}, 2, v0"); A(f"v_mul_u32_u24 v{V_GO}, 1152, v{T}")
    A(f"v_and_b32 v{T+1}, 3, v0"); A(f"v_lshl_add_u32 v{V_GO}, v{T+1}, 4, v{V_GO}")
    A(f"v_lshrrev_b32 v{T}, 5, v0"); A(f"v_lshlrev_b32 v{V_TR}, 8, v{T}")
    A(f"v_bfe_u32 v{T+2}, v0, 2, 2"); A(f"v_lshl_add_u32 v{V_TR}, v{T+2}, 6, v{V_TR}")
    A(f"v_bfe_u32 v{T+2}, v0, 4, 1"); A(f"v_lshl_add_u32 v{V_TR}, v{T+2}, 5, v{V_TR}")
    A(f"v_lshl_add_u32 v{V_TR}, v{T+1}, 3, v{V_TR}")
    A(f"s_mul_i32 s{S_T1}, s{S_WV}, 36864")
    A(f"v_add_u32 v{V_TR}, s{S_T1}, v{V_TR}")
    A(f"s_mul_i32 s{S_T0}, s{S_WV}, 12288"); A(f"v_add_u32 v{V_RW}, s{S_T0}, v{V_L16}")
    A(f"s_mul_i32 s{S_T0}, s{S_WV}, 3072"); A(f"v_add_u32 v{V_RR}, s{S_T0}, v{V_L16}")
    A(f"v_and_b32 v{T+2}, 31, v0"); A(f"v_mul_u32_u24 v{V_OUT}, 1152, v{T+2}"); A(f"v_lshl_add_u32 v{V_OUT}, v{T}, 3, v{V_OUT}")
    A(f"s_and_b32 s{S_T0}, s{S_KQ}, 1"); A(f"s_lshl_b32 s{S_T0}, s{S_T0}, 2"); A(f"s_add_u32 s{S_T0}, s{S_T0}, s{S_WV}")
    A(f"s_mul_i32 s{S_WB}, s{S_T0}, {4*147456}")
    A(f"s_mul_i32 s{S_T0}, s{S_NJ}, 192"); A(f"s_add_u32 s{S_WB}, s{S_WB}, s{S_T0}")
    pieces = [(f, nt) for f in range(32) for nt in range(3)]
    def dma(i):
        f, nt = pieces[i]
        A(f"s_add_u32 m0, s{S_T1}, {(i%36)*1024}")
        A(f"s_add_u32 s{S_T2}, s{S_WB}, {16*f*1152 + nt*64}")
        A(f"buffer_load_dwordx4 v{V_GO}, {s(S_W4,4)}, s{S_T2} offen lds")
    for i in range(36): dma(i)
    G = 4
    for i0 in range(0, 96, G):
        out = min(36, 96 - i0)
        A(f"s_waitcnt vmcnt({out - G})")
        for i in range(i0, i0 + G):
            A(f"ds_read_b64_tr_b16 {R(WO+4*i,2)}, v{V_TR} offset:{(i%36)*1024}")
            A(f"ds_read_b64_tr_b16 {R(WO+4*i+2,2)}, v{V_TR} offset:{(i%36)*1024+512}")
        A("s_waitcnt lgkmcnt(0)")
        for i in range(i0 + 36, min(i0 + 36 + G, 96)): dma(i)
    A("s_barrier")

S_STR = 66; S_NX = 60; S_PEND = 61; S_RDY = 62; S_OC = 63
OOR = 0x20000000

def op_loop2(A, L_exit, stride, cfg=None):
    cfg = cfg or {}
    JOIN = cfg.get('join', 48)
    WS = s(S_WS, 4); MF = "v_mfma_f32_32x32x16_bf16"
    L_loop = A.newlabel("p_loop"); L_have = A.newlabel("p_have"); Lp = A.newlabel("p_rp"); Lok = A.newlabel("p_rok"); Lnp = A.newlabel("p_np"); Lgo = A.newlabel("p_go"); Lfine = A.newlabel("p_fine")
    V_ONE = V_T + 2; V_PL = V_T + 3; V_PA = V_T + 4; V_TA = V_T + 5; V_TD = V_T + 6
    S_TCH = 64; S_SPEC = 65
    def touch(sr):
        if cfg.get("touch", 0): A(f"buffer_load_dword v{V_TD}, v{V_TA}, {WS}, s{sr} offen sc1")
    def ost(i):
        if not cfg.get("ost"): return
        A(f"s_memrealtime s[{70+2*i}:{71+2*i}]")
        A("s_waitcnt lgkmcnt(0)")
    def odump():
        if not cfg.get("ost"): return
        for k in range(5): A(f"v_writelane_b32 v{V_T+7}, s{70+2*k}, {k}")
        A(f"v_writelane_b32 v{V_T+7}, s{S_RDY}, 5")
        A(f"v_lshrrev_b32 v{V_T}, 2, v{V_L16}")
        A(f"s_lshl_b32 s2, s{S_SLOTID}, 2"); A(f"s_add_u32 s2, s2, s{S_WV}"); A(f"s_lshl_b32 s2, s2, 7"); A(f"s_add_u32 s2, s2, s{S_SEG}")
        A(f"s_lshl_b32 s2, s2, 5"); A(f"s_add_u32 s2, s2, {WS_DBG + 0x200000}")
        A("s_mov_b64 exec, 0xff")
        A(f"buffer_store_dword v{V_T+7}, v{V_T}, {WS}, s2 offen")
        A("s_mov_b64 exec, -1")
    def seg_addr(dst, seg):
        A(f"s_lshl_b32 s{dst}, s{seg}, 4"); A(f"s_lshl_b32 s{S_T0}, s{S_KQ}, 2"); A(f"s_add_u32 s{dst}, s{dst}, s{S_T0}")
        A(f"s_add_u32 s{dst}, s{dst}, s{S_WV}"); A(f"s_lshl_b32 s{dst}, s{dst}, 15"); A(f"s_add_u32 s{dst}, s{dst}, {WS_O}")
    def signal():
        A("s_mov_b64 exec, 1")
        A(f"buffer_store_dword v{V_ONE}, off, {WS}, s{S_PEND} sc1")
        A("s_mov_b64 exec, -1")
        A(f"s_mov_b32 s{S_PEND}, {hex(OOR)}")
    def ld(f, sr):
        if f % 4 == 0 and f: A(f"s_add_u32 s{sr}, s{sr}, 4096")
        A(f"buffer_load_dwordx4 {v(V_F+4*(f%16),4)}, v{V_L16}, {WS}, s{sr} offen offset:{(f&3)*1024} sc1")
    A(f"v_mov_b32 v{V_ONE}, 1")
    A(f"v_and_b32 v{V_PA}, 3, v0"); A(f"v_lshlrev_b32 v{V_PA}, 2, v{V_PA}")
    A(f"s_mov_b32 s{S_PEND}, {hex(OOR)}")
    A(f"s_mov_b32 s{S_RDY}, 0")
    A(f"s_lshl_b32 s{S_OC}, s{S_SEG}, 2"); A(f"s_add_u32 s{S_OC}, s{S_OC}, s{S_KQ}")
    A(f"s_lshl_b32 s{S_OC}, s{S_OC}, 2"); A(f"s_add_u32 s{S_OC}, s{S_OC}, s{S_WV}")
    A(f"s_lshl_b32 s{S_OC}, s{S_OC}, 6"); A(f"s_add_u32 s{S_OC}, s{S_OC}, {WS_OC}")
    Lq = A.newlabel("p_q")
    A(f"s_cmp_lt_u32 s{S_SEG}, {JOIN}")
    A(f"s_cbranch_scc1 {L_loop}")
    A(f"s_sub_u32 s{S_T2}, s{S_OC}, 2048")
    A.label(Lq)
    A("s_sleep 16")
    A(f"s_sub_u32 s{S_BUD}, s{S_BUD}, 1")
    A(f"s_cmp_eq_u32 s{S_BUD}, 0")
    A(f"s_cbranch_scc1 {L_exit}")
    A(f"s_buffer_load_dwordx4 s[68:71], {WS}, s{S_T2} glc")
    A("s_waitcnt lgkmcnt(0)")
    A(f"s_and_b64 s[68:69], s[68:69], s[70:71]")
    A(f"s_and_b32 s68, s68, s69")
    A(f"s_cbranch_scc0 {Lq}")
    A.label(L_loop)
    ost(0)
    A(f"s_cmp_lg_u32 s{S_RDY}, 0")
    A(f"s_cbranch_scc1 {L_have}")
    A("s_waitcnt vmcnt(0)")
    signal()
    seg_addr(S_NX, S_SEG)
    A.label(Lp)
    A(f"s_buffer_load_dwordx4 s[68:71], {WS}, s{S_OC} glc")
    A("s_waitcnt lgkmcnt(0)")
    A(f"s_and_b64 s[68:69], s[68:69], s[70:71]")
    A(f"s_and_b32 s68, s68, s69")
    A(f"s_cbranch_scc1 {Lok}")
    A(f"s_sleep {cfg.get('psl', 3)}")
    A(f"s_sub_u32 s{S_BUD}, s{S_BUD}, 1")
    A(f"s_cmp_lg_u32 s{S_BUD}, 0")
    A(f"s_cbranch_scc1 {Lp}")
    A(f"s_branch {L_exit}")
    A.label(Lok)
    A.label(Lgo)
    wstamp(A, 4, V_T + 7)
    for f in range(16): ld(f, S_NX)
    A.label(L_have)
    ost(1)
    A(f"s_mov_b32 s{S_OA}, s{S_NX}")
    A(f"s_cmp_ge_u32 s{S_SEG}, {JOIN}"); A(f"s_cselect_b32 s{S_STR}, 4, 2")
    A(f"s_lshl_b32 s{S_T0}, s{S_STR}, 10"); A(f"s_add_u32 s{S_OC}, s{S_OC}, s{S_T0}")
    A(f"s_mul_i32 s{S_CT}, s{S_SEG}, 6"); A(f"s_add_u32 s{S_CT}, s{S_CT}, s{S_NJ}")
    A(f"s_mul_i32 s{S_PB}, s{S_CT}, {4*12288}"); A(f"s_add_u32 s{S_PB}, s{S_PB}, {WS_OP}")
    A(f"s_mul_i32 s{S_T0}, s{S_KQ}, 12288"); A(f"s_add_u32 s{S_PB}, s{S_PB}, s{S_T0}")
    A(f"s_add_u32 s{S_SEG}, s{S_SEG}, s{S_STR}")
    for f in range(32):
        if f == 0: n = 15
        elif f <= 15: n = 15
        elif f == 16: n = 14
        elif f == 17: n = 14
        else: n = (31 - f) + (f - 17)
        A(f"s_waitcnt vmcnt({n})")
        if f == 16: ost(2)
        for nt in range(3):
            acc = v(V_ACC + 16 * nt, 16)
            A(f"{MF} {acc}, {R(WO+4*(3*f+nt),4)}, {v(V_F+4*(f%16),4)}, {'0' if f == 0 else acc}")
            if f == 0 and nt == 0: A(f"buffer_load_dword v{V_PL}, v{V_PA}, {WS}, s{S_OC} offen sc1")
            if nt == 0 and 1 <= f <= 16: ld(f + 15, S_OA)
            if f == 16 and nt == 1:
                A(f"v_cmp_ne_u32 vcc, 1, v{V_PL}")
                seg_addr(S_NX, S_SEG)
                A(f"s_cmp_eq_u64 vcc, 0"); A(f"s_cselect_b32 s{S_RDY}, 1, 0")
                A(f"s_cmp_lt_u32 s{S_SEG}, 64"); A(f"s_cselect_b32 s{S_RDY}, s{S_RDY}, 0")
                A(f"s_cmp_lg_u32 s{S_RDY}, 0"); A(f"s_cselect_b32 s{S_NX}, s{S_NX}, {hex(OOR)}")
            if f == 17 and nt == 0: signal()
            if nt == 1 and f >= 17: ld(f - 17, S_NX)
    ld(15, S_NX)
    wstamp(A, 5, V_T + 7)
    ost(3)
    for j in range(12): A(f"ds_write_b128 v{V_RW}, {v(V_ACC+4*j,4)} offset:{j*1024}")
    A("s_waitcnt lgkmcnt(0)")
    A("s_barrier")
    for src in range(4):
        for i in range(3): A(f"ds_read_b128 {v(V_ACC+12*src+4*i,4)}, v{V_RR} offset:{src*12288 + i*1024}")
    A("s_waitcnt lgkmcnt(6)")
    for r in range(0, 12, 2): A(f"v_pk_add_f32 {v(V_ACC+r,2)}, {v(V_ACC+r,2)}, {v(V_ACC+12+r,2)}")
    A("s_waitcnt lgkmcnt(0)")
    A("s_barrier")
    for r in range(0, 12, 2): A(f"v_pk_add_f32 {v(V_ACC+24+r,2)}, {v(V_ACC+24+r,2)}, {v(V_ACC+36+r,2)}")
    for r in range(0, 12, 2): A(f"v_pk_add_f32 {v(V_ACC+r,2)}, {v(V_ACC+r,2)}, {v(V_ACC+24+r,2)}")
    for i in range(3): A(f"buffer_store_dwordx4 {v(V_ACC+4*i,4)}, v{V_RR}, {WS}, s{S_PB} offen offset:{i*1024} sc1")
    A(f"s_lshl_b32 s{S_PEND}, s{S_CT}, 8"); A(f"s_lshl_b32 s{S_T0}, s{S_WV}, 6"); A(f"s_add_u32 s{S_PEND}, s{S_PEND}, s{S_T0}")
    A(f"s_lshl_b32 s{S_T0}, s{S_KQ}, 2"); A(f"s_add_u32 s{S_PEND}, s{S_PEND}, s{S_T0}")
    A(f"s_add_u32 s{S_PEND}, s{S_PEND}, {WS_CNT}")
    ost(4); odump()
    A(f"s_cmp_lt_u32 s{S_SEG}, 64")
    A.flush_hazards()
    A(f"s_cbranch_scc1 {L_loop}")
    wstamp(A, 6, V_T + 7)
    A("s_waitcnt vmcnt(0)")
    wstamp(A, 7, V_T + 7)
    signal()
    A("s_waitcnt vmcnt(0)")

def op_final(A, L_exit, stride, cfg=None):
    cfg = cfg or {}
    WS = s(S_WS, 4); T = V_T
    A(f"v_lshlrev_b32 v{V_L16}, 4, v0")
    A(f"s_mul_i32 s{S_T0}, s{S_WV}, 3072"); A(f"v_add_u32 v{V_RR}, s{S_T0}, v{V_L16}")
    A(f"v_lshrrev_b32 v{T}, 5, v0")
    A(f"v_and_b32 v{T+2}, 31, v0"); A(f"v_mul_u32_u24 v{V_OUT}, 1152, v{T+2}"); A(f"v_lshl_add_u32 v{V_OUT}, v{T}, 3, v{V_OUT}")
    L_loop = A.newlabel("f_loop"); Lp = A.newlabel("f_p"); Lok = A.newlabel("f_ok")
    A.label(L_loop)
    A(f"s_mul_i32 s{S_CT}, s{S_SEG}, 6"); A(f"s_add_u32 s{S_CT}, s{S_CT}, s{S_NJ}")
    A(f"s_lshl_b32 s{S_OC}, s{S_CT}, 8"); A(f"s_lshl_b32 s{S_T0}, s{S_WV}, 6"); A(f"s_add_u32 s{S_OC}, s{S_OC}, s{S_T0}")
    A(f"s_add_u32 s{S_OC}, s{S_OC}, {WS_CNT}")
    A(f"s_mul_i32 s{S_PB}, s{S_CT}, {4*12288}"); A(f"s_add_u32 s{S_PB}, s{S_PB}, {WS_OP}")
    A(f"s_mul_i32 s{S_T2}, s{S_SEG}, 36864"); A(f"s_mul_i32 s{S_T1}, s{S_NJ}, 192"); A(f"s_add_u32 s{S_T2}, s{S_T2}, s{S_T1}")
    A(f"s_mul_i32 s{S_T1}, s{S_WV}, 48"); A(f"s_add_u32 s{S_T2}, s{S_T2}, s{S_T1}")
    def ploads():
        A(f"s_mov_b32 s{S_T0}, s{S_PB}")
        for src in range(4):
            for i in range(3): A(f"buffer_load_dwordx4 {v(V_F+12*src+4*i,4)}, v{V_RR}, {WS}, s{S_T0} offen offset:{i*1024} sc1")
            A(f"s_add_u32 s{S_T0}, s{S_T0}, 12288")
    def psum():
        for r in range(12): A(f"v_add_f32 v{V_F+r}, v{V_F+r}, v{V_F+12+r}")
        for r in range(12): A(f"v_add_f32 v{V_F+24+r}, v{V_F+24+r}, v{V_F+36+r}")
        for r in range(12): A(f"v_add_f32 v{V_F+r}, v{V_F+r}, v{V_F+24+r}")
    Lnp = A.newlabel("f_np"); Lst = A.newlabel("f_st")
    A.label(Lp)
    A(f"s_buffer_load_dwordx4 s[68:71], {WS}, s{S_OC} glc")
    A("s_waitcnt lgkmcnt(0)")
    A(f"s_and_b64 s[68:69], s[68:69], s[70:71]")
    A(f"s_and_b32 s68, s68, s69")
    A(f"s_cbranch_scc1 {Lok}")
    A(f"s_sleep {cfg.get('psl', 2)}")
    A(f"s_sub_u32 s{S_BUD}, s{S_BUD}, 1")
    A(f"s_cmp_lg_u32 s{S_BUD}, 0")
    A(f"s_cbranch_scc1 {Lp}")
    A(f"s_branch {L_exit}")
    A.label(Lok)
    wstamp(A, 8, T + 2)
    ploads()
    A("s_waitcnt vmcnt(0)")
    psum()
    A.label(Lst)
    wstamp(A, 9, T + 2)
    for j in range(6): A(f"v_cvt_pk_bf16_f32 v{V_F+12+j}, v{V_F+2*j}, v{V_F+2*j+1}")
    for i in range(3): A(f"buffer_store_dwordx2 {v(V_F+12+2*i,2)}, v{V_OUT}, {s(S_OUT,4)}, s{S_T2} offen offset:{i*16}")
    A(f"s_add_u32 s{S_SEG}, s{S_SEG}, {stride}")
    A(f"s_cmp_lt_u32 s{S_SEG}, 64")
    A.flush_hazards()
    A(f"s_cbranch_scc1 {L_loop}")
    A("s_waitcnt vmcnt(0)")
```

```python
from common import *

S_VER = 48
S_B = 49; S_H = 50; S_WV = 51
S_T0 = 52; S_T1 = 53; S_T2 = 54; S_T3 = 55
S_STEP = 56; S_BUD = 57
S_KV = 58
S_XM = 59
S_VM = 60
S_PQ = 61
S_P1 = 62
S_RED = 63
S_RED1 = 46
S_MEMW = 66
S_MEMW1 = 47
S_RZ = 64; S_RZ2 = 98
S_MEMG = 65
S_MSL = 67
S_GRAY = 68
S_W256 = 69
S_M0G = 70
S_TMW = 99
S_PAR = 36
S_EXW = 38
S_LG = 35
S_EL = 32
S_EJ = 33
S_FX = 43; S_FW = 40; S_FR = 42; S_F8 = 72
S_CKM = 34
S_MK = 76
S_EXA = 4
S_EXR = 6
S_SC = 100; S_BH = 101
S_ONE = 74

L_TM = 0; L_S = 1024; L_O = 5120; L_MEM = 7168; L_W = 16384; WREG = 36864

V_IDX = 0; V_P1 = 1; V_L16 = 2; V_TW = 3; V_ID = 4; V_SW = 6; V_OW = 7; V_PS = 8
V_WARM = 9
V_TMP = 10
V_AR = 12
V_QK = 24
V_VA = 40
V_KX = 48
V_VX = 56
V_STG = 64
TILE0 = 80

LDS_UNITS = [("q", 0), ("k", 2), ("q", 4), ("k", 6), ("q", 8), ("o", 8), ("o", 0), ("o", 5), ("o", 7)]
ALL_UNITS = [(m, t) for m in "qkvo" for t in range(9)]
REG_UNITS = [u for u in ALL_UNITS if u not in LDS_UNITS]
assert len(REG_UNITS) == 27
REG_OF = {u: TILE0 + 16 * i for i, u in enumerate(REG_UNITS)}
LSLOT = {u: i for i, u in enumerate(LDS_UNITS)}

def bits(A, dst, L, terms, tmp, first=True):
    for pos, n, sh in terms:
        A(f"v_bfe_u32 v{tmp}, v{L}, {pos}, {n}")
        if first:
            A(f"v_lshlrev_b32 v{dst}, {sh}, v{tmp}"); first = False
        else:
            A(f"v_lshl_add_u32 v{dst}, v{tmp}, {sh}, v{dst}")

def sbits(A, dst, src, terms, tmp, base=None):
    first = base is None
    if base is not None: A(f"s_mov_b32 s{dst}, {base}")
    for pos, n, sh in terms:
        A(f"s_bfe_u32 s{tmp}, s{src}, {hex((n << 16) | pos)}")
        A(f"s_lshl_b32 s{tmp}, s{tmp}, {sh}")
        if first: A(f"s_mov_b32 s{dst}, s{tmp}"); first = False
        else: A(f"s_add_u32 s{dst}, s{dst}, s{tmp}")

def rec_setup(A):
    A("v_lshrrev_b32 v1, 6, v0")
    A(f"v_readfirstlane_b32 s{S_WV}, v1")
    A("v_and_b32 v11, 63, v0")
    build_branch_srds(A, S_B)
    L = 11; T = 12
    A(f"s_lshl_b32 s{S_BH}, s{S_B}, 5")
    A(f"s_add_u32 s{S_BH}, s{S_BH}, s{S_H}")
    A(f"s_mov_b32 s{S_EXA}, 0x33333333"); A(f"s_mov_b32 s{S_EXA+1}, 0x33333333")
    A(f"s_mov_b32 s{S_EXR}, 0xf0f0f0f0"); A(f"s_mov_b32 s{S_EXR+1}, 0xf0f0f0f0")
    for d, m in enumerate((0x00110011, 0x00220022, 0x11001100, 0x22002200)):
        A(f"s_mov_b32 s{S_MK+2*d}, {hex(m)}"); A(f"s_mov_b32 s{S_MK+2*d+1}, {hex(m)}")
    A(f"s_mov_b32 s{S_SC}, 0x3e0293ee")
    A(f"s_mov_b32 s{S_BUD}, 0x100000")
    A(f"s_mov_b32 s{S_ONE}, 0x3f803f80"); A(f"s_mov_b32 s{S_ONE+1}, 0x3f803f80")
    A(f"s_lshl_b32 s{S_W256}, s{S_WV}, 8")
    A(f"v_lshlrev_b32 v{V_L16}, 4, v{L}")
    A(f"v_bfe_u32 v{T}, v{L}, 1, 1")
    A(f"v_mul_u32_u24 v{V_IDX}, 0xaaaa, v{T}")
    A(f"v_add_u32 v{V_IDX}, 0x4444, v{V_IDX}")
    A(f"s_mul_i32 s{S_T1}, s{S_WV}, {WREG}"); A(f"s_add_u32 s{S_T1}, s{S_T1}, {L_W}")
    A(f"v_add_u32 v{V_TW}, s{S_T1}, v{V_L16}")
    A(f"v_and_b32 v{T}, 1, v{L}"); A(f"v_lshlrev_b32 v{T}, 4, v{T}")
    A(f"v_mov_b32 v{T+1}, 0x3f80"); A(f"v_lshlrev_b32 v{T}, v{T}, v{T+1}")
    A(f"v_bfe_u32 v{T+1}, v{L}, 1, 3"); A(f"v_lshrrev_b32 v{T+2}, 4, v{L}"); A(f"v_lshlrev_b32 v{T+2}, 1, v{T+2}")
    A(f"v_sub_u32 v{T+1}, v{T+1}, v{T+2}")
    for d in range(2):
        A(f"v_cmp_eq_u32 vcc, {d}, v{T+1}")
        A(f"v_cndmask_b32 v{V_ID+d}, 0, v{T}, vcc")
    A(f"s_lshl_b32 s{S_T2}, s{S_WV}, 10"); A(f"v_add_u32 v{V_SW}, s{S_T2}, v{V_L16}")
    sbits(A, S_T2, S_WV, [(1, 1, 10), (0, 1, 5)], S_T3); A(f"v_add_u32 v{V_OW}, s{S_T2}, v{V_L16}")
    sbits(A, S_TMW, S_WV, [(1, 1, 5), (0, 1, 3)], S_T3)
    bits(A, V_PS, L, [(3, 3, 11), (0, 3, 3)], T)
    bits(A, V_P1, L, [(4, 2, 11), (0, 4, 2)], T)

def rec_bases(A):
    A(f"s_lshl_b32 s{S_KV}, s{S_BH}, 20")
    A(f"s_lshl_b32 s{S_T0}, s{S_WV}, 11")
    A(f"s_add_u32 s{S_KV}, s{S_KV}, s{S_T0}")
    A(f"s_lshl_b32 s{S_T1}, s{S_BH}, 19")
    A(f"s_add_u32 s{S_T1}, s{S_T1}, {WS_KVM}")
    A(f"s_lshl_b32 s{S_T0}, s{S_WV}, 9")
    A(f"s_add_u32 s{S_XM}, s{S_T1}, s{S_T0}")
    A(f"s_add_u32 s{S_VM}, s{S_T1}, 4096")
    A(f"s_add_u32 s{S_VM}, s{S_VM}, s{S_T0}")
    A(f"s_lshl_b32 s{S_T0}, s{S_B}, 20"); A(f"s_add_u32 s{S_T0}, s{S_T0}, {WS_PART}")
    A(f"s_lshl_b32 s{S_T1}, s{S_H}, 6"); A(f"s_add_u32 s{S_T1}, s{S_T1}, s{S_T0}")
    A(f"s_lshl_b32 s{S_T2}, s{S_WV}, 14"); A(f"s_add_u32 s{S_PQ}, s{S_T1}, s{S_T2}")
    A(f"s_lshl_b32 s{S_T2}, s{S_WV}, 13"); A(f"s_add_u32 s{S_P1}, s{S_T1}, s{S_T2}"); A(f"s_add_u32 s{S_P1}, s{S_P1}, {128*2048}")
    A(f"s_lshl_b32 s{S_T1}, s{S_H}, 11"); A(f"s_add_u32 s{S_T1}, s{S_T1}, s{S_T0}")
    A(f"s_lshl_b32 s{S_T2}, s{S_WV}, 16"); A(f"s_add_u32 s{S_RED}, s{S_T1}, s{S_T2}")
    A(f"s_add_u32 s{S_RED1}, s{S_T1}, {128*2048}")
    A(f"s_cmp_lt_u32 s{S_H}, 16"); A(f"s_cselect_b32 s{S_EJ}, 1, 0")
    A(f"s_cmp_eq_u32 s{S_WV}, 3"); A(f"s_cselect_b32 s{S_EJ}, s{S_EJ}, 0"); A(f"s_cselect_b32 s{S_EL}, s{S_RED1}, s{S_RED}")
    A(f"s_cmp_eq_u32 s{S_WV}, 0"); A(f"s_cselect_b32 s{S_EJ}, 1, s{S_EJ}"); A(f"s_cselect_b32 s{S_FX}, 3072, 0")
    A(f"s_lshl_b32 s{S_T0}, s{S_B}, 16"); A(f"s_add_u32 s{S_T0}, s{S_T0}, {WS_MEMI}")
    A(f"s_lshl_b32 s{S_T2}, s{S_WV}, 11"); A(f"s_add_u32 s{S_T3}, s{S_T2}, 1024")
    A(f"s_cmp_eq_u32 s{S_WV}, 0"); A(f"s_cselect_b32 s{S_T1}, 0, s{S_T3}")
    A(f"s_cselect_b32 s{S_CKM}, {47*16}, {31*16 if False else 's' + str(S_T1)}") if False else None
    A(f"s_add_u32 s{S_MEMG}, s{S_T0}, s{S_T1}")
    A(f"s_add_u32 s{S_M0G}, s{S_T1}, {L_MEM}")
    A(f"s_mov_b32 s{S_CKM}, {31*16}"); A(f"s_cmp_eq_u32 s{S_WV}, 0"); A(f"s_cselect_b32 s{S_CKM}, {47*16}, s{S_CKM}")
    sbits(A, S_MEMW, S_H, [(4, 1, 10), (3, 1, 9), (0, 1, 8), (1, 2, 6)], S_T1)
    A(f"s_add_u32 s{S_MEMW}, s{S_MEMW}, s{S_T3}"); A(f"s_add_u32 s{S_MEMW}, s{S_MEMW}, s{S_T0}")
    A(f"s_lshl_b32 s{S_MEMW1}, s{S_H}, 6"); A(f"s_add_u32 s{S_MEMW1}, s{S_MEMW1}, s{S_T0}")
    A(f"s_lshl_b32 s{S_T2}, s{S_H}, 2"); A(f"s_add_u32 s{S_FW}, s{S_T0}, s{S_T2}"); A(f"s_add_u32 s{S_FW}, s{S_FW}, 12288")
    A(f"s_and_b32 s{S_T2}, s{S_H}, 7"); A(f"s_lshl_b32 s{S_T2}, s{S_T2}, 7"); A(f"s_add_u32 s{S_FR}, s{S_T0}, s{S_T2}")
    A(f"s_add_u32 s{S_FR}, s{S_FR}, 12288")
    A(f"s_lshl_b32 s{S_T2}, s{S_WV}, 10"); A(f"s_add_u32 s{S_FR}, s{S_FR}, s{S_T2}"); A(f"s_add_u32 s{S_FW}, s{S_FW}, s{S_T2}")
    A(f"s_mov_b32 s{S_F8}, 0x01010101"); A(f"s_mov_b32 s{S_F8+1}, 0x01010101")
    A(f"s_mov_b32 s{S_MSL}, 0x4000")
    A(f"s_mov_b32 s{S_PAR}, 0")
    A(f"s_mov_b32 s{S_EXW}, 0xcccccccc"); A(f"s_mov_b32 s{S_EXW+1}, 0xcccccccc")
    A(f"s_mov_b32 s{S_GRAY}, 0x8000")
    A(f"s_mov_b32 s{S_STEP}, 0")
    A(f"s_mov_b32 s{S_VER}, 1")
    A(f"s_mov_b32 s{S_LG}, 0")

def advance_ops():
    return [f"s_add_u32 s{S_STEP}, s{S_STEP}, 1",
            f"s_add_u32 s{S_KV}, s{S_KV}, 16384",
            f"s_add_u32 s{S_XM}, s{S_XM}, 8192",
            f"s_add_u32 s{S_VM}, s{S_VM}, 8192",
            f"s_xor_b32 s{S_PAR}, s{S_PAR}, 1",
            f"s_xor_b32 s{S_MSL}, s{S_MSL}, s{S_GRAY}",
            f"s_xor_b32 s{S_GRAY}, s{S_GRAY}, 0xc000",
            f"s_mov_b32 s{S_VER}, 0",
            f"s_lshr_b32 s{S_LG}, s{S_WV}, 1"]

def load_weights(A, nt=" nt", hook=None):
    L = 11; T = 12
    P = dict(q1=48, q0=50, o=52, s=54)
    TQ = 56; TV = 57; TS = 59; TA = 16
    for par in range(2):
        A(f"v_lshrrev_b32 v{T}, 4, v{L}"); A(f"v_lshlrev_b32 v{T}, 1, v{T}"); A(f"v_xor_b32 v{T}, {8*par}, v{T}")
        A(f"v_and_b32 v{T+1}, 15, v{L}"); A(f"v_xor_b32 v{T+1}, v{T}, v{T+1}")
        bits(A, P["q1"] + par, L, [(4, 1, 17), (5, 1, 13)], T)
        bits(A, P["q0"] + par, L, [(4, 2, 13)], T)
        bits(A, P["o"] + par, L, [(4, 1, 0), (5, 1, 5)], T)
        A(f"v_mul_u32_u24 v{P['o']+par}, 1152, v{P['o']+par}")
        A(f"v_lshrrev_b32 v{T}, 3, v{T+1}"); A(f"v_mul_u32_u24 v{P['s']+par}, {64*1152 - 128}, v{T}")
        A(f"v_add_u32 v{P['s']+par}, v{P['s']+par}, v{P['o']+par}")
        for k in P: A(f"v_lshl_add_u32 v{P[k]+par}, v{T+1}, 4, v{P[k]+par}")
    SQ1 = 84; SQ0 = 85; SO = 86; SL = 87
    A(f"s_lshl_b32 s{S_T0}, s{S_H}, 8")
    sbits(A, SQ1, S_WV, [(1, 1, 18), (0, 1, 14)], S_T1); A(f"s_add_u32 s{SQ1}, s{SQ1}, s{S_T0}")
    sbits(A, SQ0, S_WV, [(1, 1, 18), (0, 1, 15)], S_T1); A(f"s_add_u32 s{SQ0}, s{SQ0}, s{S_T0}")
    sbits(A, SO, S_WV, [(1, 1, 3), (0, 1, 1)], S_T1); A(f"s_mul_i32 s{SO}, s{SO}, 1152")
    A(f"s_mul_i32 s{S_T0}, s{S_H}, 147456"); A(f"s_add_u32 s{SO}, s{SO}, s{S_T0}")
    A(f"s_mul_i32 s{SL}, s{S_WV}, {WREG}"); A(f"s_add_u32 s{SL}, s{SL}, {L_W}")
    A(f"v_bfe_u32 v{T}, v{L}, 2, 3"); A(f"v_lshlrev_b32 v{T}, 1, v{T}")
    bits(A, T + 1, L, [(2, 4, 8), (0, 1, 3)], T + 2)
    A(f"v_bfe_u32 v{T+2}, v{L}, 1, 1")
    A(f"s_lshl_b32 s{S_T0}, s{S_WV}, 2"); A(f"s_lshl_b32 s{S_T1}, s{S_WV}, 1")
    def rbase(dst, sreg, add, sh):
        A(f"v_lshlrev_b32 v{T+3}, {sh}, v{T+2}"); A(f"v_add_u32 v{T+3}, s{sreg}, v{T+3}"); A(f"v_add_u32 v{T+3}, {add}, v{T+3}")
        A(f"v_xor_b32 v{T+3}, v{T+3}, v{T}"); A(f"v_lshl_add_u32 v{dst}, v{T+3}, 4, v{T+1}")
    rbase(TQ, S_T0, 0, 1)
    for tau in range(2): rbase(TV + tau, S_T0, 2 * tau, 0); rbase(TS + tau, S_T1, 8 * tau, 0)
    srds = dict(q=S_W1, k=S_W2, v=S_W3, o=S_W4)
    def dma_unit(u, slot):
        m, t = u
        for gb in range(4):
            A(f"s_add_u32 m0, s{SL}, {slot*4096 + gb*1024}")
            if m != "o" and t >= 1:
                A(f"s_add_u32 s{S_T2}, s{SQ1}, {(64*(t-1) + 8*(gb>>1) + 4*(gb&1))*8192}"); vo = P["q1"]
            elif m != "o":
                A(f"s_add_u32 s{S_T2}, s{SQ0}, {(512 + 8*gb)*8192}"); vo = P["q0"]
            elif t < 8:
                A(f"s_add_u32 s{S_T2}, s{SO}, {(64*(t&1) + 4*(gb>>1) + 16*(gb&1))*1152 + (t>>1)*256}"); vo = P["o"]
            else:
                A(f"s_add_u32 s{S_T2}, s{SO}, {(4*(gb>>1) + 16*(gb&1))*1152 + 1024}"); vo = P["s"]
            A(f"buffer_load_dwordx4 v{vo + (gb&1)}, {s(srds[m],4)}, s{S_T2} offen{' nt' if m in nt else ''} lds")
    order = REG_UNITS + LDS_UNITS
    for i in range(9): dma_unit(order[i], i)
    issued = 9
    STG = [V_STG, 24]
    for i in range(37):
        if i < 36: A(f"s_waitcnt vmcnt({4*(issued - i - 1)})")
        if i == 0: finish_mem0(A)
        A("s_waitcnt lgkmcnt(0)")
        A("s_barrier")
        if hook is not None: hook(i)
        if i >= 1:
            if i - 1 < 27: dma_unit(order[i + 8], (i - 1) % 9); issued += 1
            else:
                for q in range(4): A(f"ds_write_b128 v{V_TW}, {v(STG[(i-1)&1]+4*q,4)} offset:{((i-1)%9)*4096 + q*1024}")
        if i == 36: break
        u = order[i]
        d = REG_OF[u] if i < 27 else STG[i & 1]
        for tau in range(2):
            for rr in range(4):
                base = TQ if u[0] in "qk" else (TS if u == ("o", 8) else TV) + tau
                if tau == 0 or u[0] not in "qk": A(f"v_add_u32 v{TA+rr}, {L_W + rr*WREG}, v{base}")
            for rr in range(4):
                A(f"ds_read_b64_tr_b16 {R(d+8*tau+2*rr,2)}, v{TA+rr} offset:{(i%9)*4096 + (16*tau if u[0] in 'qk' else 0)}")
    A("s_waitcnt lgkmcnt(0)")

def build_mem0(A):
    L = 11; T = 20
    bits(A, T, L, [(4, 2, 1), (2, 1, 0)], T + 1)
    A(f"v_mul_u32_u24 v{T}, 1152, v{T}")
    A(f"v_mov_b32 v{T+2}, v{T}")
    bits(A, T, L, [(0, 2, 2), (3, 1, 1)], T + 1, first=False)
    bits(A, T + 2, L, [(0, 2, 3), (3, 1, 2)], T + 1, first=False)
    sbits(A, S_T0, S_WV, [(1, 1, 6), (0, 1, 4)], S_T2)
    A(f"s_lshl_b32 s{S_T1}, s{S_WV}, 5")
    A(f"buffer_load_ushort v24, v{T+2}, {s(S_M0,4)}, s{S_T1} offen offset:1024")
    A(f"buffer_load_ushort v25, v{T+2}, {s(S_M0,4)}, s{S_T1} offen offset:1026")
    for t in range(8):
        A(f"buffer_load_ushort v{26+2*t}, v{T}, {s(S_M0,4)}, s{S_T0} offen offset:{128*t}")
        A(f"buffer_load_ushort v{27+2*t}, v{T}, {s(S_M0,4)}, s{S_T0} offen offset:{128*t+32}")
    A(f"v_lshlrev_b32 v{T+1}, 2, v{L}"); A(f"v_add_u32 v{T+1}, s{S_W256}, v{T+1}")

def finish_mem0(A):
    T = 20
    for t in range(9):
        A(f"v_lshl_or_b32 v{24+2*t}, v{25+2*t}, 16, v{24+2*t}")
        A(f"v_min_u32 v{24+2*t}, -2, v{24+2*t}")
        A(f"ds_write_b32 v{T+1}, v{24+2*t} offset:{L_MEM + 1024*t}")

def init_slots(A, st):
    Ls = A.newlabel("r_noinit")
    for i in range(4): A(f"v_mov_b32 v{V_STG+i}, -1")
    def part(sr, sm):
        for i in range(2):
            A(f"buffer_store_dwordx4 {v(V_STG,4)}, v{V_L16}, {s(S_WS,4)}, s{sr} offen offset:{i*1024}{st}")
        A(f"s_mov_b64 exec, 0xf")
        for m in (0, 0x4000, 0x8000, 0xc000):
            A(f"s_add_u32 s{S_T0}, s{sm}, {hex(m)}")
            A(f"buffer_store_dwordx4 {v(V_STG,4)}, v{V_L16}, {s(S_WS,4)}, s{S_T0} offen{st}")
        A(f"s_mov_b64 exec, -1")
    part(S_RED, S_MEMW)
    A(f"s_mov_b64 exec, 0xff")
    A(f"buffer_store_dwordx4 {v(V_STG,4)}, v{V_L16}, {s(S_WS,4)}, s{S_FR} offen{st}")
    A(f"s_mov_b64 exec, -1")
    A(f"s_lshl_b32 s{S_T1}, s{S_WV}, 5"); A(f"s_add_u32 s{S_T1}, s{S_T1}, s{S_H}")
    A(f"s_cmp_ge_u32 s{S_T1}, 16")
    A(f"s_cbranch_scc1 {Ls}")
    part(S_RED1, S_MEMW1)
    A.label(Ls)
    A.flush_hazards()

class Fill:
    def __init__(self): self.s = []; self.m = []; self.v = []
    def pull(self, ns=1, nm=1, nv=1):
        if nm and not self.m: ns += 1
        for q, n in ((self.s, ns), (self.m, nm), (self.v, nv)):
            for _ in range(n):
                if q: q.pop(0)()
    def drain(self):
        for q in (self.s, self.m, self.v):
            while q: q.pop(0)()

def rec_loop(A, st, L_exit, stamp=None, kv_wait=None, publish=None, cfg=None):
    cfg = cfg or {}
    lg = Trk(A, "lgkmcnt", 15); vm = Trk(A, "vmcnt", 63)
    _st = stamp
    smap = cfg.get("smap", {"0": 0, "1": 1, "2": 2, "3": 3, "4": 4, "5": 5})
    def stamp(name):
        if _st is not None and str(name) in smap: _st(smap[str(name)])
    L_top = A.newlabel("r_top"); L_last = A.newlabel("r_last"); L_redo = A.newlabel("r_redo"); L_go = A.newlabel("r_go")
    L_again = A.newlabel("r_again"); L_back = A.newlabel("r_back")
    SM = "v_smfmac_f32_16x16x64_bf16"; MF = "v_mfma_f32_16x16x32_bf16"; MF16 = "v_mfma_f32_16x16x16_bf16"
    QP = "quad_perm:[2,3,0,1] row_mask:0xf bank_mask:0xf"
    WS = s(S_WS, 4)
    KVL = "sc1 nt" if cfg.get("nt", 0) else "sc1"
    F = Fill()
    op = lambda t: (lambda: A(t))
    pend = {}
    def tile_ops(u, tau, dst):
        sl = LSLOT[u]; tag = f"{u[0]}{u[1]}_{tau}"; pend[tag] = 2
        def one(q):
            pend[tag] -= 1
            lg.issue(f"ds_read_b128 {v(dst+8*tau+4*q,4)}, v{V_TW} offset:{sl*4096 + tau*2048 + q*1024}", tag)
        return [(lambda q=q: one(q)) for q in range(2)]
    def stg_ops(u, dst): return tile_ops(u, 0, dst) + tile_ops(u, 1, dst)
    def stg_load(u, dst):
        for f in stg_ops(u, dst): f()
    def stg_wait(u, tau):
        tag = f"{u[0]}{u[1]}_{tau}"
        assert pend[tag] == 0, (tag, pend)
        lg.wait(tag)
    def zero(first, n):
        for i in range(0, n, 2): A(f"v_mov_b64 {v(first+i,2)}, 0")
    def pre1():
        stg_load(("q", 0), V_STG)
        zero(V_QK, 24)
    def pre2():
        A(f"v_and_b32 v{V_TMP}, 0x300, v{V_L16}")
        A(f"v_add_u32 v{V_VX+4}, v{V_TMP}, v{V_L16}")
        A(f"v_and_b32 v{V_TMP}, 0x80, v{V_L16}")
        A(f"v_add_u32 v{V_KX+4}, v{V_TMP}, v{V_VX+4}")
        A(f"v_min_u32 v{V_TMP}, s{S_CKM}, v{V_L16}")
        A(f"v_bfe_u32 v{V_TMP+1}, v{V_TMP}, 5, 4")
        A(f"v_add_lshl_u32 v{V_TMP}, v{V_TMP}, v{V_TMP+1}, 2")
        A(f"v_add_u32 v{V_TMP+1}, s{S_M0G}, v{V_TMP}")

    if kv_wait is not None: kv_wait(A, True)
    pre1(); pre2()
    A(f"s_lshl_b32 s{S_T0}, s{S_B}, 2"); A(f"s_add_u32 s{S_T0}, s{S_T0}, s{S_WV}"); A(f"s_lshl_b32 s{S_T0}, s{S_T0}, 14")
    A(f"s_add_u32 s{S_T0}, s{S_T0}, {WS_MEMI}"); A(f"s_add_u32 s{S_T1}, s{S_T0}, 8192")
    A(f"v_lshlrev_b32 v{V_AR}, 3, v{V_L16}")
    if cfg.get("touch", 1):
        A(f"buffer_load_dword v{V_AR+1}, v{V_AR}, {WS}, s{S_T0} offen sc1")
        A(f"buffer_load_dword v{V_AR+2}, v{V_AR}, {WS}, s{S_T1} offen sc1")
    if cfg.get("prio"): A(f"s_setprio {cfg['prio']}")
    A.raw(".p2align 6")
    for _ in range(cfg.get("pad", 7)): A("s_nop 0")
    L_bar0 = A.newlabel("r_bar0"); L_bar = A.newlabel("r_bar")
    A.label(L_bar0)
    A("s_waitcnt vmcnt(0)")
    A.label(L_bar)
    lg.force_all()
    stamp("chk")
    A("s_barrier")
    A.label(L_top)
    lg.done = lg.n
    vm.n += 16; vm.done = 0
    stamp(0)
    NE = cfg.get("ne", 6)
    order2 = list(range(NE, 9))
    def a_read(i):
        blk = i if i < 9 else order2[i - 9]
        lg.issue(f"ds_read_b128 {v(V_AR+4*(i%3),4)}, v{V_L16} offset:{L_MEM + 1024*blk}", f"a{i}")
    NA = 9 + len(order2) if NE < 6 else 9
    a_read(0); a_read(1)
    L_ng = A.newlabel("r_ng"); L_again1 = A.newlabel("r_again1"); L_back1 = A.newlabel("r_back1")
    A(f"s_cmp_eq_u32 s{S_LG}, 0")
    A(f"s_cbranch_scc1 {L_ng}")
    A(f"buffer_load_dwordx4 v{V_L16}, {WS}, s{S_MEMG} offen sc1 lds")
    A(f"buffer_load_dwordx4 v{V_L16}, {WS}, s{S_MEMG} offen offset:1024 sc1 lds")
    A.label(L_ng)
    vm.tags["gat1"] = vm.n
    vm.n += 2
    vm.tags["gat"] = vm.n
    lg.wait("a0")
    def tile(u, tau, stg=V_STG):
        return v(stg + 8 * tau, 8) if u in LSLOT else R(REG_OF[u] + 8 * tau, 8)
    nxt = {("q", 0): ("k", 2), ("k", 2): ("q", 4), ("q", 4): ("k", 6), ("k", 6): ("q", 8), ("q", 8): ("o", 8)}
    b1 = cfg.get('b1', 8); ck0 = cfg.get('ck0', 18); gi = [0]; aq = []
    F.s += [op(f"s_add_u32 s{S_T0}, s{S_KV}, 8192"), op(f"s_add_u32 s{S_T2}, s{S_KV}, 16384")]
    F.v += [op(f"v_and_b32 v{V_TMP}, 0x1f0, v{V_L16}"), op(f"v_lshlrev_b32 v{V_TMP}, 2, v{V_TMP}"),
            op(f"v_and_b32 v{V_WARM}, 0x200, v{V_L16}"), op(f"v_lshl_add_u32 v{V_WARM}, v{V_WARM}, 4, v{V_TMP}")]
    for t in range(9):
        af = v(V_AR + 4 * (t % 3), 4)
        ms = ["k", "q"] if (("q", t) in LSLOT and t != 0) else ["q", "k"]
        if t < NE: ms = (ms + ["v"]) if t == 0 else (["v"] + ms)
        seq = [(m, tau) for m in ms for tau in range(2)]
        last = len(seq) - 1
        for n, (m, tau) in enumerate(seq):
            if (m, t) in LSLOT: stg_wait((m, t), tau)
            acc = V_VA + 4 * tau if m == "v" else V_QK + 8 * tau + (0 if m == "q" else 4)
            A(f"{SM} {v(acc,4)}, {af}, {tile((m,t),tau)}, v{V_IDX}")
            if (m, t) in nxt: F.m += tile_ops(nxt[(m, t)], tau, V_STG)
            g = gi[0]; gi[0] += 1
            stamp(f"g{g}")
            if n == 0 and t + 2 < NA: aq.append(t + 2)
            if n == last and t + 1 < NA:
                assert t + 1 not in aq
                lg.wait(f"a{t+1}")
            def can(i): return i < 3 or (i < 5 and g >= b1 + 1) or g >= ck0 + 5
            if g == ck0:
                vm.wait("gat")
                lg.issue(f"ds_read_b32 v{V_TMP}, v{V_TMP+1}", "ck")
            elif g == ck0 + 3:
                lg.wait("ck"); F.pull(0, 1, 0)
                A(f"v_cmp_eq_u32 vcc, -1, v{V_TMP}")
            elif g == ck0 + 5:
                A(f"s_cbranch_vccnz {L_again}")
                A.label(L_back)
                A("s_barrier")
                a_read(aq.pop(0))
                F.s += [op(f"s_xor_b32 s{S_T1}, s{S_GRAY}, 0xc000"), op(f"s_xor_b32 s{S_MEMG}, s{S_MEMG}, s{S_T1}")]
                F.v += [op(f"v_add_u32 v{V_TMP+1}, s{S_TMW}, v{V_L16}")]
                if publish is not None: publish(A, vm, F)
            elif g == b1:
                Lsk = A.newlabel("r_sk")
                A(f"s_cmp_lg_u32 s{S_WV}, 1")
                A(f"s_cbranch_scc1 {Lsk}")
                A(f"s_waitcnt vmcnt({vm.n - vm.tags['gat']})")
                A.label(Lsk)
            elif g == b1 + 1:
                A("s_barrier")
                a_read(aq.pop(0))
            elif aq and can(aq[0]):
                F.pull(0 if n == last else 1, 0, 0); a_read(aq.pop(0)); F.pull(0, 0, 1)
            elif n == last:
                F.pull(0, 1, 1)
            else:
                F.pull()
            vq = {(0, 0): lambda: vm.issue(f"buffer_load_dwordx4 {v(V_KX,4)}, v{V_KX+4}, {WS}, s{S_KV} offen {KVL}"),
                  (0, 4): lambda: vm.issue(f"buffer_load_dwordx4 {v(V_KX+4,4)}, v{V_KX+4}, {WS}, s{S_KV} offen offset:128 {KVL}", "kx"),
                  (1, 2): lambda: vm.issue(f"buffer_load_dwordx4 {v(V_VX,4)}, v{V_VX+4}, {WS}, s{S_T0} offen {KVL}"),
                  (2, 0): lambda: vm.issue(f"buffer_load_dwordx4 {v(V_VX+4,4)}, v{V_VX+4}, {WS}, s{S_T0} offen offset:256 {KVL}", "vx")}
            if (t, n) in vq: F.m.insert(0, vq[(t, n)])
            def warm():
                vm.issue(f"buffer_load_dword v{V_WARM}, v{V_WARM}, {WS}, s{S_T2} offen sc1", "warm")
            if g == cfg.get('wg', 16): F.m += [warm]
            if t == 5 and n == 1 and kv_wait is not None:
                assert not F.v
                F.v += [op(f"v_bfe_u32 v{V_TMP}, v{V_L16}, 2, 4")]
            if t == 5 and n == 2 and kv_wait is not None:
                F.m += [lambda: vm.issue(f"buffer_load_dword v{V_WARM}, v{V_TMP}, {WS}, s{S_RZ2} offen sc1")]
            if t == 6 and n == 0:
                F.v += [op(f"v_lshrrev_b32 v{V_TMP}, 1, v{V_L16}"), op(f"v_bfi_b32 v{V_TMP}, 31, v{V_L16}, v{V_TMP}")]
    assert not F.s and not F.v
    stamp(1)
    vs = {"i": 0}
    def vsm(n=1, nv=1):
        for _ in range(n):
            i = vs["i"]
            if i >= 2 * len(order2): return
            t, tau = i >> 1, i & 1
            if tau == 0 and NA > 9: lg.wait(f"a{9+t}")
            slot = (9 + t) % 3 if NA > 9 else order2[t] % 3
            A(f"{SM} {v(V_VA+4*tau,4)}, {v(V_AR+4*slot,4)}, {tile(('v',order2[t]),tau)}, v{V_IDX}")
            if tau == 0 and 9 + t + 2 < NA:
                a_read(9 + t + 2); F.pull(0, 0, nv)
            else: F.pull(0, 1, nv)
            vs["i"] += 1
    q0 = V_QK; k0 = V_QK + 4; q1 = V_QK + 8; k1 = V_QK + 12
    def fold3(acc, dst):
        return [f"v_add_f32 v{acc}, v{acc}, v{acc+2}", f"v_add_f32 v{acc+1}, v{acc+1}, v{acc+3}",
                f"v_cvt_pk_bf16_f32 v{dst}, v{acc}, v{acc+1}"]
    for o in fold3(k0, k0 + 3) + fold3(k1, k1 + 3) + fold3(q0, k0 + 2): A(o)
    A(f"v_cmp_u_f32 vcc, v{q0}, v{q0+1}")
    for o in fold3(q1, k1 + 2)[:2]: A(o)
    A(f"{MF16} {v(q0,4)}, {v(k0+2,2)}, {v(V_ID,2)}, 0")
    A(fold3(q1, k1 + 2)[2])
    A(f"s_cbranch_vccnz {L_redo}")
    A.label(L_go)
    stamp("x0")
    A(f"{MF16} {v(q1,4)}, {v(k1+2,2)}, {v(V_ID,2)}, 0")
    vsm(1, 0)
    X = k0
    A(f"v_cvt_pk_bf16_f32 v{X}, v{q0}, v{q0+1}")
    A(f"v_cvt_pk_bf16_f32 v{X+1}, v{q0+2}, v{q0+3}")
    vm.wait("kx")
    A(f"v_cvt_pk_bf16_f32 v{X+2}, v{q1}, v{q1+1}")
    A(f"v_cvt_pk_bf16_f32 v{X+3}, v{q1+2}, v{q1+3}")
    S0 = q0; S1 = q1; S2 = k1
    VM0 = V_VA; PUB = V_VA + 6
    def pub_k():
        A(f"s_mov_b64 exec, {s(S_EXW,2)}")
        if not cfg.get("nopub"): vm.issue(f"buffer_store_dwordx4 {v(X,4)}, v{V_TMP}, {WS}, s{S_XM} offen sc1")
        A(f"s_mov_b64 exec, -1")
    def pub_v():
        if not cfg.get("nopub"): vm.issue(f"buffer_store_dwordx2 {v(PUB,2)}, v{V_TMP+1}, {WS}, s{S_VM} offen sc1")
    stamp("x1")
    A(f"{MF} {v(S0,4)}, {v(V_KX,4)}, {v(X,4)}, 0")
    A(f"{MF} {v(S1,4)}, {v(V_KX+4,4)}, {v(X,4)}, 0")
    A(f"{MF} {v(S2,4)}, {v(X,4)}, {v(X,4)}, 0")
    A(f"s_mov_b64 vcc, {s(S_EXA,2)}")
    if cfg.get("ek", 1): pub_k()
    else: vsm(1, 0)
    for r in range(4):
        A(f"v_cndmask_b32_dpp v{S0+r}, v{S1+r}, v{S0+r}, vcc quad_perm:[0,1,0,1] row_mask:0xf bank_mask:0xf")
    lg.issue(f"ds_write_b128 v{V_SW}, {v(S0,4)} offset:{L_S}")
    A(f"s_mov_b64 exec, {s(S_EXA,2)}")
    lg.issue(f"ds_write_b64 v{V_TMP+1}, {v(S2+2,2)} offset:{L_TM}", "sw")
    A(f"s_mov_b64 exec, -1")
    stamp("x2")
    vsm(cfg.get("v1", 8))
    if cfg.get("ev", 0):
        A(f"v_lshrrev_b32 v{V_TMP}, 1, v{V_L16}")
        for o in fold3(V_VA + 4, PUB + 1) + fold3(V_VA, PUB): A(o)
        vm.issue(f"buffer_store_dwordx2 {v(PUB,2)}, v{V_TMP}, {WS}, s{S_VM} offen sc1")
    lg.wait("sw")
    stamp("x3")
    A("s_barrier")
    stamp(2)
    RB = [q0, q1, k1, V_KX + 4]; RM = V_KX
    assert vs["i"] == 2 * len(order2)
    vf = [f"v_lshrrev_b32 v{V_TMP+1}, 1, v{V_L16}"] + fold3(V_VA + 4, PUB + 1) + fold3(V_VA, PUB)
    il = cfg.get("il", 0)
    for w in range(4):
        lg.issue(f"ds_read_b128 {v(RB[w],4)}, v{V_L16} offset:{L_S + w*1024}", f"s{w}")
        if il: A(vf.pop(0))
    lg.issue(f"ds_read_b128 {v(RM,4)}, v{V_L16} offset:{L_TM}", "sm")
    for o in vf: A(o)
    pub_v()
    A(f"s_cmp_eq_u32 s{S_STEP}, 63")
    A(f"s_cbranch_scc1 {L_last}")
    F.drain()
    lg.wait("s1")
    PKA = lambda a, b: A(f"v_pk_add_f32 {v(a,2)}, {v(a,2)}, {v(b,2)}")
    PKA(RB[0], RB[1]); PKA(RB[0] + 2, RB[1] + 2)
    lg.wait("s3")
    PKA(RB[2], RB[3]); PKA(RB[2] + 2, RB[3] + 2)
    lg.wait("sm")
    PKA(RM, RM + 2)
    PKA(RB[0], RB[2]); PKA(RB[0] + 2, RB[2] + 2)
    for r in range(2): A(f"v_add_f32_dpp v{RM+2+r}, v{RM+r}, v{RM+r} {QP}")
    Sv = [q0, q0 + 1, q0 + 2, q0 + 3, RM + 2, RM + 3]
    M = k0; M2 = k0 + 1
    PX = q1; PM = k1; ONE = V_KX + 4
    A(f"v_max3_f32 v{M}, v{Sv[0]}, v{Sv[1]}, v{Sv[2]}")
    A(f"v_max3_f32 v{M2}, v{Sv[3]}, v{Sv[4]}, v{Sv[5]}")
    A(f"v_max_f32 v{M}, v{M}, v{M2}")
    A(f"v_mov_b64 {v(ONE,2)}, {s(S_ONE,2)}")
    A(f"v_mov_b64 {v(ONE+2,2)}, {s(S_ONE,2)}")
    A(f"v_max_f32_dpp v{M2}, v{M}, v{M} {QP}")
    A(f"v_mov_b32 v{M}, v{M2}")
    A(f"v_mov_b32 v{PM+1}, 0")
    A(f"v_mov_b32 v{VM0}, v{PUB+1}")
    A(f"v_permlane16_swap_b32 v{M}, v{M2}")
    A(f"v_max_f32 v{M}, v{M}, v{M2}")
    A(f"v_mov_b32 v{M2}, v{M}")
    A(f"v_mov_b32 v{VM0+1}, v{PUB+1}")
    stamp("y0")
    A(f"v_permlane32_swap_b32 v{M}, v{M2}")
    A(f"v_max_f32 v{M}, v{M}, v{M2}")
    A(f"v_mul_f32 v{M}, s{S_SC}, v{M}")
    for x in Sv: A(f"v_fma_f32 v{x}, v{x}, s{S_SC}, -v{M}")
    for x in Sv[4:] + Sv[:4]: A(f"v_exp_f32 v{x}, v{x}")
    A(f"v_cvt_pk_bf16_f32 v{PM}, v{Sv[4]}, v{Sv[5]}")
    A(f"v_cvt_pk_bf16_f32 v{PX}, v{Sv[0]}, v{Sv[1]}")
    A(f"v_cvt_pk_bf16_f32 v{PX+1}, v{Sv[2]}, v{Sv[3]}")
    O0 = V_AR; O1 = V_AR + 4; LS = q0
    stamp("y1")
    A(f"{MF16} {v(LS,4)}, {v(ONE,2)}, {v(PM,2)}, 0")
    A(f"v_mov_b32_dpp v{PX+2}, v{PX} {QP}")
    A(f"v_mov_b32_dpp v{PX+3}, v{PX+1} {QP}")
    A(f"{MF16} {v(O0,4)}, {v(PUB,2)}, {v(PM,2)}, 0")
    vm.wait("vx")
    A(f"{MF} {v(LS,4)}, {v(ONE,4)}, {v(PX,4)}, {v(LS,4)}")
    A(f"{MF16} {v(O1,4)}, {v(VM0,2)}, {v(PM,2)}, 0")
    A(f"{MF} {v(O0,4)}, {v(V_VX,4)}, {v(PX,4)}, {v(O0,4)}")
    A(f"v_rcp_f32 v{LS}, v{LS}")
    A(f"{MF} {v(O1,4)}, {v(V_VX+4,4)}, {v(PX,4)}, {v(O1,4)}")
    zero(V_VA, 8)
    A(f"v_mov_b64 {v(k0,2)}, 0"); A(f"v_mov_b64 {v(k0+2,2)}, 0")
    stamp("y2")
    if cfg.get("pk", 1):
        for i in range(0, 8, 2): A(f"v_pk_mul_f32 {v(O0+i,2)}, {v(O0+i,2)}, {v(LS,2)} op_sel_hi:[1,0]")
        for i in range(4): A(f"v_cvt_pk_bf16_f32 v{O0+i}, v{O0+2*i}, v{O0+2*i+1}")
    else:
        for i in range(4): A(f"v_mul_f32 v{O0+i}, v{O0+i}, v{LS}")
        for i in range(2): A(f"v_cvt_pk_bf16_f32 v{O0+i}, v{O0+2*i}, v{O0+2*i+1}")
        for i in range(4, 8): A(f"v_mul_f32 v{O0+i}, v{O0+i}, v{LS}")
        for i in range(2, 4): A(f"v_cvt_pk_bf16_f32 v{O0+i}, v{O0+2*i}, v{O0+2*i+1}")
    A(f"s_mov_b64 exec, {s(S_EXA,2)}")
    lg.issue(f"ds_write_b128 v{V_OW}, {v(O0,4)} offset:{L_O}", "ow")
    A(f"s_mov_b64 exec, -1")
    STG2 = V_KX
    W = V_QK
    stamp("y3")
    stg_load(("o", 0), STG2)
    lg.wait("ow")
    A("s_barrier")
    stamp(3)
    OA = V_AR + 4
    lg.issue(f"ds_read_b128 {v(OA,4)}, v{V_L16} offset:{L_O}", "oa0")
    lg.issue(f"ds_read_b128 {v(OA+4,4)}, v{V_L16} offset:{L_O+1024}", "oa1")
    zero(W, 4); zero(W + 8, 8)
    where = {("o", 8): V_STG, ("o", 0): STG2, ("o", 5): STG2, ("o", 7): V_STG}
    PK = V_AR
    def fold_ops(n):
        acc = W + 4 * (n % 6)
        dst = V_TMP if n == 0 else PK + 2 * (((n - 1) >> 1) & 1) + ((n - 1) & 1)
        r = [op(o) for o in fold3(acc, dst)]
        if n == 0 or n & 1: r.append(op(f"v_and_or_b32 v{dst}, v{dst}, -2, s{S_PAR}"))
        return r
    def zero_ops(n):
        acc = W + 4 * (n % 6)
        return [op(f"v_mov_b64 {v(acc,2)}, 0"), op(f"v_mov_b64 {v(acc+2,2)}, 0")]
    def wsm(n, u, tau, kh, nv=2):
        if u in LSLOT: stg_wait(u, tau)
        lg.wait(f"oa{kh}")
        b = v(where[u] + 8 * tau, 8) if u in LSLOT else R(REG_OF[u] + 8 * tau, 8)
        A(f"{SM} {v(W+4*(n%6),4)}, {v(OA+4*kh,4)}, {b}, v{V_IDX}")
        F.pull(1, 1, nv)
    PR = [S_PQ, S_T0, S_T1, S_T2]
    pstore = lambda p: (lambda: vm.issue(f"buffer_store_dwordx2 {v(PK+2*(p&1),2)}, v{V_PS}, {WS}, s{PR[p]} offen{st}"))
    F.s += [op(f"s_add_u32 s{PR[p]}, s{S_PQ}, {p*65536}") for p in (1, 2, 3)]
    seq = [(0, ("o", 8), 0, 0), (0, ("o", 8), 1, 1)]
    for p in range(4):
        for tau in range(2): seq += [(1 + 2*p + tau, ("o", 2*p), tau, 0), (1 + 2*p + tau, ("o", 2*p + 1), tau, 1)]
    nvs = {1: 1, 2: 1, 3: 2}
    PA_ = V_KX; PB_ = V_VX
    def loads(P, sr):
        for i in range(2):
            A(f"buffer_load_dwordx4 {v(P+4*i,4)}, v{V_L16}, {WS}, s{sr} offen offset:{i*1024} sc1")
    ep = cfg.get("ep", 0)
    def early():
        Lne = A.newlabel("r_ne")
        A(f"s_cbranch_scc1 {Lne}")
        keep = list(A.hist)
        loads(PA_, S_EL)
        A.hist = keep
        A.label(Lne)
    for k, (n, u, tau, kh) in enumerate(seq, 1):
        if k == 2: F.m += tile_ops(("o", 7), 0, V_STG)
        if k == 4: F.m += tile_ops(("o", 5), 0, STG2); F.v += fold_ops(0)
        if k == 6:
            assert not F.v and not F.m
            F.m += [lambda: vm.issue(f"buffer_store_dword v{V_TMP}, v{V_P1}, {WS}, s{S_P1} offen{st}")] + tile_ops(("o", 5), 1, STG2)
            F.v += fold_ops(1)
        if k == 8: F.v += fold_ops(2)
        if k == 9:
            assert not F.v and not F.m
            F.m += [pstore(0)] + tile_ops(("o", 7), 1, V_STG)
            F.v += zero_ops(0)
        if k == 10: F.v += fold_ops(3)
        if k == 12: F.v += fold_ops(4) + zero_ops(1)
        if k == 14:
            assert not F.v and not F.m
            F.m += [pstore(1)]
            F.v += zero_ops(2)[:1] + fold_ops(5)[:3] + zero_ops(2)[1:]
        if k == 16: F.v += fold_ops(5)[3:] + fold_ops(6)
        if k == 18:
            assert not F.v and not F.m
            if not cfg.get("l2", 0): F.m += [pstore(2)]
            F.v += fold_ops(7)
        if k == 15: F.s += [op(f"s_cmp_eq_u32 s{S_EJ}, 0")]
        if ep and k == ep: F.s += [early]
        wsm(n, u, tau, kh, nvs.get(k, 3 if k in (8, 12, 14) else 2))
    F.drain()
    if not ep: early()
    if cfg.get("l2", 0): pstore(2)()
    ey = 1 if cfg.get("l2", 0) or ep else 0
    for o in fold_ops(8): o()
    pstore(3)()
    stamp(4)
    lg.done = lg.n
    SEL = V_AR + 4; D = V_AR + 8; D2 = V_VA; CKR = V_AR; FA = V_AR + 1; FV = V_VX; FD = V_AR + 3
    sel_ops = [f"v_bfe_u32 v{D}, v{V_L16}, 6, 1", f"v_lshlrev_b32 v{D}, 4, v{D}", f"v_mov_b32 v{D+1}, 0x3f80",
               f"v_lshlrev_b32 v{D}, v{D}, v{D+1}"]
    sel_ops += [f"v_cndmask_b32 v{SEL+i}, 0, v{D}, {s(S_MK+2*i,2)}" for i in range(4)]
    sel_ops += [f"v_lshrrev_b32 v{V_TMP}, 4, v{V_L16}", f"v_and_b32 v{V_TMP}, 0x30, v{V_TMP}",
                f"v_bfe_u32 v{V_TMP+1}, v{V_L16}, 4, 2", f"v_lshl_add_u32 v{V_TMP}, v{V_TMP+1}, 2, v{V_TMP}",
                f"v_cndmask_b32 v{V_TMP+1}, 0, -1, {s(S_EXR,2)}",
                f"v_and_b32 v{D}, 0xc000, v{V_TMP+1}",
                f"v_xor_b32 v{D}, s{S_MSL}, v{D}",
                f"v_add_u32 v{V_TMP}, v{V_TMP}, v{D}"]
    poll = lambda: A(f"buffer_load_dword v{FV}, v{FA}, {WS}, s{S_FR} offen sc1")
    def tags(Ps, waits, Lbad):
        first = True
        for P, w in zip(Ps, waits):
            if w is not None: A(f"s_waitcnt vmcnt({w})")
            for r in (P, P + 2):
                if first: A(f"v_xor_b32 v{CKR}, s{S_PAR}, v{r}"); first = False
                else: A(f"v_bitop3_b32 v{CKR}, v{CKR}, v{r}, s{S_PAR} bitop3:0xf6")
        A(f"v_and_b32 v{CKR}, 1, v{CKR}")
        A(f"v_cmp_ne_u32 vcc, 0, v{CKR}")
        return lambda: A(f"s_cbranch_vccnz {Lbad}")
    def mm(P, Dd):
        for i in range(2): A(f"{MF} {v(Dd,4)}, {v(SEL,4)}, {v(P+4*i,4)}, {'0' if i == 0 else v(Dd,4)}")
    def fin(Dd, sr):
        A(f"v_add_f32_dpp v{Dd+2}, v{Dd}, v{Dd} row_ror:8 row_mask:0xf bank_mask:0xf")
        A(f"v_add_f32_dpp v{Dd+3}, v{Dd+1}, v{Dd+1} row_ror:8 row_mask:0xf bank_mask:0xf")
        A(f"v_add_f32_dpp v{Dd}, v{Dd+2}, v{Dd+2} row_ror:4 row_mask:0xf bank_mask:0xf")
        A(f"v_add_f32_dpp v{Dd+1}, v{Dd+3}, v{Dd+3} row_ror:4 row_mask:0xf bank_mask:0xf")
        A(f"v_cvt_pk_bf16_f32 v{Dd}, v{Dd}, v{Dd+1}")
        A(f"v_min_u32 v{Dd}, -2, v{Dd}")
        A(f"v_or_b32 v{Dd}, v{Dd}, v{V_TMP+1}")
        if Dd == D: A(f"v_mov_b32 v{FV}, -1")
        A(f"buffer_store_dword v{Dd}, v{V_TMP}, {WS}, s{sr} offen{st}")
    def budget(Lp):
        A(f"s_sub_u32 s{S_BUD}, s{S_BUD}, 1")
        A(f"s_cmp_lg_u32 s{S_BUD}, 0")
        A(f"s_cbranch_scc1 {Lp}")
        A(f"s_branch {L_exit}")
    def flag():
        stamp("fl")
        A(f"s_mov_b64 exec, {s(S_F8,2)}")
        A(f"buffer_store_dword v{FD}, v{V_L16}, {WS}, s{S_FW} offen{st}")
        A(f"s_mov_b64 exec, -1")
    cnt = lambda: A(f"s_add_u32 s84, s84, 1") if cfg.get("count") else None
    L_late = A.newlabel("r_late"); L_two = A.newlabel("r_two"); L_h2 = A.newlabel("r_h2"); L_h2b = A.newlabel("r_h2b")
    La = A.newlabel("r_a"); Lab = A.newlabel("r_ab"); Lb = A.newlabel("r_b"); Lbb = A.newlabel("r_bb"); Lc = A.newlabel("r_c"); Lcb = A.newlabel("r_cb")
    A(f"s_cmp_ge_u32 s{S_WV}, 2")
    A(f"s_cbranch_scc1 {L_late}")
    def prep(skip=0):
        for o in sel_ops[skip:]: A(o)
        A(f"v_bfe_u32 v{FA}, v{V_L16}, 2, 7")
        A(f"v_and_b32 v{FD}, 0x3c, v{FA}")
        A(f"v_add_u32 v{FD}, s{S_FX}, v{FD}")
        A(f"s_mov_b32 exec_lo, 0")
        A(f"v_mov_b32 v{FA}, v{FD}")
        A(f"s_mov_b32 exec_lo, -1")
        A(f"v_mov_b32 v{FD}, s{S_STEP}")
    PC_ = V_QK; PD_ = V_QK + 8
    def copy(dst, src):
        for i in range(0, 8, 2): A(f"v_mov_b64 {v(dst+i,2)}, {v(src+i,2)}")
    nb = cfg.get("nb", 12)
    L1 = A.newlabel("r_w1"); Ld = A.newlabel("r_d"); Ldb = A.newlabel("r_db"); Lb2 = A.newlabel("r_b2"); Lbb2 = A.newlabel("r_bb2")
    A(f"s_cmp_eq_u32 s{S_WV}, 1")
    A(f"s_cbranch_scc1 {L1}")
    for o in sel_ops[:nb]: A(o)
    loads(PC_, S_RED)
    prep(nb)
    A(f"s_waitcnt vmcnt({3+ey})")
    A.label(La)
    br = tags([PA_, PA_ + 4], [None, None], Lab)
    mm(PA_, D); br(); flag(); fin(D, S_MEMW)
    A(f"s_branch {L_h2}")
    A.label(Lab)
    cnt(); A("s_waitcnt vmcnt(0)"); copy(PA_, PC_); loads(PC_, S_RED); budget(La)
    A.label(L1)
    n1 = cfg.get("n1", 16)
    for o in sel_ops[:n1]: A(o)
    for _ in range(cfg.get("d1", 0)): A("s_nop 3")
    loads(PA_, S_RED)
    prep(n1)
    pre1()
    A.label(Ld)
    A("s_waitcnt vmcnt(0)")
    br = tags([PA_, PA_ + 4], [None, None], Ldb)
    mm(PA_, D); br(); flag(); fin(D, S_MEMW)
    A(f"s_branch {L_h2b}")
    A.label(Ldb)
    cnt(); loads(PA_, S_RED); budget(Ld)
    A.label(L_late)
    for o in sel_ops: A(o)
    A(f"s_cmp_eq_u32 s{S_EJ}, 0")
    A(f"s_cbranch_scc1 {L_two}")
    A(f"v_mov_b32 v{FD}, s{S_STEP}")
    A(f"s_waitcnt vmcnt({1+ey})")
    A.label(Lb)
    br = tags([PA_, PA_ + 4], [None, None], Lbb)
    mm(PA_, D); br(); flag(); fin(D, S_MEMW1)
    loads(PA_, S_RED)
    pre1()
    A(f"s_branch {Lb2}")
    A.label(Lbb)
    cnt(); loads(PA_, S_RED1); A("s_waitcnt vmcnt(0)"); budget(Lb)
    A.label(L_two)
    pre1()
    for _ in range(cfg.get("d2w", 0)): A("s_nop 3")
    A(f"s_cmp_eq_u32 s{S_WV}, 2")
    A(f"s_cbranch_scc1 {Lc}")
    for _ in range(cfg.get("d3w", 0)): A("s_nop 3")
    A.label(Lc)
    loads(PA_, S_RED)
    A.label(Lb2)
    A("s_waitcnt vmcnt(0)")
    br = tags([PA_, PA_ + 4], [None, None], Lcb)
    mm(PA_, D); br(); fin(D, S_MEMW)
    stamp(5)
    A(f"s_mov_b32 m0, s{S_M0G}")
    for o in advance_ops(): A(o)
    pre2()
    if kv_wait is not None: kv_wait(A)
    A(f"s_branch {L_bar}")
    A.label(Lcb)
    cnt(); budget(Lc)
    L_chk = A.newlabel("r_chk"); L_rep = A.newlabel("r_rep"); L_g3 = A.newlabel("r_g3"); L_fp = A.newlabel("r_fp"); L_fok = A.newlabel("r_fok")
    def gather(lab, mid=None):
        A(f"buffer_load_dwordx4 v{V_L16}, {WS}, s{S_MEMG} offen sc1 lds")
        A(f"s_cmp_lg_u32 s{S_WV}, 0")
        A(f"buffer_load_dwordx4 v{V_L16}, {WS}, s{S_MEMG} offen offset:1024 sc1 lds")
        if mid: A(mid)
        A(f"s_cbranch_scc1 {lab}")
        A(f"buffer_load_dwordx4 v{V_L16}, {WS}, s{S_MEMG} offen offset:2048 sc1 lds")
        A.label(lab)
    def flag_loop():
        Lp = A.newlabel("r_fp"); Lok = A.newlabel("r_fok")
        A.label(Lp)
        for _ in range(4):
            A(f"v_cmp_ne_u32 vcc, s{S_T3}, v{FV}")
            if not cfg.get("half") or _ % 2 == 0: poll()
            A(f"s_cbranch_vccz {Lok}")
        A("s_waitcnt vmcnt(24)")
        budget(Lp)
        A.label(Lok)
        stamp("fok")
    A.label(L_h2b)
    poll()
    stamp(5)
    A(f"s_mov_b32 m0, s{S_M0G}")
    A(f"s_mov_b32 s{S_T3}, s{S_STEP}")
    for o in advance_ops(): A(o)
    poll()
    pre2(); poll()
    if kv_wait is not None: kv_wait(A)
    flag_loop()
    for i in range(2): A(f"buffer_load_dwordx4 v{V_L16}, {WS}, s{S_MEMG} offen offset:{i*1024} sc1 lds")
    A(f"s_branch {L_bar}")
    A.label(L_h2)
    poll()
    stamp(5)
    A(f"s_mov_b32 m0, s{S_M0G}")
    A(f"s_mov_b32 s{S_T3}, s{S_STEP}")
    stg_load(("q", 0), V_STG)
    poll()
    for o in advance_ops(): A(o)
    poll()
    flag_loop()
    for i in range(3): A(f"buffer_load_dwordx4 v{V_L16}, {WS}, s{S_MEMG} offen offset:{i*1024} sc1 lds")
    pre2()
    if kv_wait is not None: kv_wait(A)
    A("s_waitcnt vmcnt(8)")
    zero(V_QK, 24)
    A(f"s_branch {L_bar0}")
    for La, Lb in ((L_again, L_back),):
        A.label(La)
        A(f"s_cmp_lt_u32 s{S_WV}, 2")
        A(f"s_cbranch_scc1 {Lb}")
        if cfg.get("count"): A(f"s_add_u32 s85, s85, 0x10000")
        A(f"ds_read_b32 v{V_TMP}, v{V_TMP+1}")
        gather(A.newlabel("r_g4"))
        A(f"s_waitcnt vmcnt(12) lgkmcnt(0)")
        A(f"v_cmp_eq_u32 vcc, -1, v{V_TMP}")
        A(f"s_cbranch_vccz {Lb}")
        budget(La)
    A.label(L_redo)
    L_rp = A.newlabel("r_rp"); L_rok = A.newlabel("r_rok")
    A(f"s_cmp_eq_u32 s{S_VER}, 1")
    A(f"s_cbranch_scc1 {L_go}")
    if cfg.get("count"): A(f"s_add_u32 s85, s85, 0x100")
    A("s_waitcnt vmcnt(0) lgkmcnt(0)")
    A("s_nop 15")
    A("s_barrier")
    G = V_QK
    A(f"s_xor_b32 s{S_T0}, s{S_GRAY}, 0xc000")
    A(f"s_xor_b32 s{S_MEMG}, s{S_MEMG}, s{S_T0}")
    A(f"v_add_u32 v{G+13}, s{S_M0G}, v{V_L16}")
    A(f"s_sub_u32 s{S_T3}, s{S_MEMG}, s{S_M0G}")
    A(f"s_add_u32 s{S_T3}, s{S_T3}, {L_MEM}")
    A.label(L_rp)
    A(f"buffer_load_dwordx4 {v(G,4)}, v{V_L16}, {WS}, s{S_MEMG} offen sc1")
    A(f"buffer_load_dwordx4 {v(G+4,4)}, v{V_L16}, {WS}, s{S_MEMG} offen offset:1024 sc1")
    A(f"buffer_load_dwordx4 {v(G+8,4)}, v{V_L16}, {WS}, s{S_T3} offen offset:2048 sc1")
    A(f"s_waitcnt vmcnt(0)")
    A(f"v_max3_u32 v{G+14}, v{G}, v{G+1}, v{G+2}")
    for i in range(3, 11, 2): A(f"v_max3_u32 v{G+14}, v{G+14}, v{G+i}, v{G+i+1}")
    A(f"v_max_u32 v{G+14}, v{G+14}, v{G+11}")
    A(f"v_cmp_eq_u32 vcc, -1, v{G+14}")
    A(f"s_cbranch_vccz {L_rok}")
    A(f"s_sub_u32 s{S_BUD}, s{S_BUD}, 1")
    A(f"s_cmp_lg_u32 s{S_BUD}, 0")
    A(f"s_cbranch_scc1 {L_rp}")
    A(f"s_branch {L_exit}")
    A.label(L_rok)
    A(f"ds_write_b128 v{G+13}, {v(G,4)}")
    A(f"ds_write_b128 v{G+13}, {v(G+4,4)} offset:1024")
    A(f"ds_write_b128 v{V_L16}, {v(G+8,4)} offset:{L_MEM+2048}")
    A("s_waitcnt lgkmcnt(0)")
    pre1(); pre2()
    A(f"s_mov_b32 s{S_VER}, 1")
    A(f"s_mov_b32 s{S_LG}, 0")
    A("s_waitcnt lgkmcnt(0)")
    A("s_barrier")
    A(f"s_branch {L_top}")
    A.label(L_last)

def snapshot(A):
    A(f"v_lshrrev_b32 v12, 2, v{V_L16}")
    A(f"global_load_dword v13, v12, {s(S_DBG,2)} sc1")

def team_ready(A, L_fast, L_slow, L_exit):
    Lp = A.newlabel("tm_p"); La = A.newlabel("tm_a")
    A.label(Lp)
    for i in range(9): A(f"v_readlane_b32 s{84+i}, v13, {DIE_DW[i]}")
    A(f"v_readlane_b32 s95, v13, {DBG_TEAM//4}")
    A(f"v_readlane_b32 s96, v13, {DBG_TEAM//4 + 16}")
    A(f"v_readlane_b32 s97, v13, {DBG_INIT//4}")
    A("s_nop 3")
    A(f"s_add_u32 s93, s84, s85")
    for i in range(2, 9): A(f"s_add_u32 s93, s93, s{84+i}")
    A(f"s_cmp_eq_u32 s{S_B}, 0")
    A(f"s_cselect_b32 s94, s84, s85")
    A(f"s_cselect_b32 s95, s95, s96")
    A(f"s_cmp_lt_u32 s95, 32")
    A(f"s_cbranch_scc1 {La}")
    A(f"s_cmp_lt_u32 s97, 192")
    A(f"s_cbranch_scc1 {La}")
    A(f"s_cmp_ge_u32 s94, 32")
    A(f"s_cbranch_scc1 {L_fast}")
    A(f"s_cmp_ge_u32 s93, 256")
    A(f"s_cbranch_scc1 {L_slow}")
    A.label(La)
    A(f"v_mov_b32 v{V_WARM}, 0")
    A(f"s_sub_u32 s{S_BUD}, s{S_BUD}, 1")
    A(f"s_cmp_eq_u32 s{S_BUD}, 0")
    A(f"s_cbranch_scc1 {L_exit}")
    snapshot(A)
    A("s_waitcnt vmcnt(0)")
    A(f"s_branch {Lp}")

def rec_role(A, L_exit, stamp=None, force_slow=False, kv_wait=None, publish=None, publish_last=None, cfg=None, at_end=None, before_loop=None, after_load=None, early=None):
    A(f"s_lshr_b32 s{S_B}, s{S_SLOTID}, 5")
    A(f"s_and_b32 s{S_H}, s{S_SLOTID}, 31")
    rec_setup(A)
    build_mem0(A)
    rec_bases(A)
    init_slots(A, " sc1")
    def hook(i):
        if i == 0:
            Lw = A.newlabel("tb_w")
            A(f"s_lshl_b32 s{S_T0}, s{S_B}, 6"); A(f"s_add_u32 s{S_T0}, s{S_T0}, {DBG_TEAM}")
            A(f"v_mov_b32 v12, s{S_T0}"); A(f"v_mov_b32 v13, 1")
            A(f"s_cmp_lg_u32 s{S_WV}, 0")
            A(f"s_cbranch_scc1 {Lw}")
            A(f"s_mov_b64 exec, 1")
            A(f"global_atomic_add v12, v13, {s(S_DBG,2)}")
            A(f"s_mov_b64 exec, -1")
            A.label(Lw)
        if i == 18: snapshot(A)
        if i == 31 and early is not None: early(A)
    load_weights(A, (cfg or {}).get('wnt', ''), hook)
    if after_load is not None: after_load(A)
    L_fast = A.newlabel("r_fast"); L_slow = A.newlabel("r_slow")
    team_ready(A, L_slow if force_slow else L_fast, L_slow, L_exit)
    for lab, st in ((L_fast, ""), (L_slow, " sc1")):
        A.label(lab)
        if before_loop is not None: before_loop(A)
        if cfg and cfg.get("count"):
            for r in (84, 85, 71): A(f"s_mov_b32 s{r}, 0")
        rec_loop(A, st, L_exit, stamp=stamp, kv_wait=kv_wait, publish=publish, cfg=cfg)
        A("s_waitcnt vmcnt(0) lgkmcnt(0)")
        if publish_last is not None: publish_last(A)
        if at_end is not None: at_end(A)
        A(f"s_branch {L_exit}")
```

```python
import sys, json
from common import *
import phase_a as PA
import rec as RC
import phase_b as PB
import outproj as OP

NAME = "gated_mix__memory_aug_recurrent_mem_tr__memory_aug_recurrent_mem_tr__prompt_kernel"
WS = s(S_WS, 4)

def merged(cfg=None, force_slow=False, prof=False):
    cfg = cfg or {}
    A = Asm()
    WPROF[0] = bool(cfg.get("wp"))
    X = "L_exit"
    A.raw(kernel_header(NAME))
    A("s_cmp_ge_u32 s2, 256")
    A(f"s_cbranch_scc1 {X}")
    def tstamp(i, vt=10):
        if cfg.get("dbgt"):
            Ls = A.newlabel("dbgt")
            A("s_memrealtime s[0:1]")
            A(f"s_mov_b32 s2, 0")
            for sl, base in ((1, 2), (37, 6), (76, 10), (70, 10)):
                if sl == 70 and i != 4: continue
                if sl == 76 and i > 2: continue
                A(f"s_cmp_eq_u32 s{S_SLOTID}, {sl}"); A(f"s_cselect_b32 s2, {4*(base+i)}, s2")
            A("s_waitcnt lgkmcnt(0)")
            A("s_cmp_eq_u32 s2, 0")
            A(f"s_cbranch_scc1 {Ls}")
            A(f"v_mov_b32 v{vt}, s0"); A(f"v_mov_b32 v{vt+1}, s2")
            A(f"global_store_dword v{vt+1}, v{vt}, {s(S_DBG,2)} sc1")
            A.label(Ls)
            return
        if not prof: return
        A("s_memrealtime s[0:1]")
        A(f"s_lshl_b32 s2, s{S_SLOTID}, 6"); A(f"s_add_u32 s2, s2, {WS_DBG + 0x100000 + 4*i}")
        A("s_waitcnt lgkmcnt(0)")
        A(f"v_mov_b32 v{vt}, s0")
        A(f"buffer_store_dword v{vt}, off, {WS}, s2")
        A("s_waitcnt vmcnt(0)")
        if i in (1, 2):
            A("s_memtime s[0:1]")
            A("s_waitcnt lgkmcnt(0)")
            A(f"v_mov_b32 v{vt}, s0")
            A(f"buffer_store_dword v{vt}, off, {WS}, s2 offset:40")
            A("s_waitcnt vmcnt(0)")
    load_ptrs(A)
    build_common_srds(A)
    assign_slot(A, X, tuple(cfg.get('dies', (0, 1))), cfg.get('fake'))
    if cfg.get('scramble'): A(f"s_mov_b32 s{S_SLOTID}, s2"); force_slow = True
    tstamp(0)
    A(f"s_cmp_ge_u32 s{S_SLOTID}, 64")
    A("s_cbranch_scc1 L_worker")
    S_KVOK = 37
    def r_before(A):
        A(f"s_mov_b32 s{S_KVOK}, 0")
        A(f"s_lshl_b32 s{RC.S_RZ}, s{RC.S_BH}, 2"); A(f"s_add_u32 s{RC.S_RZ}, s{RC.S_RZ}, s{RC.S_WV}")
        A(f"s_lshl_b32 s{RC.S_RZ}, s{RC.S_RZ}, 7"); A(f"s_add_u32 s{RC.S_RZ}, s{RC.S_RZ}, {WS_MP}")
        tstamp(1, 12)
    def r_early(A):
        A(f"s_lshl_b32 s{RC.S_RZ2}, s{RC.S_BH}, 7"); A(f"s_add_u32 s{RC.S_RZ2}, s{RC.S_RZ2}, {WS_KVP}")
        A(f"buffer_load_dword v{RC.V_WARM}, off, {WS}, s{RC.S_RZ2} sc1")
    def kv_wait(A, first=False):
        Lok = A.newlabel("kv_ok"); Lp = A.newlabel("kv_p"); Lu = A.newlabel("kv_u")
        W = RC.V_WARM
        A(f"s_cmp_gt_i32 s{S_KVOK}, s{RC.S_STEP}")
        A(f"s_cbranch_scc1 {Lok}")
        A(f"s_branch {Lu}")
        A.label(Lp)
        A(f"s_sub_u32 s{RC.S_BUD}, s{RC.S_BUD}, 1")
        A(f"s_cmp_eq_u32 s{RC.S_BUD}, 0")
        A(f"s_cbranch_scc1 {X}")
        A(f"v_bfe_u32 v{W}, v{RC.V_L16}, 2, 4")
        A(f"buffer_load_dword v{W}, v{W}, {WS}, s{RC.S_RZ2} offen sc1")
        A("s_waitcnt vmcnt(0)")
        A.label(Lu)
        A(f"v_readlane_b32 s{S_KVOK}, v{W}, 0")
        A("s_nop 3")
        A(f"s_cmp_ge_u32 s{S_KVOK}, 64")
        A(f"s_cselect_b32 s{S_KVOK}, 65, s{S_KVOK}")
        A(f"s_sub_u32 s{S_KVOK}, s{S_KVOK}, 1")
        A(f"s_cmp_gt_i32 s{S_KVOK}, s{RC.S_STEP}")
        A(f"s_cbranch_scc0 {Lp}")
        A.label(Lok)
    def r_publish(A, vm, F):
        if cfg.get("nopf"): return
        def st():
            A(f"s_mov_b64 exec, 1")
            vm.issue(f"buffer_store_dword v{RC.V_TMP}, off, {WS}, s{RC.S_RZ} sc1")
            A("s_mov_b64 exec, -1")
        F.v += [lambda: A(f"v_mov_b32 v{RC.V_TMP}, s{RC.S_STEP}"), st]
    def r_last(A):
        A("s_barrier")
        A(f"v_mov_b32 v{RC.V_WARM}, 64")
        A(f"s_mov_b64 exec, 1")
        A(f"buffer_store_dword v{RC.V_WARM}, off, {WS}, s{RC.S_RZ} sc1")
        A("s_mov_b64 exec, -1")
        tstamp(2, 12)
    stamp = None
    if cfg.get("rst"):
        cfg["count"] = 1
        def stamp(i):
            if i == 0:
                for k in range(6): A(f"v_writelane_b32 v16, s{86+2*k}, {k}")
                A(f"v_writelane_b32 v16, s84, 6")
                A(f"v_writelane_b32 v16, s85, 7")
                A(f"v_lshrrev_b32 v17, 2, v{RC.V_L16}")
                A(f"s_lshl_b32 s41, s{S_SLOTID}, 2")
                A(f"s_add_u32 s41, s41, s{RC.S_WV}")
                A(f"s_lshl_b32 s41, s41, 6")
                A(f"s_add_u32 s41, s41, s{RC.S_STEP}")
                A(f"s_lshl_b32 s41, s41, 5")
                A(f"s_add_u32 s41, s41, {WS_DBG}")
                A("s_mov_b64 exec, 0xff")
                A(f"buffer_store_dword v16, v17, {s(S_WS,4)}, s41 offen")
                A("s_mov_b64 exec, -1")
            A(f"{'s_memrealtime' if cfg.get('rt') else 's_memtime'} s[{86+2*i}:{87+2*i}]")
            if not cfg.get("nowait") or i == 0: A("s_waitcnt lgkmcnt(0)")
    RC.rec_role(A, X, stamp=stamp, force_slow=force_slow, kv_wait=kv_wait, publish=r_publish, publish_last=r_last, cfg=cfg, before_loop=r_before, after_load=lambda A: tstamp(3, 14), early=r_early)
    A.label("L_worker")
    A(f"s_sub_u32 s{PA.S_WI}, s{S_SLOTID}, 64")
    PA.worker_setup(A)
    PA.worker_consts(A)
    S_BUD = PB.S_BUD
    if prof:
        A(f"s_lshl_b32 s2, s{S_SLOTID}, 6"); A(f"s_add_u32 s2, s2, {WS_DBG + 0x100000 + 32}")
        A(f"v_mov_b32 v32, s{PA.S_C}"); A(f"buffer_store_dword v32, off, {WS}, s2")
    A(f"s_mov_b32 s{S_BUD}, 0x100000")
    Lz = A.newlabel("w_z")
    A(f"s_lshl_b32 s{PA.S_T0}, s{PA.S_WI}, 10"); A(f"s_lshl_b32 s{PA.S_T1}, s{PA.S_WV}, 8"); A(f"s_add_u32 s{PA.S_T0}, s{PA.S_T0}, s{PA.S_T1}")
    A(f"s_add_u32 s{PA.S_T0}, s{PA.S_T0}, {WS_FLAG}")
    for i in range(4): A(f"v_mov_b32 v{32+i}, 0")
    A("s_mov_b64 exec, 0xffff")
    A(f"buffer_store_dwordx4 v[32:35], v{PA.V_L16}, {WS}, s{PA.S_T0} offen sc1")
    A("s_mov_b64 exec, 0xff")
    A(f"s_lshl_b32 s6, s{PA.S_BH}, 7"); A(f"s_add_u32 s6, s6, {WS_KVP}")
    A(f"s_or_b32 s{PA.S_T0}, s{PA.S_C}, s{PA.S_WV}")
    A(f"s_cmp_eq_u32 s{PA.S_T0}, 0"); A(f"s_cselect_b32 s{PA.S_T0}, s6, 0x20000000")
    A(f"buffer_store_dwordx4 v[32:35], v{PA.V_L16}, {WS}, s{PA.S_T0} offen sc1")
    A("s_mov_b64 exec, -1")
    PB.gate_part(A)
    A("s_waitcnt vmcnt(0)")
    A("s_barrier")
    A(f"s_cmp_lg_u32 s{PA.S_WV}, 0")
    A(f"s_cbranch_scc1 {Lz}")
    A(f"v_mov_b32 v32, {DBG_INIT}"); A("v_mov_b32 v33, 1")
    A("s_mov_b64 exec, 1")
    A(f"global_atomic_add v32, v33, {s(S_DBG,2)}")
    A("s_mov_b64 exec, -1")
    A.label(Lz)
    S_KP = 6; S_W0 = 94; S_KK = 7
    A(f"s_mov_b32 s100, s70"); A(f"s_mov_b32 s101, s71")
    A(f"s_mov_b32 s4, s84"); A(f"s_mov_b32 s5, s85")
    A(f"s_cmp_eq_u32 s{PA.S_C}, 1")
    A("s_cbranch_scc1 L_attn")
    A(f"s_cmp_eq_u32 s{PA.S_C}, 2")
    A("s_cbranch_scc1 L_outproj")
    def a_before(A):
        tstamp(1, PA.V_T)
    A(f"s_cmp_eq_u32 s{PA.S_WV}, 0"); A(f"s_cselect_b32 s{S_W0}, 1, 0"); A(f"s_mov_b32 s{S_W0+1}, 0")
    def a_publish(A):
        A(f"v_mov_b32 v{PA.V_T}, s{PA.S_CNT}")
        A(f"s_mov_b64 exec, {s(S_W0,2)}")
        A(f"buffer_store_dword v{PA.V_T}, off, {WS}, s{S_KP} sc1")
        A("s_mov_b64 exec, -1")
        A(f"s_add_u32 s{PA.S_CNT}, s{PA.S_CNT}, 1")
    PA.phase_a(A, publish=a_publish, before_loop=a_before, cfg=cfg)
    a_publish(A)
    tstamp(2, PA.V_T)
    A(f"s_cmp_ge_u32 s{PA.S_BH}, 48")
    A(f"s_cbranch_scc1 {X}")
    A(f"s_mul_hi_u32 s{OP.S_T0}, s{PA.S_BH}, {hex((1<<32)//6+1)}")
    A(f"s_mul_i32 s{OP.S_T1}, s{OP.S_T0}, 6"); A(f"s_sub_u32 s{OP.S_NJ}, s{PA.S_BH}, s{OP.S_T1}")
    A(f"s_and_b32 s{OP.S_SEG}, s{OP.S_T0}, 1"); A(f"s_add_u32 s{OP.S_SEG}, s{OP.S_SEG}, {cfg.get('join', 48) + 2}"); A(f"s_lshr_b32 s{OP.S_KQ}, s{OP.S_T0}, 1")
    A("s_branch L_op_go")
    def swait(A, soff, sdst, cmp, sleep):
        Lp = A.newlabel("sw"); Lok = A.newlabel("sw_ok")
        A.label(Lp)
        A(f"s_buffer_load_dword s{sdst}, {WS}, s{soff} glc")
        A("s_waitcnt lgkmcnt(0)")
        A(cmp)
        A(f"s_cbranch_scc1 {Lok}")
        A(f"s_sleep {sleep}")
        A(f"s_sub_u32 s{S_BUD}, s{S_BUD}, 1")
        A(f"s_cmp_lg_u32 s{S_BUD}, 0")
        A(f"s_cbranch_scc1 {Lp}")
        A(f"s_branch {X}")
        A.label(Lok)
    def mem_wait(A, loads, regs):
        A(f"s_lshl_b32 s{PA.S_T0}, s{PA.S_BH}, 2"); A(f"s_add_u32 s{PA.S_T0}, s{PA.S_T0}, s{PA.S_WV}")
        A(f"s_lshl_b32 s{PA.S_T0}, s{PA.S_T0}, 7"); A(f"s_add_u32 s{PA.S_T2}, s{PA.S_T0}, {WS_MP}")
        swait(A, PA.S_T2, PA.S_T1, f"s_cmp_gt_u32 s{PA.S_T1}, s{PA.S_SEG}", cfg.get("bsl", 1))
        wstamp(A, 0, PB.V_PKQ + 2)
        loads()
    def hold(A, soff, vt, st):
        Lp = A.newlabel("hold"); Lok = A.newlabel("hold_ok")
        A(f"s_cmp_lg_u32 s{PA.S_WV}, 0")
        A(f"s_cbranch_scc1 {Lok}")
        wait_init(A, X, S_BUD, vt, st)
        if soff is not None: swait(A, soff, st, f"s_cmp_ge_u32 s{st}, {cfg.get('holdn', 5)}", 32)
        A.label(Lok)
        A("s_barrier")
    A.label("L_attn")
    hold(A, S_KP, 32, PA.S_T2)
    def b_before(A):
        A(f"s_mov_b32 s{S_KK}, 0")
        tstamp(1, 32)
    def b_kv(A):
        Lok = A.newlabel("b_kvok")
        A(f"s_cmp_gt_u32 s{S_KK}, s{PA.S_SEG}")
        A(f"s_cbranch_scc1 {Lok}")
        swait(A, S_KP, S_KK, f"s_cmp_gt_u32 s{S_KK}, s{PA.S_SEG}", 2)
        A.label(Lok)
    def b_publish(A):
        A(f"s_lshl_b32 s{PA.S_T0}, s{PA.S_SEG}, 4"); A(f"s_lshr_b32 s{PA.S_T1}, s{PA.S_BH}, 2"); A(f"s_add_u32 s{PA.S_T0}, s{PA.S_T0}, s{PA.S_T1}")
        A(f"s_lshl_b32 s{PA.S_T0}, s{PA.S_T0}, 4"); A(f"s_and_b32 s{PA.S_T1}, s{PA.S_BH}, 3"); A(f"s_add_u32 s{PA.S_T0}, s{PA.S_T0}, s{PA.S_T1}")
        A(f"s_lshl_b32 s{PA.S_T0}, s{PA.S_T0}, 2"); A(f"s_add_u32 s{PA.S_T0}, s{PA.S_T0}, {WS_OC}")
        A(f"v_mov_b32 v{PB.V_PKQ}, 1")
        wstamp(A, 2, PB.V_PKQ + 2)
        A("s_waitcnt vmcnt(0)")
        wstamp(A, 3, PB.V_PKQ + 2)
        A("s_mov_b64 exec, 1")
        A(f"buffer_store_dword v{PB.V_PKQ}, off, {WS}, s{PA.S_T0} sc1")
        A("s_mov_b64 exec, -1")
    PB.phase_b(A, X, 0, 1, mem_wait=mem_wait, publish=b_publish, kv_wait=b_kv, before_loop=b_before)
    tstamp(3, 32)
    A(f"s_branch {X}")
    A.label("L_outproj")
    T0, T1, T2 = OP.S_T0, OP.S_T1, OP.S_T2
    A(f"s_lshr_b32 s{T0}, s{PA.S_WI}, 5")
    A(f"s_cmp_ge_u32 s{PA.S_BH}, 6"); A(f"s_cselect_b32 s{T1}, 1, 0")
    A(f"s_mul_i32 s{T2}, s{T1}, 6"); A(f"s_sub_u32 s{OP.S_NJ}, s{PA.S_BH}, s{T2}")
    A(f"s_cmp_ge_u32 s{T0}, 4")
    A("s_cbranch_scc1 L_op_two")
    A(f"s_cmp_eq_u32 s{T1}, 0")
    A("s_cbranch_scc1 L_op_grp")
    A(f"s_lshl_b32 s{T0}, s{T0}, 2"); A(f"s_add_u32 s{T0}, s{T0}, s{OP.S_NJ}")
    A(f"s_lshr_b32 s{OP.S_SEG}, s{T0}, 3"); A(f"s_and_b32 s{OP.S_NJ}, s{T0}, 7")
    A(f"s_cmp_lt_u32 s{OP.S_NJ}, 6")
    A("s_cbranch_scc1 L_final")
    A(f"s_branch {X}")
    A.label("L_op_two")
    A(f"s_lshl_b32 s{T0}, s{T0}, 1"); A(f"s_sub_u32 s{T0}, s{T0}, 4"); A(f"s_add_u32 s{T0}, s{T0}, s{T1}")
    A.label("L_op_grp")
    A(f"s_and_b32 s{OP.S_SEG}, s{T0}, 1"); A(f"s_lshr_b32 s{OP.S_KQ}, s{T0}, 1")
    A.label("L_op_go")
    A(f"s_cmp_lt_u32 s{OP.S_KQ}, 2")
    A(f"s_cselect_b32 s{S_W4}, s100, s4"); A(f"s_cselect_b32 s{S_W4+1}, s101, s5")
    hold(A, S_KP, OP.V_T, OP.S_T2)
    OP.op_consts_and_weights(A)
    tstamp(3, OP.V_T)
    OP.op_loop2(A, X, 2, cfg)
    tstamp(4, OP.V_T)
    A(f"s_branch {X}")
    A.label("L_final")
    hold(A, None, OP.V_T, OP.S_T2)
    OP.op_final(A, X, 2, cfg)
    tstamp(4, OP.V_T)
    A.label(X)
    A("s_endpgm")
    return A.text()

def write(path, txt, as_list=False):
    hdr = "".join(l for l in open("cdna_kernels/" + NAME[:-7] + ".s.ref") if l.startswith(";") and "launch" not in l.lower() and "Harness parses" not in l)
    hdr += f"; @launch kernel={NAME} grid=(256,1,1) block=(256,1,1) lds=163840\n" if as_list else "; @launch grid=(256,1,1) block=(256,1,1) lds=163840\n"
    out = hdr + '.amdgcn_target "amdgcn-amd-amdhsa--gfx950"\n.text\n' + txt + '.section .rodata,"a"\n' + kernel_desc(NAME)
    open(path, "w").write(out)

if __name__ == "__main__":
    cfg = json.loads(sys.argv[1]) if len(sys.argv) > 1 else {}
    write("merged.s", merged(dict(cfg)), True)
    write("merged_prof.s", merged(dict(cfg), prof=True), True)
    write("merged_slow.s", merged(dict(cfg), force_slow=True), True)
    write("final.s", merged(dict(cfg)), False)
    for k, arg in enumerate(sys.argv[2:]):
        c = dict(cfg); c.update(json.loads(arg))
        write(f"merged_v{k}.s", merged(c, prof=bool(c.get("prof"))), True)
```
